```python
import torch

def _softmax(x, axis=-1):
    return torch.softmax(x, dim=axis)
def _gelu(x):
    return torch.nn.functional.gelu(x, approximate="tanh")
def _silu(x):
    return torch.nn.functional.silu(x)
def _sigmoid(x):
    return torch.sigmoid(x)
def _layernorm(x, axis=-1, eps=1e-5):
    m = x.mean(dim=axis, keepdim=True)
    v = x.var(dim=axis, keepdim=True, unbiased=False)
    return (x - m) / torch.sqrt(v + eps)
def _scatter_add(tgt, idx, src, axis=0):
    return tgt.clone().index_add_(axis, idx, src)
def _segment_sum(src, seg, n):
    out = torch.zeros((n,) + src.shape[1:], dtype=src.dtype)
    return out.index_add_(0, seg, src)
def _pad(x, pw):
    flat = tuple(v for pair in reversed(pw) for v in pair)
    return torch.nn.functional.pad(x, flat)

kernel_name = 'concat_heads__mha_block_cached__gqa_block_cached__near_ridge'

def setup_inputs():

    _w = (lambda a: (lambda t: t.to(torch.bfloat16) if t.is_floating_point() else t)(torch.as_tensor(a)))
    def _A_setup():
        B, Sq, D = 16, 96, 640
        H, Sk, Dh = 32, 512, 192
        return {
            "x": _w((lambda *s: torch.randn(*s, dtype=torch.bfloat16) * 0.8)(B, Sq, D)),
            "k_cache": _w((lambda *s: torch.randn(*s, dtype=torch.bfloat16) * 0.8)(B, H, Sk, Dh)),
            "v_cache": _w((lambda *s: torch.randn(*s, dtype=torch.bfloat16) * 0.05)(B, H, Sk, Dh)),
            "wq": _w((lambda *s: torch.randn(*s, dtype=torch.bfloat16) * 0.8)(D, H * Dh) * (D ** -0.5)),
            "wo": _w((lambda *s: torch.randn(*s, dtype=torch.bfloat16) * 0.05)(H * Dh, D) * ((H * Dh) ** -0.5)),
        }
    _A_in = _A_setup()

    def _B_setup():
        B, Sq, D = 16, 96, 640
        Hq, Hkv, Sk, Dh = 32, 32, 512, 192
        assert Hq % Hkv == 0, (Hq, Hkv)
        return {
            "x": _w((lambda *s: torch.randn(*s, dtype=torch.bfloat16) * 0.8)(B, Sq, D)),
            "k_cache": _w((lambda *s: torch.randn(*s, dtype=torch.bfloat16) * 0.8)(B, Hkv, Sk, Dh)),
            "v_cache": _w((lambda *s: torch.randn(*s, dtype=torch.bfloat16) * 0.05)(B, Hkv, Sk, Dh)),
            "wq": _w((lambda *s: torch.randn(*s, dtype=torch.bfloat16) * 0.8)(D, Hq * Dh) * (D ** -0.5)),
            "wo": _w((lambda *s: torch.randn(*s, dtype=torch.bfloat16) * 0.05)(Hq * Dh, D) * ((Hq * Dh) ** -0.5)),
        }
    _B_in = _B_setup()

    return {
        "A_x": _A_in["x"],
        "A_k_cache": _A_in["k_cache"],
        "A_v_cache": _A_in["v_cache"],
        "A_wq": _A_in["wq"],
        "A_wo": _A_in["wo"],
        "B_x": _B_in["x"],
        "B_k_cache": _B_in["k_cache"],
        "B_v_cache": _B_in["v_cache"],
        "B_wq": _B_in["wq"],
        "B_wo": _B_in["wo"],
    }

def reference(A_x, A_k_cache, A_v_cache, A_wq, A_wo, B_x, B_k_cache, B_v_cache, B_wq, B_wo):
    def _A_ref(x, k_cache, v_cache, wq, wo):
        B, Sq, D = x.shape
        H, Dh = 32, 192
        q = (lambda x, *d: x.permute(*d))((x @ wq).reshape(B, Sq, H, Dh), 0, 2, 1, 3)
        scores = torch.einsum("bhqd,bhkd->bhqk", q, k_cache) * (Dh ** -0.5)
        p = _softmax(scores, axis=-1)
        o = torch.einsum("bhqk,bhkd->bhqd", p, v_cache)
        return (lambda x, *d: x.permute(*d))(o, 0, 2, 1, 3).reshape(B, Sq, H * Dh) @ wo

    def _B_ref(x, k_cache, v_cache, wq, wo):
        B, Sq, D = x.shape
        Hq, Dh = 32, 192
        Hkv = k_cache.shape[1]
        rep = Hq // Hkv
        q = (lambda x, *d: x.permute(*d))((x @ wq).reshape(B, Sq, Hq, Dh), 0, 2, 1, 3)
        k = (lambda x, n, axis: torch.repeat_interleave(x, n, dim=axis))(k_cache, rep, axis=1)
        v = (lambda x, n, axis: torch.repeat_interleave(x, n, dim=axis))(v_cache, rep, axis=1)
        scores = torch.einsum("bhqd,bhkd->bhqk", q, k) * (Dh ** -0.5)
        p = _softmax(scores, axis=-1)
        o = torch.einsum("bhqk,bhkd->bhqd", p, v)
        return (lambda x, *d: x.permute(*d))(o, 0, 2, 1, 3).reshape(B, Sq, Hq * Dh) @ wo

    a = _A_ref(A_x, A_k_cache, A_v_cache, A_wq, A_wo)
    b = _B_ref(B_x, B_k_cache, B_v_cache, B_wq, B_wo)
    return torch.concatenate([a, b], axis=-1)
```

```python
import re

class I:
    __slots__ = ('t', 'k', 'r', 'w', 'tag', 'need', 'cost')
    def __init__(self, t, k, r=(), w=(), tag=None, need=(), cost=1):
        self.t = t; self.k = k; self.r = set(r); self.w = set(w)
        self.tag = tag; self.need = list(need); self.cost = cost
    def __repr__(self): return self.t

def regs(x):
    if isinstance(x, (int, float)): return []
    x = x.strip()
    if x.startswith('-'): x = x[1:]
    m = re.fullmatch(r'([vas])\[(\d+):(\d+)\]', x)
    if m: return [f'{m.group(1)}{i}' for i in range(int(m.group(2)), int(m.group(3)) + 1)]
    if re.fullmatch(r'[vas]\d+', x): return [x]
    if x in ('vcc', 'm0', 'exec', 'scc'): return [x]
    return []

def R(kind, base, n=1):
    return f'{kind}{base}' if n == 1 else f'{kind}[{base}:{base+n-1}]'
def V(b, n=1): return R('v', b, n)
def A(b, n=1): return R('a', b, n)
def S(b, n=1): return R('s', b, n)

def fmt(x):
    if isinstance(x, int):
        return str(x) if -16 <= x <= 64 else hex(x & 0xffffffff)
    return str(x)

def _rw(dsts, srcs):
    w = []; r = []
    for d in dsts: w += regs(d)
    for s in srcs: r += regs(s)
    return r, w

TRANS = ('v_exp_f32', 'v_rcp_f32', 'v_log_f32', 'v_rsq_f32', 'v_sqrt_f32')
def valu(op, d, *src, need=()):
    r, w = _rw([d], src)
    k = 'trans' if op in TRANS else 'valu'
    if op.startswith('v_fmac') : r += regs(d)
    if op == 'v_cndmask_b32' and len(src) == 2: r.append('vcc'); src = src + ('vcc',)
    return I(f"{op} {d}, " + ", ".join(fmt(s) for s in src), k, r, w, need=need, cost=2 if k == 'trans' else 1)
def vcmp(op, a, b):
    r, w = _rw(['vcc'], [a, b])
    return I(f"{op} vcc, {fmt(a)}, {fmt(b)}", 'valu', r, w)
def perm(op, a, b):
    return I(f"{op} {a}, {b}", 'perm', regs(a) + regs(b), regs(a) + regs(b))
def salu(op, d, *src):
    r, w = _rw([d], src)
    if op in ('s_cselect_b32', 's_cselect_b64', 's_addc_u32', 's_subb_u32'): r.append('scc')
    if op not in ('s_mov_b32', 's_mov_b64', 's_cselect_b32', 's_cselect_b64', 's_mul_i32', 's_movk_i32', 's_mul_hi_u32'): w.append('scc')
    return I(f"{op} {d}, " + ", ".join(fmt(s) for s in src), 'salu', r, w)
def scmp(op, a, b):
    r, _ = _rw([], [a, b])
    return I(f"{op} {fmt(a)}, {fmt(b)}", 'salu', r, ['scc'])
def mfma(d, a, b, c, need=()):
    r, w = _rw([d], [a, b, c])
    i = I(f"v_mfma_f32_16x16x32_bf16 {d}, {a}, {b}, {fmt(c)}", 'mfma', r, w, need=need)
    i.tag = (set(regs(a) + regs(b)), set(regs(c)))
    return i
def dsread(op, d, addr, off, tag):
    o = f" offset:{off}" if off else ""
    return I(f"{op} {d}, {addr}{o}", 'ds', regs(addr), regs(d), tag=tag)
def dswrite(op, addr, data, off, tag):
    o = f" offset:{off}" if off else ""
    return I(f"{op} {addr}, {data}{o}", 'ds', regs(addr) + regs(data), [], tag=tag)
def dma(voff, srd, soff, off, tag, flags=' nt'):
    o = f" offset:{off}" if off else ""
    return I(f"buffer_load_dwordx4 {voff}, {srd}, {fmt(soff)} offen{o}{flags} lds", 'dma',
             regs(voff) + regs(srd) + regs(soff) + ['m0'], [], tag=tag)
def bstore(data, voff, srd, soff, off, tag, flags='', op='buffer_store_dwordx4'):
    o = f" offset:{off}" if off else ""
    return I(f"{op} {data}, {voff}, {srd}, {fmt(soff)} offen{o}{flags}", 'vstore',
             regs(data) + regs(voff) + regs(srd) + regs(soff), [], tag=tag)
def bload(d, voff, srd, soff, off, tag, flags='', op='buffer_load_dwordx4'):
    o = f" offset:{off}" if off else ""
    return I(f"{op} {d}, {voff}, {srd}, {fmt(soff)} offen{o}{flags}", 'vload',
             regs(voff) + regs(srd) + regs(soff), regs(d), tag=tag)
def barrier(need=()): return I("s_barrier", 'barrier', need=need)
def waitfor(need): return I("", 'null', need=need)
def raw(t, k='salu', r=(), w=()): return I(t, k, r, w)
def mark(name): return I(name, 'mark')
def nop(n): return I(f"s_nop {n}", 'nop', cost=n + 1)

VM_KINDS = ('dma', 'vstore', 'vload')

def insert_waits(prog):
    out = []
    lg = []; vm = []
    seen = set()
    for ins in prog:
        if ins.need:
            nl = nv = None
            for t in ins.need:
                assert t in seen, f"need of never-issued tag {t} at {ins.t}"
                idx = [i for i, x in enumerate(lg) if x == t]
                if idx:
                    n = len(lg) - 1 - idx[-1]
                    nl = n if nl is None else min(nl, n)
                idx = [i for i, x in enumerate(vm) if x == t]
                if idx:
                    n = len(vm) - 1 - idx[-1]
                    nv = n if nv is None else min(nv, n)
            parts = []
            if nv is not None:
                nv = min(nv, 63); parts.append(f"vmcnt({nv})"); vm = vm[len(vm) - nv:] if nv else []
            if nl is not None:
                nl = min(nl, 15); parts.append(f"lgkmcnt({nl})"); lg = lg[len(lg) - nl:] if nl else []
            if parts: out.append(I("s_waitcnt " + " ".join(parts), 'wait'))
        if ins.k == 'null': continue
        if ins.k == 'ds':
            lg.append(ins.tag); seen.add(ins.tag)
            assert len(lg) <= 15 or True
        elif ins.k in VM_KINDS:
            vm.append(ins.tag); seen.add(ins.tag)
            assert len(vm) <= 63, "vmcnt overflow"
        out.append(ins)
    return out

def states(ins):
    if ins.k in ('mark', 'label', 'split', 'stub'): return 0
    if ins.k == 'nop': return ins.cost
    return 1

def fix_hazards(prog, verbose=False):
    out = []
    LOOK = 24
    nins = 0
    for ins in prog:
        req = 0
        if ins.k not in ('mark', 'label', 'nop', 'wait', 'barrier', 'split', 'stub'):
            dist = 0
            for p in reversed(out[-LOOK:]):
                need = 0
                isvalu = ins.k in ('valu', 'trans', 'perm')
                pvalu = p.k in ('valu', 'trans', 'perm')
                if pvalu:
                    ov = p.w & ins.r
                    vov = {x for x in ov if x[0] in 'va' and x != 'vcc'}
                    sov = {x for x in ov if x[0] == 's' or x == 'vcc'}
                    if ins.k == 'mfma' and vov: need = max(need, 2)
                    if ins.k == 'perm' and vov: need = max(need, 2)
                    if p.k == 'trans' and isvalu and ins.k != 'trans' and vov: need = max(need, 1)
                    if p.k == 'trans' and ins.k == 'trans' and vov: need = max(need, 1)
                    if isvalu and sov: need = max(need, 2)
                    if ins.k in VM_KINDS and sov: need = max(need, 5)
                    if 'readfirstlane' in ins.t and vov: need = max(need, 1)
                    if ins.k == 'salu' and sov: need = max(need, 1 if 'vcc' in sov else 4)
                if p.k == 'mfma':
                    D = p.w
                    if ins.k == 'mfma':
                        ab, c = ins.tag
                        if D & ab: need = max(need, 8)
                        if D & c and c != D: need = max(need, 6)
                        if D & ins.w and c != D and not (D & c): need = max(need, 6)
                    elif isvalu or ins.k in ('ds',) + VM_KINDS:
                        if D & (ins.r | ins.w): need = max(need, 8)
                        if isvalu and (p.tag[1] & ins.w): need = max(need, 3)
                if p.k == 'salu' and 'm0' in p.w and ins.k == 'dma': need = max(need, 1)
                if p.k == 'vstore' and (isvalu or ins.k in ('ds', 'vload', 'mfma')):
                    data = set(regs(p.t.split()[1].rstrip(',')))
                    if data & ins.w: need = max(need, 2)
                if p.k == 'ds' and p.t.startswith('ds_write') and isvalu:
                    data = set(regs(p.t.split()[2].rstrip(',')))
                    if data & ins.w: need = max(need, 2)
                if need > dist: req = max(req, need - dist)
                dist += states(p)
        if req:
            out.append(nop(req - 1)); nins += 1
            if verbose: print("  nop", req, "before", ins.t)
        out.append(ins)
    return out, nins

def compress(prog, cnt_reg, uid='L'):
    blocks = []; cur = []
    for ins in prog:
        if ins.k == 'mark':
            blocks.append(cur); cur = []
        else: cur.append(ins)
    blocks.append(cur)
    texts = ["\n".join(i.t for i in b) for b in blocks]
    lines = []; i = 0; nl = 0; stub = []
    lab = [0]
    def emit_block(b):
        lab[0] += 1
        for ins in b:
            t = ins.t.replace('{L}', f'{uid}{lab[0]}')
            if ins.k == 'stub': stub.append(t)
            else: lines.append(t)
    n = len(blocks)
    while i < n:
        best = (1, 1)
        for per in range(1, 9):
            reps = 1
            while i + (reps + 1) * per <= n and texts[i + reps * per:i + (reps + 1) * per] == texts[i:i + per]:
                reps += 1
            if reps >= 2 and reps * per > best[0] * best[1] and any(texts[i:i + per]): best = (per, reps)
        per, reps = best
        if reps >= 2:
            nl += 1
            lines.append(f"s_mov_b32 {cnt_reg}, {reps}")
            lines.append(f".p2align 3")
            lines.append(f"{uid}loop{nl}:")
            for b in blocks[i:i + per]: emit_block(b)
            lines.append(f"s_sub_u32 {cnt_reg}, {cnt_reg}, 1")
            lines.append(f"s_cbranch_scc0 {uid}dummy") if False else None
            lines.append(f"s_cmp_lg_u32 {cnt_reg}, 0")
            lines.append(f"s_cbranch_scc1 {uid}loop{nl}")
            i += per * reps
        else:
            emit_block(blocks[i]); i += 1
    return [l for l in lines if l is not None], stub
```

```python
import sys, math, argparse
sys.path.insert(0, 'gen')
from asmlib import *

KN = 'concat_heads__mha_block_cached__gqa_block_cached__near_ridge'
SLOT = 24576; NBUF = 5; XBASE = NBUF * SLOT; XT = 12288
LDS_BYTES = XBASE + 3 * XT
PART_WG = 122880
STAMP_OFF = 256 * PART_WG

sK, sV, sWQ, sWO, sX, sWS = 4, 8, 12, 16, 20, 24
s_rd, s_wr, s_w6144, s_k, s_v, s_wq, s_wo, s_x, s_xrd, s_xwr, s_tmp, s_cnt, s_c = range(28, 41)
s_wqb, s_wql, s_xb, s_xl, s_wob, s_wol, s_pt, s_ptb, s_ptl, s_xw0 = range(41, 51)
s_ret = 52
s_t0 = 54
s_stamp = 64
v_l16 = 0; v_kb, v_vb, v_ob, v_xb = 1, 2, 3, 4
v_wk = 5
v_xw = 9
v_dkv, v_dwq, v_dwx = 10, 13, 16
v_m, v_l = 19, 22
v_t = 25
vP = 40; vS = 52; vXF = 76; vO = 112
vACC = (76, 52)
aQN = 0; aRES = 0; aQ = 144; aF = 216; aE1 = 240; aE0 = 242

def Oreg(dt, qt): return vO + (dt * 3 + qt) * 4
def Sreg(t, qt): return vS + (t * 3 + qt) * 4

class Slot:
    def __init__(self, typ, **kw):
        self.typ = typ; self.__dict__.update(kw)
        self.pre = []
        self.gaps = [[] for _ in range(36)]
        self.mf = []
        self.load = [0] * 36
    def put(self, gap, item):
        if isinstance(item, I): item = [item]
        self.gaps[gap].append(item); self.load[gap] += sum(i.cost for i in item)

def spread(slots_gaps, items, cap=2):
    items = [[x] if isinstance(x, I) else x for x in items]
    tot = sum(sum(i.cost for i in it) for it in items) + sum(s.load[g] for s, g in slots_gaps)
    level = max(cap, math.ceil(tot / len(slots_gaps)))
    while True:
        plan = []; k = 0
        for (s, g) in slots_gaps:
            ld = s.load[g]
            while k < len(items):
                c = sum(i.cost for i in items[k])
                if ld + c > level and not (ld == 0 and c > level): break
                plan.append((s, g, items[k])); ld += c; k += 1
        if k == len(items): break
        level += 1
    for s, g, it in plan: s.put(g, it)

def frag_reads(sl, j):
    d = aF + (j % 6) * 4
    tag = ('f', sl.idx, j)
    if sl.typ == 'K':
        t, ks = divmod(j, 6)
        return [dsread('ds_read_b128', A(d, 4), V(v_wk + (ks & 1)), t * 6144 + (ks >> 1) * 128, tag)]
    if sl.typ in ('V', 'Q'):
        off = (j >> 2) * 128
        return [dsread('ds_read_b64_tr_b16', A(d, 2), V(v_wk + (j & 3)), off, tag),
                dsread('ds_read_b64_tr_b16', A(d + 2, 2), V(v_wk + (j & 3)), off + 6144, tag)]
    if sl.typ == 'P':
        u, nt = divmod(j, 2)
        return [dsread('ds_read_b64_tr_b16', A(d, 2), V(v_wk + nt), u * 4096, tag),
                dsread('ds_read_b64_tr_b16', A(d + 2, 2), V(v_wk + nt), u * 4096 + 2048, tag)]

def addr_setup(sl):
    if sl.typ == 'K':
        return [valu('v_add_u32', V(v_wk), S(s_rd), V(v_kb)), valu('v_xor_b32', V(v_wk + 1), 64, V(v_wk))]
    if sl.typ in ('V', 'Q'):
        r = [valu('v_add_u32', V(v_wk), S(s_rd), V(v_vb))]
        r += [valu('v_xor_b32', V(v_wk + j), j << 5, V(v_wk)) for j in (1, 2, 3)]
        if sl.typ == 'Q':
            if sl.j % 2 == 0: r.append(valu('v_add_u32', V(v_xw), S(s_xrd), V(v_xb)))
            else:
                r.append(valu('v_xor_b32', V(v_xw), 64, V(v_xw)))
                r.append([salu('s_add_u32', S(s_xrd), S(s_xrd), XT), scmp('s_cmp_eq_u32', S(s_xrd), 3 * XT),
                          salu('s_cselect_b32', S(s_xrd), 0, S(s_xrd))])
        return r
    if sl.typ == 'P':
        return [valu('v_add_u32', V(v_wk), S(s_rd), V(v_ob)), valu('v_xor_b32', V(v_wk + 1), 32, V(v_wk))]

def x_reads(sl):
    return [dsread('ds_read_b128', V(vXF + (sl.j % 2) * 12 + qt * 4, 4), V(v_xw), qt * 2048, ('x', sl.idx))
            for qt in range(3)]

def wrapadd(reg, inc, lim, base):
    return [salu('s_add_u32', S(reg), S(reg), inc), scmp('s_cmp_eq_u32', S(reg), S(lim)),
            salu('s_cselect_b32', S(reg), S(base), S(reg))]

def dma_items(sl, first_m0=None):
    tag = ('d', sl.idx)
    extra = []
    if sl.typ == 'K': srd, so, vo, dl = sK, s_k, v_dkv, 3072; upd = [salu('s_add_u32', S(s_k), S(s_k), 12288)]
    elif sl.typ == 'V': srd, so, vo, dl = sV, s_v, v_dkv, 3072; upd = [salu('s_add_u32', S(s_v), S(s_v), 12288)]
    elif sl.typ == 'Q':
        srd, so, vo, dl = sWQ, s_wq, v_dwq, 16 * 12288
        upd = wrapadd(s_wq, 32 * 12288, s_wql, s_wqb)
        if sl.j == 19:
            upd = upd + [salu('s_add_u32', S(r), S(r), 384) for r in (s_wq, s_wqb, s_wql)]
    elif sl.typ == 'P':
        srd, so, vo, dl = sWO, s_wo, v_dwx, 24 * 1280
        if sl.j % 2 == 0: upd = [salu('s_add_u32', S(s_wo), S(s_wo), 2 * 192 * 1280)]
        else:
            upd = wrapadd(s_wo, (128 - 2 * 192 * 1280) & 0xffffffff, s_wol, s_wob)
            if sl.j == 19:
                upd = upd + [salu('s_add_u32', S(r), S(r), 192 * 1280) for r in (s_wo, s_wob, s_wol)]
    srd = S(srd, 4)
    it = []
    it.append([salu('s_add_u32', 'm0', S(s_wr), S(s_w6144)), salu('s_add_u32', S(s_tmp), S(so), dl),
               dma(V(vo), srd, S(so), 0, tag)])
    it.append([dma(V(vo + 1), srd, S(so), 1024, tag)])
    it.append([dma(V(vo + 2), srd, S(so), 2048, tag)])
    it.append([salu('s_add_u32', 'm0', 'm0', 3072)] + upd + [dma(V(vo), srd, S(s_tmp), 0, tag)])
    it.append([dma(V(vo + 1), srd, S(s_tmp), 1024, tag)])
    it.append([dma(V(vo + 2), srd, S(s_tmp), 2048, tag)])
    if sl.typ == 'Q' and sl.j % 2 == 0:
        xt = ('d', sl.idx)
        it.append([salu('s_mov_b32', 'm0', S(s_xwr)), salu('s_add_u32', S(s_xwr), S(s_xwr), XT),
                   dma(V(v_dwx), S(sX, 4), S(s_x), 0, xt)])
        it.append([dma(V(v_dwx + 1), S(sX, 4), S(s_x), 1024, xt)])
        it.append([dma(V(v_dwx + 2), S(sX, 4), S(s_x), 2048, xt)] + wrapadd(s_x, 128, s_xl, s_xb))
        it.append([salu('s_add_u32', S(s_tmp), S(s_xw0), 3 * XT), scmp('s_cmp_eq_u32', S(s_xwr), S(s_tmp)),
                   salu('s_cselect_b32', S(s_xwr), S(s_xw0), S(s_xwr))])
    return it

def ptr_update():
    return [salu('s_mov_b32', S(s_wr), S(s_rd)), salu('s_add_u32', S(s_rd), S(s_rd), SLOT),
            scmp('s_cmp_eq_u32', S(s_rd), NBUF * SLOT), salu('s_cselect_b32', S(s_rd), 0, S(s_rd))]

def build_mfmas(sl):
    mf = []
    for j in range(12):
        a = A(aF + (j % 6) * 4, 4)
        need = []
        if j % 2 == 0: need = [('f', sl.idx, j), ('f', sl.idx, j + 1)]
        if j == 0 and sl.typ == 'Q': need.append(('x', sl.idx))
        for qt in range(3):
            if sl.typ == 'K':
                t, ks = divmod(j, 6)
                d = V(Sreg(t, qt), 4); b = A(aQ + (ks * 3 + qt) * 4, 4); c = 0 if ks == 0 else d
            elif sl.typ == 'V':
                d = V(Oreg(j, qt), 4); b = V(vP + qt * 4, 4); c = 0 if sl.first else d
            elif sl.typ == 'Q':
                d = V(Oreg(j, qt), 4) if sl.accv else A(aQN + (j * 3 + qt) * 4, 4)
                b = V(vXF + (sl.j % 2) * 12 + qt * 4, 4); c = 0 if sl.j == 0 else d
            elif sl.typ == 'P':
                u, nt = divmod(j, 2); hh = sl.j % 2; ch = sl.j // 2
                d = V(vACC[ch % 2] + (nt * 3 + qt) * 4, 4)
                b = V(vO + hh * 72 + (u * 3 + qt) * 4, 4)
                c = 0 if (hh == 0 and u == 0 and sl.rnd == 0) else d
            mf.append(mfma(d, a, b, c, need=need if qt == 0 else ()))
    sl.mf = mf

def xrow(v, tmp, op):
    return [valu('v_mov_b32', V(tmp), V(v)), perm('v_permlane32_swap_b32', V(v), V(tmp)), valu(op, V(v), V(v), V(tmp)),
            valu('v_mov_b32', V(tmp), V(v)), perm('v_permlane16_swap_b32', V(v), V(tmp)), valu(op, V(v), V(v), V(tmp))]

def interleave(*lists):
    out = []
    for k in range(max(len(l) for l in lists)):
        for l in lists:
            if k < len(l): out.append(l[k])
    return out

def softmax_init():
    ch = []
    for qt in range(3):
        vals = [Sreg(t, qt) + r for t in range(2) for r in range(4)]
        x = v_m + qt
        c = [valu('v_max3_f32', V(x), V(vals[0]), V(vals[1]), V(vals[2])),
             valu('v_max3_f32', V(x), V(x), V(vals[3]), V(vals[4])),
             valu('v_max3_f32', V(x), V(x), V(vals[5]), V(vals[6])),
             valu('v_max_f32', V(x), V(x), V(vals[7]))]
        c += xrow(x, v_t + qt, 'v_max_f32')
        c += [valu('v_mul_f32', V(x), S(s_c), V(x)), valu('v_mov_b32', V(v_l + qt), 0)]
        ch.append(c)
    return interleave(*ch)

def sm_fma(t):
    return [valu('v_fma_f32', V(Sreg(t, qt) + r), V(Sreg(t, qt) + r), S(s_c), '-' + V(v_m + qt))
            for r in range(4) for qt in range(3)]
def sm_max(t):
    vals = [vS + t * 12 + i for i in range(12)]
    x = v_t + 3
    if t == 0:
        o = [valu('v_max3_f32', V(x), V(vals[0]), V(vals[1]), V(vals[2]))]
        rest = vals[3:]
        for i in range(0, 8, 2): o.append(valu('v_max3_f32', V(x), V(x), V(rest[i]), V(rest[i + 1])))
        o.append(valu('v_max_f32', V(x), V(x), V(rest[8])))
        return o
    return [valu('v_max3_f32', V(x), V(x), V(vals[i]), V(vals[i + 1])) for i in range(0, 12, 2)]
def sm_check():
    return [[vcmp('v_cmp_lt_f32', 0x41000000, V(v_t + 3)),
             raw('s_cbranch_vccnz {L}_r', 'branch', ['vcc']), raw('{L}_b:', 'label'),
             raw('{L}_r:\ns_call_b64 s[%d:%d], L_rare\ns_branch {L}_b' % (s_ret, s_ret + 1), 'stub')]]
def sm_exp():
    o = []
    order = [(t, r) for t in range(2) for r in range(4)]
    for k, (t, r) in enumerate(order):
        for qt in range(3): o.append(valu('v_exp_f32', V(Sreg(t, qt) + r), V(Sreg(t, qt) + r)))
        if k >= 1:
            pt, pr = order[k - 1]
            for qt in range(3): o.append(valu('v_add_f32', V(v_l + qt), V(v_l + qt), V(Sreg(pt, qt) + pr)))
            if pr % 2 == 1:
                for qt in range(3):
                    o.append(valu('v_cvt_pk_bf16_f32', V(vP + qt * 4 + pt * 2 + pr // 2), V(Sreg(pt, qt) + pr - 1), V(Sreg(pt, qt) + pr)))
    for qt in range(3): o.append(valu('v_cvt_pk_bf16_f32', V(vP + qt * 4 + 3), V(Sreg(1, qt) + 2), V(Sreg(1, qt) + 3)))
    for qt in range(3): o.append(valu('v_add_f32', V(v_l + qt), V(v_l + qt), V(Sreg(1, qt) + 3)))
    return o

def rare_path():
    ch = []
    for qt in range(3):
        vals = [Sreg(t, qt) + r for t in range(2) for r in range(4)]
        x = v_t + 4 + qt; f = v_t + 7 + qt
        c = [valu('v_max3_f32', V(x), V(vals[0]), V(vals[1]), V(vals[2])),
             valu('v_max3_f32', V(x), V(x), V(vals[3]), V(vals[4])),
             valu('v_max3_f32', V(x), V(x), V(vals[5]), V(vals[6])),
             valu('v_max_f32', V(x), V(x), V(vals[7]))]
        c += xrow(x, v_t + qt, 'v_max_f32')
        c += [valu('v_max_f32', V(x), 0, V(x)), valu('v_add_f32', V(v_m + qt), V(v_m + qt), V(x)),
              valu('v_sub_f32', V(f), 0, V(x)), valu('v_exp_f32', V(f), V(f))]
        c += [valu('v_sub_f32', V(s), V(s), V(x)) for s in vals]
        c += [valu('v_mul_f32', V(v_l + qt), V(v_l + qt), V(f))]
        c += [valu('v_mul_f32', V(Oreg(dt, qt) + r), V(Oreg(dt, qt) + r), V(f)) for dt in range(12) for r in range(4)]
        ch.append(c)
    p = [nop(7)] + interleave(*ch) + [nop(3)]
    p, _ = fix_hazards(p)
    return ["L_rare:"] + [i.t for i in p] + [f"s_setpc_b64 s[{s_ret}:{s_ret+1}]"]

def q_convert(accv):
    out = []
    for u in range(6):
        T = [v_t + 0, v_t + 4, v_t + 8]
        cv = []; rd = []
        for qt in range(3):
            for h in range(2):
                for k in range(2):
                    if accv:
                        s0 = Oreg(2 * u + h, qt) + 2 * k
                    else:
                        s0 = vS + (qt * 4 + h * 2 + k) * 2
                        a0 = aQN + ((2 * u + h) * 3 + qt) * 4 + 2 * k
                        rd += [valu('v_accvgpr_read_b32', V(s0), A(a0)), valu('v_accvgpr_read_b32', V(s0 + 1), A(a0 + 1))]
                    cv.append(valu('v_cvt_pk_bf16_f32', V(T[qt] + h * 2 + k), V(s0), V(s0 + 1)))
        out += rd + cv
        for op in ('v_permlane32_swap_b32', 'v_permlane16_swap_b32'):
            for qt in range(3):
                for k in range(2): out.append(perm(op, V(T[qt] + k), V(T[qt] + 2 + k)))
        for qt in range(3):
            for k in range(4): out.append(valu('v_accvgpr_write_b32', A(aQ + (u * 3 + qt) * 4 + k), V(T[qt] + k)))
    return out

def epilogue(eid):
    out = interleave(*[xrow(v_l + qt, v_t + qt, 'v_add_f32') + [valu('v_rcp_f32', V(v_t + 4 + 2 * qt), V(v_l + qt)),
                       valu('v_mov_b32', V(v_t + 5 + 2 * qt), V(v_t + 4 + 2 * qt))] for qt in range(3)])
    return out

def epilogue2(eid):
    RL = 30
    out = interleave(*[xrow(v_l + qt, v_t + qt, 'v_add_f32') + [valu('v_rcp_f32', V(RL + 2 * qt), V(v_l + qt)),
                       valu('v_mov_b32', V(RL + 1 + 2 * qt), V(RL + 2 * qt))] for qt in range(3)])
    vw, vr = 36, 37
    out.append(valu('v_add_u32', V(vw), S(s_t0), V(v_l16)))
    out.append(valu('v_add_u32', V(vr), S(s_t0 + 1), V(v_l16)))
    def pack(u):
        o = []
        for qt in range(3):
            for h in range(2):
                s = Oreg(2 * u + h, qt)
                o.append(valu('v_pk_mul_f32', V(s, 2), V(s, 2), V(RL + 2 * qt, 2)))
                o.append(valu('v_pk_mul_f32', V(s + 2, 2), V(s + 2, 2), V(RL + 2 * qt, 2)))
        for qt in range(3):
            for h in range(2):
                s = Oreg(2 * u + h, qt)
                for k in range(2):
                    o.append(valu('v_cvt_pk_bf16_f32', V(vO + (u * 3 + qt) * 4 + h * 2 + k), V(s + 2 * k), V(s + 2 * k + 1)))
        return o
    def wr(u, half):
        return [dswrite('ds_write_b128', V(vw), V(vO + (u * 3 + qt) * 4, 4), ((u - 3 * half) * 3 + qt) * 1024, ('ew', eid, half))
                for qt in range(3)]
    def rdd(half):
        o = []
        for hh in range(2):
            for f in range(9):
                o.append(dsread('ds_read_b128', V(vO + hh * 72 + (half * 9 + f) * 4, 4), V(vr), hh * 2 * 9216 + f * 1024, ('er', eid, half)))
        return o
    for u in range(3): out += pack(u) + wr(u, 0)
    for u in range(3, 6): out += pack(u)
    out.append(barrier(need=[('ew', eid, 0)]))
    out += rdd(0)
    out.append(barrier(need=[('er', eid, 0)]))
    for u in range(3, 6): out += wr(u, 1)
    out.append(barrier(need=[('ew', eid, 1)]))
    out += rdd(1)
    out.append(waitfor([('er', eid, 1)]))
    return out

def chunk_end(ch, rnd, store_flags):
    acc = vACC[ch % 2]
    o = []
    for qt in range(3):
        for nt in range(2):
            for k in range(2):
                s = acc + (nt * 3 + qt) * 4 + 2 * k
                o.append(valu('v_cvt_pk_bf16_f32', V(vP + qt * 4 + nt * 2 + k), V(s), V(s + 1)))
        if rnd == 1:
            o.append(bstore(V(vP + qt * 4, 4), V(v_l16), S(sWS, 4), S(s_pt), qt * 1024, ('st', ch), store_flags))
    if rnd == 0:
        o += [valu('v_accvgpr_write_b32', A(aRES + ch * 12 + i), V(vP + i)) for i in range(12)]
    else:
        o.append(wrapadd(s_pt, 12288, s_ptl, s_ptb))
    return o

def chunk_init(ch):
    acc = vACC[ch % 2]
    return [mfma(V(acc + (nt * 3 + qt) * 4, 4), A(aE1 if nt else aE0, 4), A(aRES + ch * 12 + qt * 4, 4), 0)
            for nt in range(2) for qt in range(3)]

def stamp(n):
    return [raw(f"s_memtime s[{s_stamp+2*n}:{s_stamp+2*n+1}]", 'smem')]

def prologue():
    P = []
    a = P.append
    T = s_t0
    a(raw("s_cmp_ge_u32 s2, 256")); a(raw("s_cbranch_scc1 L_end"))
    a(salu('s_and_b32', S(T), 's2', 7)); a(salu('s_lshr_b32', S(T + 1), 's2', 3))
    a(salu('s_lshr_b32', S(T + 2), S(T), 2))
    a(salu('s_and_b32', S(T), S(T), 3)); a(salu('s_lshl_b32', S(T), S(T), 1))
    a(salu('s_and_b32', S(T + 3), S(T + 1), 1)); a(salu('s_or_b32', S(T), S(T), S(T + 3)))
    a(salu('s_lshr_b32', S(T + 1), S(T + 1), 1))
    a(salu('s_mul_i32', S(T + 2), S(T + 2), 40))
    a(salu('s_add_u32', S(T + 4), 's0', S(T + 2))); a(salu('s_addc_u32', S(T + 5), 's1', 0))
    a(raw(f"s_load_dwordx8 s[68:75], s[{T+4}:{T+5}], 0", 'smem'))
    a(raw(f"s_load_dwordx2 s[76:77], s[{T+4}:{T+5}], 32", 'smem'))
    a(raw("s_load_dwordx2 s[78:79], s[0:1], 96", 'smem'))
    a(valu('v_lshrrev_b32', V(v_t), 6, 'v0'))
    a(nop(0))
    a(raw(f"v_readfirstlane_b32 s{T+6}, v{v_t}", 'valu', [f'v{v_t}'], [f's{T+6}']))
    lane, n16, g, tmp, tmp2, row, sw = range(v_t, v_t + 7)
    a(valu('v_and_b32', V(lane), 63, 'v0'))
    a(valu('v_and_b32', V(n16), 15, V(lane))); a(valu('v_lshrrev_b32', V(g), 4, V(lane)))
    a(valu('v_lshlrev_b32', V(v_l16), 4, V(lane)))
    W = T + 6; Pp = T + 7; QH = T + 8
    a(salu('s_lshr_b32', S(Pp), S(W), 1)); a(salu('s_and_b32', S(QH), S(W), 1))
    a(salu('s_mul_i32', S(s_w6144), S(W), 6144))
    def swz(dst, r):
        a(valu('v_and_b32', V(dst), 6, V(r)))
    swz(sw, n16)
    a(valu('v_xor_b32', V(tmp), V(g), V(sw))); a(valu('v_lshlrev_b32', V(tmp), 4, V(tmp)))
    a(valu('v_mul_u32_u24', V(tmp2), 384, V(n16))); a(valu('v_add_u32', V(v_kb), V(tmp), V(tmp2)))
    a(salu('s_mul_i32', S(T + 9), S(Pp), 12288))
    a(valu('v_add_u32', V(v_kb), S(T + 9), V(v_kb)))
    a(valu('v_lshlrev_b32', V(tmp2), 7, V(n16))); a(valu('v_add_u32', V(v_xb), V(tmp), V(tmp2)))
    a(salu('s_mul_i32', S(s_tmp), S(QH), 6144)); a(salu('s_add_u32', S(s_tmp), S(s_tmp), XBASE))
    a(valu('v_add_u32', V(v_xb), S(s_tmp), V(v_xb)))
    a(valu('v_lshrrev_b32', V(row), 2, V(lane)))
    swz(sw, row)
    a(valu('v_bfe_u32', V(tmp), V(lane), 1, 1))
    a(valu('v_xor_b32', V(tmp), V(tmp), V(sw))); a(valu('v_lshlrev_b32', V(tmp), 4, V(tmp)))
    a(valu('v_and_b32', V(tmp2), 1, V(lane))); a(valu('v_lshl_add_u32', V(tmp), V(tmp2), 3, V(tmp)))
    a(valu('v_mul_u32_u24', V(tmp2), 384, V(row))); a(valu('v_add_u32', V(v_vb), V(tmp), V(tmp2)))
    a(valu('v_add_u32', V(v_vb), S(T + 9), V(v_vb)))
    a(valu('v_lshl_add_u32', V(v_ob), V(row), 7, V(tmp)))
    a(salu('s_lshl_b32', S(s_tmp), S(Pp), 6))
    a(valu('v_xor_b32', V(v_ob), S(s_tmp), V(v_ob)))
    a(salu('s_mov_b32', S(s_tmp), 0xAAAAAAB))
    for j in range(3):
        a(valu('v_add_u32', V(tmp), 64 * j, V(lane)))
        a(valu('v_mul_hi_u32', V(row), V(tmp), S(s_tmp)))
        swz(sw, row)
        a(valu('v_lshlrev_b32', V(sw), 4, V(sw)))
        a(valu('v_xor_b32', V(v_dkv + j), V(v_l16), V(sw)))
        a(valu('v_mul_u32_u24', V(tmp2), 24, V(row))); a(valu('v_sub_u32', V(tmp), V(tmp), V(tmp2)))
        a(valu('v_lshlrev_b32', V(tmp), 4, V(tmp))); a(valu('v_xor_b32', V(tmp), V(tmp), V(sw)))
        a(valu('v_lshrrev_b32', V(tmp2), 2, V(row))); a(valu('v_lshl_add_u32', V(row), V(tmp2), 2, V(row)))
        a(valu('v_mul_u32_u24', V(row), 12288, V(row)))
        a(valu('v_add_u32', V(tmp), V(tmp), V(row)))
        a(valu('v_subrev_u32', V(v_dwq + j), 1024 * j, V(tmp)))
    a(valu('v_lshrrev_b32', V(row), 3, V(lane)))
    swz(sw, row)
    a(valu('v_and_b32', V(tmp), 7, V(lane))); a(valu('v_xor_b32', V(tmp), V(tmp), V(sw)))
    a(valu('v_lshlrev_b32', V(tmp), 4, V(tmp)))
    a(valu('v_mul_u32_u24', V(row), 1280, V(row)))
    a(valu('v_add_u32', V(v_dwx), V(tmp), V(row)))
    a(valu('v_add_u32', V(v_dwx + 1), 8 * 1280 - 1024, V(v_dwx)))
    a(valu('v_add_u32', V(v_dwx + 2), 2 * (8 * 1280 - 1024), V(v_dwx)))
    HQ = T; B = T + 1
    a(salu('s_lshl_b32', S(T + 3), S(HQ), 2)); a(salu('s_lshl_b32', S(T + 9), S(Pp), 1))
    a(salu('s_add_u32', S(T + 9), S(T + 9), S(T + 3)))
    a(salu('s_lshl_b32', S(s_k), S(B), 5)); a(salu('s_add_u32', S(s_k), S(s_k), S(T + 9)))
    a(salu('s_mul_i32', S(s_k), S(s_k), 196608))
    a(salu('s_mul_i32', S(s_tmp), S(QH), 6144)); a(salu('s_add_u32', S(s_k), S(s_k), S(s_tmp)))
    a(salu('s_mov_b32', S(s_v), S(s_k)))
    ROT = T + 2
    a(salu('s_mul_i32', S(ROT), S(B), 5)); a(salu('s_lshr_b32', S(ROT), S(ROT), 3))
    a(salu('s_mul_i32', S(s_wqb), S(T + 9), 384)); a(salu('s_mul_i32', S(s_tmp), S(QH), 4 * 12288))
    a(salu('s_add_u32', S(s_wqb), S(s_wqb), S(s_tmp)))
    a(salu('s_add_u32', S(s_wql), S(s_wqb), 640 * 12288))
    a(salu('s_mul_i32', S(s_tmp), S(ROT), 64 * 12288)); a(salu('s_add_u32', S(s_wq), S(s_wqb), S(s_tmp)))
    a(salu('s_mul_i32', S(s_xb), S(B), 96)); a(salu('s_mul_i32', S(s_tmp), S(W), 24))
    a(salu('s_add_u32', S(s_xb), S(s_xb), S(s_tmp))); a(salu('s_mul_i32', S(s_xb), S(s_xb), 1280))
    a(salu('s_add_u32', S(s_xl), S(s_xb), 1280))
    a(salu('s_lshl_b32', S(s_tmp), S(ROT), 7)); a(salu('s_add_u32', S(s_x), S(s_xb), S(s_tmp)))
    a(salu('s_mul_i32', S(s_wob), S(T + 3), 192)); a(salu('s_mul_i32', S(s_wol), S(W), 48))
    a(salu('s_add_u32', S(s_wob), S(s_wob), S(s_wol))); a(salu('s_mul_i32', S(s_wob), S(s_wob), 1280))
    a(salu('s_add_u32', S(s_wol), S(s_wob), 1280))
    a(salu('s_add_u32', S(s_wo), S(s_wob), S(s_tmp)))
    a(salu('s_mul_i32', S(s_ptb), 's2', PART_WG)); a(salu('s_mul_i32', S(s_tmp), S(W), 3072))
    a(salu('s_add_u32', S(s_ptb), S(s_ptb), S(s_tmp))); a(salu('s_add_u32', S(s_ptl), S(s_ptb), PART_WG))
    a(salu('s_add_u32', S(s_xw0), S(s_tmp), XBASE)); a(salu('s_mov_b32', S(s_xwr), S(s_xw0)))
    a(salu('s_mul_i32', S(s_tmp), S(ROT), 12288)); a(salu('s_add_u32', S(s_pt), S(s_ptb), S(s_tmp)))
    a(salu('s_mov_b32', S(s_xrd), 0))
    c = (192 ** -0.5) * math.log2(math.e)
    import struct
    a(salu('s_mov_b32', S(s_c), struct.unpack('<I', struct.pack('<f', c))[0]))
    a(valu('v_lshrrev_b32', V(tmp), 2, V(n16)))
    a(vcmp('v_cmp_eq_u32', V(tmp), V(g)))
    a(valu('v_and_b32', V(tmp2), 1, V(n16))); a(valu('v_lshlrev_b32', V(tmp2), 4, V(tmp2)))
    a(salu('s_mov_b32', S(s_tmp), 0x3F80))
    a(valu('v_lshlrev_b32', V(tmp2), V(tmp2), S(s_tmp)))
    a(valu('v_cndmask_b32', V(tmp2), 0, V(tmp2)))
    a(valu('v_and_b32', V(tmp), 2, V(n16)))
    a(vcmp('v_cmp_eq_u32', 0, V(tmp)))
    a(nop(1))
    a(valu('v_cndmask_b32', V(row), 0, V(tmp2)))
    a(valu('v_sub_u32', V(sw), V(tmp2), V(row)))
    for r in (240, 241, 244, 245): a(valu('v_accvgpr_write_b32', A(r), 0))
    a(valu('v_accvgpr_write_b32', A(242), V(row))); a(valu('v_accvgpr_write_b32', A(243), V(sw)))
    a(salu('s_mul_i32', S(s_tmp), S(W), 9216)); a(salu('s_mul_i32', S(T + 1), S(QH), 9216))
    a(salu('s_add_u32', S(T), S(s_tmp), XBASE)); a(salu('s_add_u32', S(T + 1), S(T + 1), XBASE))
    a(raw("s_waitcnt lgkmcnt(0)", 'wait'))
    for srd, p, n in ((sX, 68, 1966080), (sK, 70, 100663296), (sV, 72, 100663296), (sWQ, 74, 7864320),
                      (sWO, 76, 7864320), (sWS, 78, 438042624)):
        a(salu('s_mov_b32', S(srd), S(p))); a(salu('s_mov_b32', S(srd + 1), S(p + 1)))
        a(salu('s_mov_b32', S(srd + 2), n)); a(salu('s_mov_b32', S(srd + 3), 0x20000))
    return P

def make_seq(kind):
    seq = []
    def Q(r, js, accv): return [Slot('Q', j=j, rnd=r, accv=accv) for j in js]
    def KV(r, i): return [Slot('K', i=i, rnd=r, first=(i == 0)), Slot('V', i=i, rnd=r, first=(i == 0))]
    def Pp(r): return [Slot('P', j=j, rnd=r) for j in range(20)]
    if kind == 'plain':
        for r in range(2):
            seq += Q(r, range(20), True)
            for i in range(16): seq += KV(r, i)
            seq += Pp(r)
    elif kind == 'aq':
        seq += Q(0, range(20), True)
        q1 = Q(1, range(20), False)
        for i in range(16):
            k, v = KV(0, i)
            if 3 <= i < 13: seq += [k, q1[2 * (i - 3)], q1[2 * (i - 3) + 1], v]
            else: seq += [k, v]
        seq += Pp(0)
        for i in range(16): seq += KV(1, i)
        seq += Pp(1)
    for n, s in enumerate(seq): s.idx = n
    return seq

def build_main(kind, stamps, store_flags):
    seq = make_seq(kind)
    N = len(seq)
    for s in seq: build_mfmas(s)
    head = []
    head.append(salu('s_mov_b32', S(s_wr), 0))
    for n in range(4):
        for it in dma_items(seq[n]): head += it
        head.append(salu('s_add_u32', S(s_wr), S(s_wr), SLOT))
    head.append(salu('s_mov_b32', S(s_rd), 0))
    for it in addr_setup(seq[0]): head += it if isinstance(it, list) else [it]
    head.append(barrier(need=[('d', 0)]))
    if seq[0].typ == 'Q': head += x_reads(seq[0])
    for j in range(5): head += frag_reads(seq[0], j)
    nstamp = 0
    if stamps: head = stamp(0) + head + stamp(1); nstamp = 2
    post = []
    for n, s in enumerate(seq):
        nx = seq[n + 1] if n + 1 < N else None
        pv = seq[n - 1] if n else None
        for j in range(5, 12):
            rr = frag_reads(s, j)
            g0 = 3 * (j - 5)
            for k, r in enumerate(rr): s.put(g0 + k, r)
        if n + 4 < N:
            its = dma_items(seq[n + 4])
            pos = [2, 5, 8, 11, 14, 17, 20, 21, 22, 23]
            s.dma = its
            early = (s.typ == 'V' and pv.typ == 'K')
            if not early:
                for k, it in enumerate(its): s.put(pos[k], it)
        else: s.dma = []; early = False
        s.early = early
        if nx is not None:
            s.put(22, ptr_update())
            su = addr_setup(nx)
            for k, it in enumerate(su): s.put(23 + min(k // 2, 2), it)
            own = [('f', s.idx, 11)]
            s.put(26, barrier(need=own + [('d', nx.idx)]))
            xr = x_reads(nx) if nx.typ == 'Q' else []
            for j, gp in zip(range(5), (27, 28, 29, 31, 33)):
                rr = frag_reads(nx, j)
                if j < len(xr): s.put(gp, xr[j])
                for k, r in enumerate(rr): s.put(gp + (k if j >= 3 else 0), r)
    for n, s in enumerate(seq):
        nx = seq[n + 1] if n + 1 < N else None
        if s.typ == 'K':
            ws = []
            k = n + 1
            while seq[k].typ != 'V': ws.append(seq[k]); k += 1
            vs = seq[k]
            if s.first:
                rest = softmax_init() + sm_fma(0) + sm_fma(1) + sm_exp()
            else:
                spread([(s, g) for g in range(21, 36)], sm_fma(0) + sm_max(0))
                rest = sm_fma(1) + sm_max(1) + sm_check() + sm_exp()
            if ws:
                gl = [(w, g) for w in ws for g in range(36)][3:-2]
                spread(gl, rest)
            else:
                if vs.early:
                    step = max(1, len(rest) // (len(vs.dma) + 1))
                    o = []; d = list(vs.dma)
                    for k2, it in enumerate(rest):
                        o.append(it)
                        if k2 % step == step - 1 and d: o.append(d.pop(0))
                    o += d
                    rest = o
                vs.pre += rest
        if s.typ == 'Q' and s.j == 19 and s.accv:
            nx.pre = q_convert(True) + nx.pre
            if stamps: nx.pre = nx.pre + stamp(nstamp); nstamp += 1
        if s.typ == 'V' and s.i == 15:
            pre = []
            if stamps: pre += stamp(nstamp); nstamp += 1
            if kind == 'aq' and s.rnd == 0: pre += q_convert(False)
            pre += epilogue2(s.rnd)
            if stamps: pre += stamp(nstamp); nstamp += 1
            nx.pre = pre + nx.pre
        if s.typ == 'P':
            if s.j % 2 == 0 and s.rnd == 1: s.pre += chunk_init(s.j // 2)
            if s.j % 2 == 1:
                ce = chunk_end(s.j // 2, s.rnd, store_flags)
                if s.j == 19:
                    if stamps: ce = ce + stamp(nstamp); nstamp += 1
                    if nx is None: post += ce
                    else: nx.pre = ce + nx.pre
                else: spread([(nx, g) for g in range(3, 26)], ce)
    prog = list(head)
    def flat(items):
        o = []
        for it in items: o += it if isinstance(it, list) else [it]
        return o
    for s in seq:
        prog.append(mark('m'))
        prog += flat(s.pre)
        for k in range(36):
            prog.append(s.mf[k]); prog += flat(s.gaps[k])
    prog.append(mark('m'))
    prog += flat(post)
    return prog, nstamp

def stamp_out(nstamp):
    o = ["s_waitcnt vmcnt(0) lgkmcnt(0)"]
    o.append(f"s_memtime s[{s_stamp+2*nstamp}:{s_stamp+2*nstamp+1}]")
    o.append("s_waitcnt lgkmcnt(0)")
    o.append(f"s_lshl_b32 s{s_tmp}, s2, 8")
    o.append(f"s_lshr_b32 s{s_cnt}, s{s_w6144}, 11")
    o.append(f"s_mul_i32 s{s_cnt}, s{s_cnt}, 21")
    o.append(f"s_mul_hi_u32 s{s_cnt}, s{s_w6144}, 0xAAAAB")
    o.append(f"s_lshl_b32 s{s_cnt}, s{s_cnt}, 6")
    o.append(f"s_add_u32 s{s_tmp}, s{s_tmp}, s{s_cnt}")
    o.append(f"s_add_u32 s{s_tmp}, s{s_tmp}, {STAMP_OFF}")
    o.append("v_mov_b32 v1, 0")
    for n in range(nstamp + 1):
        o.append(f"s_sub_u32 s{s_cnt}, s{s_stamp+2*n}, s{s_stamp}")
        o.append(f"v_mov_b32 v2, s{s_cnt}")
        o.append(f"buffer_store_dword v2, v1, s[{sWS}:{sWS+3}], s{s_tmp} offen offset:{4*n}")
    return o

def reduce_kernel():
    L = []; a = L.append
    a("s_cmp_ge_u32 s2, 960"); a("s_cbranch_scc1 R_end")
    a("s_load_dwordx2 s[4:5], s[0:1], 96"); a("s_load_dwordx2 s[6:7], s[0:1], 80")
    a("v_lshrrev_b32 v1, 6, v0"); a("s_nop 0"); a("v_readfirstlane_b32 s3, v1")
    a("v_and_b32 v0, 63, v0")
    a("s_nop 2")
    a("s_lshl_b32 s16, s2, 2"); a("s_add_u32 s16, s16, s3")
    a("s_mul_hi_u32 s17, s16, 0x2222223")
    a("s_mul_i32 s18, s17, 120"); a("s_sub_u32 s18, s16, s18")
    a("s_lshr_b32 s19, s17, 4"); a("s_and_b32 s20, s17, 15")
    a("s_lshl_b32 s21, s20, 4"); a("s_lshl_b32 s22, s19, 2"); a("s_add_u32 s21, s21, s22")
    a(f"s_mul_i32 s21, s21, {PART_WG}"); a("s_lshl_b32 s22, s18, 10"); a("s_add_u32 s21, s21, s22")
    a("v_lshlrev_b32 v1, 4, v0")
    a("s_waitcnt lgkmcnt(0)")
    a("s_mov_b32 s8, s4"); a("s_mov_b32 s9, s5"); a("s_mov_b32 s10, 438042624"); a("s_mov_b32 s11, 0x20000")
    a("s_mov_b32 s12, s6"); a("s_mov_b32 s13, s7"); a("s_mov_b32 s14, 3932160"); a("s_mov_b32 s15, 0x20000")
    for hq in range(8):
        off = (((hq & 1) << 3) | (hq >> 1)) * PART_WG
        a(f"s_add_u32 s23, s21, {off}")
        a(f"buffer_load_dwordx4 v[{8+4*hq}:{11+4*hq}], v1, s[8:11], s23 offen")
    a("s_mul_hi_u32 s24, s18, 0x15555556")
    a("s_mul_i32 s25, s24, 12"); a("s_sub_u32 s25, s18, s25")
    a("s_mul_hi_u32 s26, s25, 0x55555556")
    a("s_mul_i32 s27, s26, 3"); a("s_sub_u32 s27, s25, s27")
    a("s_and_b32 s28, s26, 1"); a("s_mul_i32 s28, s28, 48"); a("s_lshl_b32 s27, s27, 4"); a("s_add_u32 s28, s28, s27")
    a("s_mul_i32 s29, s20, 96"); a("s_add_u32 s28, s28, s29")
    a("s_mul_i32 s28, s28, 2560")
    a("s_mul_i32 s29, s19, 1280"); a("s_add_u32 s28, s28, s29")
    a("s_lshl_b32 s29, s24, 7"); a("s_add_u32 s28, s28, s29")
    a("s_lshr_b32 s29, s26, 1"); a("s_lshl_b32 s29, s29, 6"); a("s_add_u32 s28, s28, s29")
    a("v_and_b32 v2, 15, v0"); a("v_mul_u32_u24 v2, 2560, v2")
    a("v_lshrrev_b32 v3, 4, v0"); a("v_lshl_add_u32 v2, v3, 4, v2")
    for hq in range(8):
        a(f"s_waitcnt vmcnt({7-hq})")
        for k in range(4):
            r = 8 + 4 * hq + k
            if hq == 0:
                a(f"v_lshlrev_b32 v{40+k}, 16, v{r}"); a(f"v_and_b32 v{44+k}, 0xffff0000, v{r}")
            else:
                a(f"v_lshlrev_b32 v4, 16, v{r}"); a(f"v_and_b32 v5, 0xffff0000, v{r}")
                a(f"v_add_f32 v{40+k}, v{40+k}, v4"); a(f"v_add_f32 v{44+k}, v{44+k}, v5")
    for k in range(4): a(f"v_cvt_pk_bf16_f32 v{48+k}, v{40+k}, v{44+k}")
    a("s_nop 1")
    a("v_permlane32_swap_b32 v48, v50"); a("v_permlane32_swap_b32 v49, v51")
    a("s_nop 1")
    a("v_permlane16_swap_b32 v48, v50"); a("v_permlane16_swap_b32 v49, v51")
    a("s_nop 1")
    a("buffer_store_dwordx4 v[48:51], v2, s[12:15], s28 offen")
    a("R_end:")
    a("s_endpgm")
    return L

DESC = """.section .rodata,"a"
.p2align 6
.amdhsa_kernel {name}
  .amdhsa_next_free_vgpr {nv}
  .amdhsa_next_free_sgpr {ns}
  .amdhsa_accum_offset {acc}
  .amdhsa_group_segment_fixed_size 0
  .amdhsa_kernarg_size 104
  .amdhsa_user_sgpr_count 2
  .amdhsa_user_sgpr_kernarg_segment_ptr 1
  .amdhsa_system_sgpr_workgroup_id_x 1
.end_amdhsa_kernel
"""

def main():
    ap = argparse.ArgumentParser()
    ap.add_argument('-o', default=f'cdna_kernels/{KN}.s')
    ap.add_argument('--kind', default='plain')
    ap.add_argument('--stamps', action='store_true')
    ap.add_argument('--st', default='')
    ap.add_argument('-v', action='store_true')
    a = ap.parse_args()
    pro, _ = fix_hazards(prologue())
    body, nstamp = build_main(a.kind, a.stamps, (' ' + a.st) if a.st else '')
    body = insert_waits(body)
    body, nn = fix_hazards(body, a.v)
    lines, stubs = compress(body, S(s_cnt))
    hdr = open(f'cdna_kernels/{KN}.s.ref').read().split('\n')
    hdr = [l for l in hdr if l.startswith(';') and '@launch' not in l and 'Override launch' not in l and 'grid=ceil' not in l]
    out = hdr + [f"; @launch kernel={KN}_kernel grid=(256,1,1) block=(256,1,1) lds={LDS_BYTES}",
                 "; @launch kernel=reduce_kernel grid=(960,1,1) block=(256,1,1) lds=0",
                 '.amdgcn_target "amdgcn-amd-amdhsa--gfx950"', '.text',
                 f'.globl {KN}_kernel', '.p2align 8', f'.type {KN}_kernel,@function', f'{KN}_kernel:']
    out += [i.t for i in pro] + lines
    if a.stamps: out += stamp_out(nstamp)
    out += ["L_end:", "s_endpgm"] + stubs + rare_path()
    out += ['.globl reduce_kernel', '.p2align 8', '.type reduce_kernel,@function', 'reduce_kernel:'] + reduce_kernel()
    out.append(DESC.format(name=KN + '_kernel', nv=512, ns=102, acc=256))
    out.append(DESC.format(name='reduce_kernel', nv=56, ns=40, acc=56))
    open(a.o, 'w').write("\n".join(out) + "\n")
    print(f"wrote {a.o}: {len(out)} lines, {nn} hazard nops, stamps {nstamp}")

if __name__ == '__main__':
    main()
```

```python
import sys, math, argparse
sys.path.insert(0, 'gen')
from asmlib import *

KN = 'concat_heads__mha_block_cached__gqa_block_cached__near_ridge'
SLOT = 24576; NBUF = 4; XBASE = NBUF * SLOT; XT = 12288; NX = 4
LEAD = NBUF - 1
LDS_BYTES = XBASE + NX * XT
PART_WG = 122880
STAMP_OFF = 256 * PART_WG

sK, sV, sWQ, sWO, sX, sWS = 4, 8, 12, 16, 20, 24
s_rd, s_wr, s_w6144, s_k, s_v, s_wq, s_wo, s_x, s_xrd, s_xwr, s_tmp, s_cnt, s_c = range(28, 41)
s_wqb, s_wql, s_xb, s_xl, s_wob, s_wol, s_pt, s_ptb, s_ptl, s_xw0 = range(41, 51)
s_8k = 51; s_xwl = 3
s_ret = 52
s_t0 = 54
s_stamp = 64
v_l16 = 0; v_kb, v_vb, v_ob, v_xb = 1, 2, 3, 4
v_wk = 5
v_xw = 9
v_dkv, v_dwq, v_dwx = 10, 13, 16
v_m, v_l = 19, 22
v_t = 25
vP = 40; vS = 52; vXF = 76; vO = 112
vACC = (76, 52)
aQN = 0; aRES = 0; aQ = 144; aF = 216; aE1 = 240; aE0 = 242

def Oreg(dt, qt): return vO + (dt * 3 + qt) * 4
def Sreg(t, qt): return vS + (t * 3 + qt) * 4

class Slot:
    def __init__(self, typ, **kw):
        self.typ = typ; self.__dict__.update(kw)
        self.pre = []
        self.gaps = [[] for _ in range(36)]
        self.mf = []
        self.load = [0] * 36
    def put(self, gap, item):
        if isinstance(item, I): item = [item]
        self.gaps[gap].append(item); self.load[gap] += sum(i.cost for i in item)

def spread(slots_gaps, items, cap=2):
    items = [[x] if isinstance(x, I) else x for x in items]
    tot = sum(sum(i.cost for i in it) for it in items) + sum(s.load[g] for s, g in slots_gaps)
    level = max(cap, math.ceil(tot / len(slots_gaps)))
    while True:
        plan = []; k = 0
        for (s, g) in slots_gaps:
            ld = s.load[g]
            while k < len(items):
                c = sum(i.cost for i in items[k])
                if ld + c > level and not (ld == 0 and c > level): break
                plan.append((s, g, items[k])); ld += c; k += 1
        if k == len(items): break
        level += 1
    for s, g, it in plan: s.put(g, it)

def frag_reads(sl, j):
    d = aF + (j % 6) * 4
    tag = ('f', sl.idx, j)
    if sl.typ == 'K':
        t, ks = divmod(j, 6)
        return [dsread('ds_read_b128', A(d, 4), V(v_wk + (ks & 1)), t * 6144 + (ks >> 1) * 128, tag)]
    if sl.typ in ('V', 'Q'):
        off = (j >> 2) * 128
        return [dsread('ds_read_b64_tr_b16', A(d, 2), V(v_wk + (j & 3)), off, tag),
                dsread('ds_read_b64_tr_b16', A(d + 2, 2), V(v_wk + (j & 3)), off + 6144, tag)]
    if sl.typ == 'P':
        u, nt = divmod(j, 2)
        return [dsread('ds_read_b64_tr_b16', A(d, 2), V(v_wk + nt), u * 4096, tag),
                dsread('ds_read_b64_tr_b16', A(d + 2, 2), V(v_wk + nt), u * 4096 + 2048, tag)]

def addr_setup(sl):
    if sl.typ == 'K':
        return [valu('v_add_u32', V(v_wk), S(s_rd), V(v_kb)), valu('v_xor_b32', V(v_wk + 1), 64, V(v_wk))]
    if sl.typ in ('V', 'Q'):
        r = [valu('v_add_u32', V(v_wk), S(s_rd), V(v_vb))]
        r += [valu('v_xor_b32', V(v_wk + j), j << 5, V(v_wk)) for j in (1, 2, 3)]
        if sl.typ == 'Q':
            if sl.j % 2 == 0: r.append(valu('v_add_u32', V(v_xw), S(s_xrd), V(v_xb)))
            else:
                r.append(valu('v_xor_b32', V(v_xw), 64, V(v_xw)))
                r.append([salu('s_add_u32', S(s_xrd), S(s_xrd), XT), scmp('s_cmp_eq_u32', S(s_xrd), NX * XT),
                          salu('s_cselect_b32', S(s_xrd), 0, S(s_xrd))])
        return r
    if sl.typ == 'P':
        return [valu('v_add_u32', V(v_wk), S(s_rd), V(v_ob)), valu('v_xor_b32', V(v_wk + 1), 32, V(v_wk))]

def x_reads(sl):
    return [dsread('ds_read_b128', V(vXF + (sl.j % 2) * 12 + qt * 4, 4), V(v_xw), qt * 2048, ('x', sl.idx))
            for qt in range(3)]

def wrapadd(reg, inc, lim, base):
    return [salu('s_add_u32', S(reg), S(reg), inc), scmp('s_cmp_eq_u32', S(reg), S(lim)),
            salu('s_cselect_b32', S(reg), S(base), S(reg))]

OPT = {'wq0': ' nt', 'wq1': ' nt', 'wo0': ' nt', 'wo1': ' nt', 'x0': ' nt', 'x1': ' nt', 'rot': 1, 'clsbit': 3, 'half': 0, 'early': 1, 'pos': 0, 'win': 10, 'rsh': 0, 'pf': 0, 'pfs': 3, 'pfd': 6, 'xfirst': 0, 'sp0': -1, 'spd': 2, 'pff': ''}
def winadv(pair, regs3, inc, extra=0):
    Wn = OPT['win']
    if (pair + 1) % Wn: return []
    d = Wn * inc if pair != 9 else -(10 - Wn) * inc + extra
    if d == 0: return []
    return [salu('s_add_u32', S(r), S(r), d & 0xffffffff) for r in regs3]
def dma_items(sl, first_m0=None):
    tag = ('d', sl.idx)
    extra = []
    if sl.typ == 'K': srd, so, vo, dl = sK, s_k, v_dkv, 3072; upd = [salu('s_add_u32', S(s_k), S(s_k), 12288)]
    elif sl.typ == 'V': srd, so, vo, dl = sV, s_v, v_dkv, 3072; upd = [salu('s_add_u32', S(s_v), S(s_v), 12288)]
    elif sl.typ == 'Q':
        srd, so, vo, dl = sWQ, s_wq, v_dwq, 16 * 12288
        upd = wrapadd(s_wq, 32 * 12288, s_wql, s_wqb)
        if sl.j % 2: upd = upd + winadv(sl.j // 2, (s_wq, s_wqb, s_wql), 64 * 12288, 384)
    elif sl.typ == 'P':
        srd, so, vo, dl = sWO, s_wo, v_dwx, 24 * 1280
        H = 192 * 1280
        incs = [2 * H, 128 - 2 * H] if sl.nh == 2 else [2 * H, -H, 2 * H, 128 - 3 * H]
        if sl.hh < sl.nh - 1: upd = [salu('s_add_u32', S(s_wo), S(s_wo), incs[sl.hh] & 0xffffffff)]
        else:
            upd = wrapadd(s_wo, incs[sl.hh] & 0xffffffff, s_wol, s_wob)
            upd = upd + winadv(sl.ch, (s_wo, s_wob, s_wol), 128, H)
    srd = S(srd, 4)
    fl = ' nt' if sl.typ in 'KV' else OPT[('wq' if sl.typ == 'Q' else 'wo') + str(sl.rnd)]
    _dma = dma
    def dma1(*a_): return _dma(*a_, flags=fl)
    def dmax(*a_): return _dma(*a_, flags=OPT['x' + str(sl.rnd)])
    it = []
    it.append([salu('s_add_u32', 'm0', S(s_wr), S(s_w6144)), salu('s_add_u32', S(s_tmp), S(so), dl),
               dma1(V(vo), srd, S(so), 0, tag)])
    it.append([dma1(V(vo + 1), srd, S(so), 1024, tag)])
    it.append([dma1(V(vo + 2), srd, S(so), 2048, tag)])
    it.append([salu('s_add_u32', 'm0', 'm0', 3072)] + upd + [dma1(V(vo), srd, S(s_tmp), 0, tag)])
    it.append([dma1(V(vo + 1), srd, S(s_tmp), 1024, tag)])
    it.append([dma1(V(vo + 2), srd, S(s_tmp), 2048, tag)])
    return it

def x_items(sl):
    fl = OPT['x' + str(sl.rnd)]
    xt = ('xd', sl.idx)
    it = []
    for h in range(2):
        it.append([salu('s_mov_b32', 'm0', S(s_xwr)), salu('s_add_u32', S(s_xwr), S(s_xwr), XT),
                   dma(V(v_dwx), S(sX, 4), S(s_x), 0, xt, fl)])
        it.append([dma(V(v_dwx + 1), S(sX, 4), S(s_x), 1024, xt, fl)])
        it.append([dma(V(v_dwx + 2), S(sX, 4), S(s_x), 2048, xt, fl)] + wrapadd(s_x, 128, s_xl, s_xb)
                  + winadv(sl.j // 2 + h, (s_x, s_xb, s_xl), 128))
    it.append([scmp('s_cmp_eq_u32', S(s_xwr), S(s_xwl)), salu('s_cselect_b32', S(s_xwr), S(s_xw0), S(s_xwr))])
    return it

def ptr_update():
    return [salu('s_mov_b32', S(s_wr), S(s_rd)), salu('s_add_u32', S(s_rd), S(s_rd), SLOT),
            scmp('s_cmp_eq_u32', S(s_rd), NBUF * SLOT), salu('s_cselect_b32', S(s_rd), 0, S(s_rd))]

def build_mfmas(sl):
    mf = []
    for j in range(12):
        a = A(aF + (j % 6) * 4, 4)
        need = []
        if j % 2 == 0: need = [('f', sl.idx, j), ('f', sl.idx, j + 1)]
        if j == 0 and sl.typ == 'Q': need.append(('x', sl.idx))
        for qt in range(3):
            if sl.typ == 'K':
                t, ks = divmod(j, 6)
                d = V(Sreg(t, qt), 4); b = A(aQ + (ks * 3 + qt) * 4, 4); c = 0 if ks == 0 else d
            elif sl.typ == 'V':
                d = V(Oreg(j, qt), 4); b = V(vP + qt * 4, 4); c = 0 if sl.first else d
            elif sl.typ == 'Q':
                d = V(Oreg(j, qt), 4) if sl.accv else A(aQN + (j * 3 + qt) * 4, 4)
                b = V(vXF + (sl.j % 2) * 12 + qt * 4, 4); c = 0 if sl.j == 0 else d
            elif sl.typ == 'P':
                u, nt = divmod(j, 2); hh = sl.hh; ch = sl.ch
                d = V(vACC[ch % 2] + (nt * 3 + qt) * 4, 4)
                if sl.nh == 4 and hh < 2: b = A(aQN + hh * 72 + (u * 3 + qt) * 4, 4)
                else: b = V(vO + (hh % 2) * 72 + (u * 3 + qt) * 4, 4)
                c = 0 if (hh == 0 and u == 0 and (sl.rnd == 0 or sl.nh == 4)) else d
            mf.append(mfma(d, a, b, c, need=need if qt == 0 else ()))
    sl.mf = mf

def xrow(v, tmp, op):
    return [valu('v_mov_b32', V(tmp), V(v)), perm('v_permlane32_swap_b32', V(v), V(tmp)), valu(op, V(v), V(v), V(tmp)),
            valu('v_mov_b32', V(tmp), V(v)), perm('v_permlane16_swap_b32', V(v), V(tmp)), valu(op, V(v), V(v), V(tmp))]

def interleave(*lists):
    out = []
    for k in range(max(len(l) for l in lists)):
        for l in lists:
            if k < len(l): out.append(l[k])
    return out

def softmax_init():
    ch = []
    for qt in range(3):
        vals = [Sreg(t, qt) + r for t in range(2) for r in range(4)]
        x = v_m + qt
        c = [valu('v_max3_f32', V(x), V(vals[0]), V(vals[1]), V(vals[2])),
             valu('v_max3_f32', V(x), V(x), V(vals[3]), V(vals[4])),
             valu('v_max3_f32', V(x), V(x), V(vals[5]), V(vals[6])),
             valu('v_max_f32', V(x), V(x), V(vals[7]))]
        c += xrow(x, v_t + qt, 'v_max_f32')
        c += [valu('v_mul_f32', V(x), S(s_c), V(x)), valu('v_mov_b32', V(v_l + qt), 0)]
        ch.append(c)
    return interleave(*ch)

def sm_fma(t):
    return [valu('v_fma_f32', V(Sreg(t, qt) + r), V(Sreg(t, qt) + r), S(s_c), '-' + V(v_m + qt))
            for r in range(4) for qt in range(3)]
def sm_max(t):
    vals = [vS + t * 12 + i for i in range(12)]
    x = v_t + 3
    if t == 0:
        o = [valu('v_max3_f32', V(x), V(vals[0]), V(vals[1]), V(vals[2]))]
        rest = vals[3:]
        for i in range(0, 8, 2): o.append(valu('v_max3_f32', V(x), V(x), V(rest[i]), V(rest[i + 1])))
        o.append(valu('v_max_f32', V(x), V(x), V(rest[8])))
        return o
    return [valu('v_max3_f32', V(x), V(x), V(vals[i]), V(vals[i + 1])) for i in range(0, 12, 2)]
def sm_check():
    return [[vcmp('v_cmp_lt_f32', 0x41000000, V(v_t + 3)),
             raw('s_cbranch_vccnz {L}_r', 'branch', ['vcc']), raw('{L}_b:', 'label'),
             raw('{L}_r:\ns_call_b64 s[%d:%d], L_rare\ns_branch {L}_b' % (s_ret, s_ret + 1), 'stub')]]
def sm_exp():
    o = []
    order = [(t, r) for t in range(2) for r in range(4)]
    for k, (t, r) in enumerate(order):
        for qt in range(3): o.append(valu('v_exp_f32', V(Sreg(t, qt) + r), V(Sreg(t, qt) + r)))
        if k >= 1:
            pt, pr = order[k - 1]
            for qt in range(3): o.append(valu('v_add_f32', V(v_l + qt), V(v_l + qt), V(Sreg(pt, qt) + pr)))
            if pr % 2 == 1:
                for qt in range(3):
                    o.append(valu('v_cvt_pk_bf16_f32', V(vP + qt * 4 + pt * 2 + pr // 2), V(Sreg(pt, qt) + pr - 1), V(Sreg(pt, qt) + pr)))
    for qt in range(3): o.append(valu('v_cvt_pk_bf16_f32', V(vP + qt * 4 + 3), V(Sreg(1, qt) + 2), V(Sreg(1, qt) + 3)))
    for qt in range(3): o.append(valu('v_add_f32', V(v_l + qt), V(v_l + qt), V(Sreg(1, qt) + 3)))
    return o

def rare_path():
    ch = []
    for qt in range(3):
        vals = [Sreg(t, qt) + r for t in range(2) for r in range(4)]
        x = v_t + 4 + qt; f = v_t + 7 + qt
        c = [valu('v_max3_f32', V(x), V(vals[0]), V(vals[1]), V(vals[2])),
             valu('v_max3_f32', V(x), V(x), V(vals[3]), V(vals[4])),
             valu('v_max3_f32', V(x), V(x), V(vals[5]), V(vals[6])),
             valu('v_max_f32', V(x), V(x), V(vals[7]))]
        c += xrow(x, v_t + qt, 'v_max_f32')
        c += [valu('v_max_f32', V(x), 0, V(x)), valu('v_add_f32', V(v_m + qt), V(v_m + qt), V(x)),
              valu('v_sub_f32', V(f), 0, V(x)), valu('v_exp_f32', V(f), V(f))]
        c += [valu('v_sub_f32', V(s), V(s), V(x)) for s in vals]
        c += [valu('v_mul_f32', V(v_l + qt), V(v_l + qt), V(f))]
        c += [valu('v_mul_f32', V(Oreg(dt, qt) + r), V(Oreg(dt, qt) + r), V(f)) for dt in range(12) for r in range(4)]
        ch.append(c)
    p = [nop(7)] + interleave(*ch) + [nop(3)]
    p, _ = fix_hazards(p)
    return ["L_rare:"] + [i.t for i in p] + [f"s_setpc_b64 s[{s_ret}:{s_ret+1}]"]

def q_convert(accv, dest=aQ):
    out = []
    for u in range(6):
        T = [v_t + 0, v_t + 4, v_t + 8]
        cv = []; rd = []
        for qt in range(3):
            for h in range(2):
                for k in range(2):
                    if accv:
                        s0 = Oreg(2 * u + h, qt) + 2 * k
                    else:
                        s0 = vS + (qt * 4 + h * 2 + k) * 2
                        a0 = aQN + ((2 * u + h) * 3 + qt) * 4 + 2 * k
                        rd += [valu('v_accvgpr_read_b32', V(s0), A(a0)), valu('v_accvgpr_read_b32', V(s0 + 1), A(a0 + 1))]
                    cv.append(valu('v_cvt_pk_bf16_f32', V(T[qt] + h * 2 + k), V(s0), V(s0 + 1)))
        out += rd + cv
        for op in ('v_permlane32_swap_b32', 'v_permlane16_swap_b32'):
            for qt in range(3):
                for k in range(2): out.append(perm(op, V(T[qt] + k), V(T[qt] + 2 + k)))
        for qt in range(3):
            for k in range(4): out.append(valu('v_accvgpr_write_b32', A(dest + (u * 3 + qt) * 4 + k), V(T[qt] + k)))
    return out

def epilogue(eid):
    out = interleave(*[xrow(v_l + qt, v_t + qt, 'v_add_f32') + [valu('v_rcp_f32', V(v_t + 4 + 2 * qt), V(v_l + qt)),
                       valu('v_mov_b32', V(v_t + 5 + 2 * qt), V(v_t + 4 + 2 * qt))] for qt in range(3)])
    return out

def epilogue2(eid, toA=False):
    RL = 30
    out = interleave(*[xrow(v_l + qt, v_t + qt, 'v_add_f32') + [valu('v_rcp_f32', V(RL + 2 * qt), V(v_l + qt)),
                       valu('v_mov_b32', V(RL + 1 + 2 * qt), V(RL + 2 * qt))] for qt in range(3)])
    vw, vr = 36, 37
    out.append(valu('v_add_u32', V(vw), S(s_t0), V(v_l16)))
    out.append(valu('v_add_u32', V(vr), S(s_t0 + 1), V(v_l16)))
    def pack(u):
        o = []
        for qt in range(3):
            for h in range(2):
                s = Oreg(2 * u + h, qt)
                o.append(valu('v_pk_mul_f32', V(s, 2), V(s, 2), V(RL + 2 * qt, 2)))
                o.append(valu('v_pk_mul_f32', V(s + 2, 2), V(s + 2, 2), V(RL + 2 * qt, 2)))
        for qt in range(3):
            for h in range(2):
                s = Oreg(2 * u + h, qt)
                for k in range(2):
                    o.append(valu('v_cvt_pk_bf16_f32', V(vO + (u * 3 + qt) * 4 + h * 2 + k), V(s + 2 * k), V(s + 2 * k + 1)))
        return o
    def wr(u, half):
        return [dswrite('ds_write_b128', V(vw), V(vO + (u * 3 + qt) * 4, 4), ((u - 3 * half) * 3 + qt) * 1024, ('ew', eid, half))
                for qt in range(3)]
    def rdd(half):
        o = []
        for hh in range(2):
            for f in range(9):
                dst = A(aQN + hh * 72 + (half * 9 + f) * 4, 4) if toA else V(vO + hh * 72 + (half * 9 + f) * 4, 4)
                o.append(dsread('ds_read_b128', dst, V(vr), hh * 2 * 9216 + f * 1024, ('er', eid, half)))
        return o
    for u in range(3): out += pack(u) + wr(u, 0)
    for u in range(3, 6): out += pack(u)
    out.append(barrier(need=[('ew', eid, 0)]))
    out += rdd(0)
    out.append(barrier(need=[('er', eid, 0)]))
    for u in range(3, 6): out += wr(u, 1)
    out.append(barrier(need=[('ew', eid, 1)]))
    out += rdd(1)
    out.append(waitfor([('er', eid, 1)]))
    return out

def chunk_end(ch, rnd, store_flags):
    acc = vACC[ch % 2]
    o = []
    for qt in range(3):
        for nt in range(2):
            for k in range(2):
                s = acc + (nt * 3 + qt) * 4 + 2 * k
                o.append(valu('v_cvt_pk_bf16_f32', V(vP + qt * 4 + nt * 2 + k), V(s), V(s + 1)))
        if rnd == 1:
            o.append(bstore(V(vP + qt * 4, 4), V(v_l16), S(sWS, 4), S(s_pt), qt * 1024, ('st', ch), store_flags))
    if rnd == 0:
        o += [valu('v_accvgpr_write_b32', A(aRES + ch * 12 + i), V(vP + i)) for i in range(12)]
    else:
        o.append(wrapadd(s_pt, 12288, s_ptl, s_ptb) + winadv(ch, (s_pt, s_ptb, s_ptl), 12288))
    return o

def chunk_init(ch):
    acc = vACC[ch % 2]
    return [mfma(V(acc + (nt * 3 + qt) * 4, 4), A(aE1 if nt else aE0, 4), A(aRES + ch * 12 + qt * 4, 4), 0)
            for nt in range(2) for qt in range(3)]

def stamp(n):
    return [raw(f"s_memrealtime s[{s_stamp+2*n}:{s_stamp+2*n+1}]", 'smem')]

def prologue():
    P = []
    a = P.append
    T = s_t0
    a(salu('s_and_b32', S(T), 's2', 7)); a(salu('s_lshr_b32', S(T + 1), 's2', 3))
    a(salu('s_lshr_b32', S(T + 2), S(T), 2))
    a(salu('s_and_b32', S(T), S(T), 3)); a(salu('s_lshl_b32', S(T), S(T), 1))
    a(salu('s_and_b32', S(T + 3), S(T + 1), 1)); a(salu('s_or_b32', S(T), S(T), S(T + 3)))
    a(salu('s_lshr_b32', S(T + 1), S(T + 1), 1))
    a(salu('s_mul_i32', S(T + 2), S(T + 2), 40))
    a(salu('s_add_u32', S(T + 4), 's0', S(T + 2))); a(salu('s_addc_u32', S(T + 5), 's1', 0))
    a(raw(f"s_load_dwordx8 s[68:75], s[{T+4}:{T+5}], 0", 'smem'))
    a(raw(f"s_load_dwordx2 s[76:77], s[{T+4}:{T+5}], 32", 'smem'))
    a(raw("s_load_dwordx2 s[78:79], s[0:1], 96", 'smem'))
    a(valu('v_lshrrev_b32', V(v_t), 6, 'v0'))
    a(nop(0))
    a(raw(f"v_readfirstlane_b32 s{T+6}, v{v_t}", 'valu', [f'v{v_t}'], [f's{T+6}']))
    lane, n16, g, tmp, tmp2, row, sw = range(v_t, v_t + 7)
    a(valu('v_and_b32', V(lane), 63, 'v0'))
    a(valu('v_and_b32', V(n16), 15, V(lane))); a(valu('v_lshrrev_b32', V(g), 4, V(lane)))
    a(valu('v_lshlrev_b32', V(v_l16), 4, V(lane)))
    W = T + 6; Pp = T + 7; QH = T + 8
    a(salu('s_lshr_b32', S(Pp), S(W), 1)); a(salu('s_and_b32', S(QH), S(W), 1))
    a(salu('s_mul_i32', S(s_w6144), S(W), 6144))
    def swz(dst, r):
        a(valu('v_and_b32', V(dst), 6, V(r)))
    swz(sw, n16)
    a(valu('v_xor_b32', V(tmp), V(g), V(sw))); a(valu('v_lshlrev_b32', V(tmp), 4, V(tmp)))
    a(valu('v_mul_u32_u24', V(tmp2), 384, V(n16))); a(valu('v_add_u32', V(v_kb), V(tmp), V(tmp2)))
    a(salu('s_mul_i32', S(T + 9), S(Pp), 12288))
    a(valu('v_add_u32', V(v_kb), S(T + 9), V(v_kb)))
    a(valu('v_lshlrev_b32', V(tmp2), 7, V(n16))); a(valu('v_add_u32', V(v_xb), V(tmp), V(tmp2)))
    a(salu('s_mul_i32', S(s_tmp), S(QH), 6144)); a(salu('s_add_u32', S(s_tmp), S(s_tmp), XBASE))
    a(valu('v_add_u32', V(v_xb), S(s_tmp), V(v_xb)))
    a(valu('v_lshrrev_b32', V(row), 2, V(lane)))
    swz(sw, row)
    a(valu('v_bfe_u32', V(tmp), V(lane), 1, 1))
    a(valu('v_xor_b32', V(tmp), V(tmp), V(sw))); a(valu('v_lshlrev_b32', V(tmp), 4, V(tmp)))
    a(valu('v_and_b32', V(tmp2), 1, V(lane))); a(valu('v_lshl_add_u32', V(tmp), V(tmp2), 3, V(tmp)))
    a(valu('v_mul_u32_u24', V(tmp2), 384, V(row))); a(valu('v_add_u32', V(v_vb), V(tmp), V(tmp2)))
    a(valu('v_add_u32', V(v_vb), S(T + 9), V(v_vb)))
    a(valu('v_lshl_add_u32', V(v_ob), V(row), 7, V(tmp)))
    a(salu('s_lshl_b32', S(s_tmp), S(Pp), 6))
    a(valu('v_xor_b32', V(v_ob), S(s_tmp), V(v_ob)))
    a(salu('s_mov_b32', S(s_tmp), 0xAAAAAAB))
    for j in range(3):
        a(valu('v_add_u32', V(tmp), 64 * j, V(lane)))
        a(valu('v_mul_hi_u32', V(row), V(tmp), S(s_tmp)))
        swz(sw, row)
        a(valu('v_lshlrev_b32', V(sw), 4, V(sw)))
        a(valu('v_xor_b32', V(v_dkv + j), V(v_l16), V(sw)))
        a(valu('v_mul_u32_u24', V(tmp2), 24, V(row))); a(valu('v_sub_u32', V(tmp), V(tmp), V(tmp2)))
        a(valu('v_lshlrev_b32', V(tmp), 4, V(tmp))); a(valu('v_xor_b32', V(tmp), V(tmp), V(sw)))
        a(valu('v_lshrrev_b32', V(tmp2), 2, V(row))); a(valu('v_lshl_add_u32', V(row), V(tmp2), 2, V(row)))
        a(valu('v_mul_u32_u24', V(row), 12288, V(row)))
        a(valu('v_add_u32', V(tmp), V(tmp), V(row)))
        a(valu('v_subrev_u32', V(v_dwq + j), 1024 * j, V(tmp)))
    a(valu('v_lshrrev_b32', V(row), 3, V(lane)))
    swz(sw, row)
    a(valu('v_and_b32', V(tmp), 7, V(lane))); a(valu('v_xor_b32', V(tmp), V(tmp), V(sw)))
    a(valu('v_lshlrev_b32', V(tmp), 4, V(tmp)))
    a(valu('v_mul_u32_u24', V(row), 1280, V(row)))
    a(valu('v_add_u32', V(v_dwx), V(tmp), V(row)))
    a(valu('v_add_u32', V(v_dwx + 1), 8 * 1280 - 1024, V(v_dwx)))
    a(valu('v_add_u32', V(v_dwx + 2), 2 * (8 * 1280 - 1024), V(v_dwx)))
    HQ = T; B = T + 1
    a(salu('s_lshl_b32', S(T + 3), S(HQ), 2)); a(salu('s_lshl_b32', S(T + 9), S(Pp), 1))
    a(salu('s_add_u32', S(T + 9), S(T + 9), S(T + 3)))
    a(salu('s_lshl_b32', S(s_k), S(B), 5)); a(salu('s_add_u32', S(s_k), S(s_k), S(T + 9)))
    a(salu('s_mul_i32', S(s_k), S(s_k), 196608))
    a(salu('s_mul_i32', S(s_tmp), S(QH), 6144)); a(salu('s_add_u32', S(s_k), S(s_k), S(s_tmp)))
    a(salu('s_mov_b32', S(s_v), S(s_k)))
    ROT = T + 2
    Wn = OPT['win']
    a(salu('s_lshr_b32', S(ROT), S(B), OPT['rsh']))
    if Wn == 10 and OPT['rsh'] == 0:
        a(salu('s_mul_i32', S(ROT), S(ROT), 5)); a(salu('s_lshr_b32', S(ROT), S(ROT), 3))
    a(salu('s_and_b32', S(s_tmp), S(HQ), 1)); a(salu('s_mul_i32', S(s_tmp), S(s_tmp), Wn // 2))
    a(salu('s_add_u32', S(ROT), S(ROT), S(s_tmp)))
    a(salu('s_mul_i32', S(s_tmp), S(ROT), (256 + Wn - 1) // Wn)); a(salu('s_lshr_b32', S(s_tmp), S(s_tmp), 8))
    a(salu('s_mul_i32', S(s_tmp), S(s_tmp), Wn)); a(salu('s_sub_u32', S(ROT), S(ROT), S(s_tmp)))
    a(salu('s_mul_i32', S(ROT), S(ROT), OPT['rot']))
    a(salu('s_mul_i32', S(s_wqb), S(T + 9), 384)); a(salu('s_mul_i32', S(s_tmp), S(QH), 4 * 12288))
    a(salu('s_add_u32', S(s_wqb), S(s_wqb), S(s_tmp)))
    a(salu('s_add_u32', S(s_wql), S(s_wqb), OPT['win'] * 64 * 12288))
    a(salu('s_mul_i32', S(s_tmp), S(ROT), 64 * 12288)); a(salu('s_add_u32', S(s_wq), S(s_wqb), S(s_tmp)))
    a(salu('s_mul_i32', S(s_xb), S(B), 96)); a(salu('s_mul_i32', S(s_tmp), S(W), 24))
    a(salu('s_add_u32', S(s_xb), S(s_xb), S(s_tmp))); a(salu('s_mul_i32', S(s_xb), S(s_xb), 1280))
    a(salu('s_add_u32', S(s_xl), S(s_xb), OPT['win'] * 128))
    a(salu('s_lshl_b32', S(s_tmp), S(ROT), 7)); a(salu('s_add_u32', S(s_x), S(s_xb), S(s_tmp)))
    a(salu('s_mul_i32', S(s_wob), S(T + 3), 192)); a(salu('s_mul_i32', S(s_wol), S(W), 48))
    a(salu('s_add_u32', S(s_wob), S(s_wob), S(s_wol))); a(salu('s_mul_i32', S(s_wob), S(s_wob), 1280))
    a(salu('s_add_u32', S(s_wol), S(s_wob), OPT['win'] * 128))
    a(salu('s_add_u32', S(s_wo), S(s_wob), S(s_tmp)))
    a(salu('s_mul_i32', S(s_ptb), 's2', PART_WG)); a(salu('s_mul_i32', S(s_tmp), S(W), 3072))
    a(salu('s_add_u32', S(s_ptb), S(s_ptb), S(s_tmp))); a(salu('s_add_u32', S(s_ptl), S(s_ptb), OPT['win'] * 12288))
    a(salu('s_add_u32', S(s_xw0), S(s_tmp), XBASE)); a(salu('s_mov_b32', S(s_xwr), S(s_xw0)))
    a(salu('s_add_u32', S(s_xwl), S(s_xw0), NX * XT))
    a(salu('s_mul_i32', S(s_tmp), S(ROT), 12288)); a(salu('s_add_u32', S(s_pt), S(s_ptb), S(s_tmp)))
    a(salu('s_mov_b32', S(s_xrd), 0))
    c = (192 ** -0.5) * math.log2(math.e)
    import struct
    a(salu('s_mov_b32', S(s_c), struct.unpack('<I', struct.pack('<f', c))[0]))
    a(valu('v_lshrrev_b32', V(tmp), 2, V(n16)))
    a(vcmp('v_cmp_eq_u32', V(tmp), V(g)))
    a(valu('v_and_b32', V(tmp2), 1, V(n16))); a(valu('v_lshlrev_b32', V(tmp2), 4, V(tmp2)))
    a(salu('s_mov_b32', S(s_tmp), 0x3F80))
    a(valu('v_lshlrev_b32', V(tmp2), V(tmp2), S(s_tmp)))
    a(valu('v_cndmask_b32', V(tmp2), 0, V(tmp2)))
    a(valu('v_and_b32', V(tmp), 2, V(n16)))
    a(vcmp('v_cmp_eq_u32', 0, V(tmp)))
    a(nop(1))
    a(valu('v_cndmask_b32', V(row), 0, V(tmp2)))
    a(valu('v_sub_u32', V(sw), V(tmp2), V(row)))
    for r in (240, 241, 244, 245): a(valu('v_accvgpr_write_b32', A(r), 0))
    a(valu('v_accvgpr_write_b32', A(242), V(row))); a(valu('v_accvgpr_write_b32', A(243), V(sw)))
    if OPT['pf']:
        a(salu('s_lshl_b32', S(s_tmp), S(B), 2)); a(salu('s_add_u32', S(s_tmp), S(s_tmp), S(W)))
        a(salu('s_mul_i32', S(s_tmp), S(s_tmp), 60))
        a(valu('v_add_u32', V(tmp), S(s_tmp), V(lane))); a(valu('v_min_u32', V(tmp), 3839, V(tmp)))
        a(vcmp('v_cmp_le_u32', 1920, V(tmp)))
        a(salu('s_mul_i32', S(s_tmp), S(T + 3), 245760))
        a(valu('v_lshl_add_u32', V(101), V(tmp), 7, S(s_tmp)))
        a(valu('v_add_u32', V(tmp2), 245760, V(101)))
        a(valu('v_cndmask_b32', V(101), V(101), V(tmp2)))
        a(salu('s_mov_b32', S(s_8k), 0x2AAAAAAB))
        a(valu('v_mul_hi_u32', V(row), V(tmp), S(s_8k)))
        a(valu('v_mul_u32_u24', V(tmp2), 6, V(row))); a(valu('v_sub_u32', V(tmp), V(tmp), V(tmp2)))
        a(vcmp('v_cmp_le_u32', 3, V(tmp)))
        a(valu('v_mul_u32_u24', V(row), 12288, V(row)))
        a(valu('v_lshl_add_u32', V(row), V(tmp), 7, V(row)))
        a(salu('s_mul_i32', S(s_tmp), S(T + 3), 384)); a(salu('s_add_u32', S(s_tmp), S(s_tmp), 384))
        a(valu('v_add_u32', V(row), S(s_tmp), V(row)))
        a(valu('v_add_u32', V(tmp2), 384, V(row)))
        a(valu('v_cndmask_b32', V(100), V(row), V(tmp2)))
        a(salu('s_mov_b32', S(s_8k), 245760))
    a(salu('s_mul_i32', S(s_tmp), S(W), 9216)); a(salu('s_mul_i32', S(T + 1), S(QH), 9216))
    a(salu('s_add_u32', S(T), S(s_tmp), XBASE)); a(salu('s_add_u32', S(T + 1), S(T + 1), XBASE))
    a(raw("s_waitcnt lgkmcnt(0)", 'wait'))
    for srd, p, n in ((sX, 68, 1966080), (sK, 70, 100663296), (sV, 72, 100663296), (sWQ, 74, 7864320),
                      (sWO, 76, 7864320), (sWS, 78, 438042624)):
        a(salu('s_mov_b32', S(srd), S(p))); a(salu('s_mov_b32', S(srd + 1), S(p + 1)))
        a(salu('s_mov_b32', S(srd + 2), n)); a(salu('s_mov_b32', S(srd + 3), 0x20000))
    return P

def make_seq(kind):
    seq = []
    def Q(r, js, accv): return [Slot('Q', j=j, rnd=r, accv=accv) for j in js]
    def KV(r, i): return [Slot('K', i=i, rnd=r, first=(i == 0)), Slot('V', i=i, rnd=r, first=(i == 0))]
    def Pp(r): return [Slot('P', j=j, rnd=r, nh=2, ch=j // 2, hh=j % 2) for j in range(20)]
    def P4(): return [Slot('P', j=j, rnd=1, nh=4, ch=j // 4, hh=j % 4) for j in range(40)]
    if kind == 'plain':
        for r in range(2):
            seq += Q(r, range(20), True)
            for i in range(16): seq += KV(r, i)
            seq += Pp(r)
    elif kind == 'aq':
        seq += Q(0, range(20), True)
        q1 = Q(1, range(20), False)
        for i in range(16):
            k, v = KV(0, i)
            if 3 <= i < 13: seq += [k, q1[2 * (i - 3)], q1[2 * (i - 3) + 1], v]
            else: seq += [k, v]
        seq += Pp(0)
        for i in range(16): seq += KV(1, i)
        seq += Pp(1)
    elif kind == 'W':
        seq += Q(0, range(20), True) + Q(1, range(20), True)
        for r in range(2):
            for i in range(16): seq += KV(r, i)
        seq += P4()
    for n, s in enumerate(seq): s.idx = n
    return seq

def build_main(kind, stamps, store_flags):
    seq = make_seq(kind)
    N = len(seq)
    for s in seq: build_mfmas(s)
    head = []
    head.append(salu('s_mov_b32', S(s_wr), 0))
    for it in x_items(seq[0]): head += it
    for n in range(LEAD):
        for it in dma_items(seq[n]): head += it
        head.append(salu('s_add_u32', S(s_wr), S(s_wr), SLOT))
    head.append(salu('s_mov_b32', S(s_rd), 0))
    for it in addr_setup(seq[0]): head += it if isinstance(it, list) else [it]
    head.append(barrier(need=[('d', 0), ('xd', 0)]))
    if seq[0].typ == 'Q': head += x_reads(seq[0])
    for j in range(5): head += frag_reads(seq[0], j)
    nstamp = 0
    fine = stamps and OPT['sp0'] >= 0
    if stamps: head = stamp(0) + [raw("s_memtime s[96:97]", 'smem')] + head + stamp(1); nstamp = 2
    post = []
    if fine:
        stamps = False
        for k in range(11):
            if OPT['sp0'] + k * OPT['spd'] < N:
                seq[OPT['sp0'] + k * OPT['spd']].put(0, stamp(nstamp)); nstamp += 1
    for n, s in enumerate(seq):
        nx = seq[n + 1] if n + 1 < N else None
        pv = seq[n - 1] if n else None
        for j in range(5, 12):
            rr = frag_reads(s, j)
            g0 = 3 * (j - 5)
            for k, r in enumerate(rr): s.put(g0 + k, r)
        its = dma_items(seq[n + LEAD]) if n + LEAD < N else []
        pos = [2, 5, 8, 11, 14, 17]
        if n + 4 < N and seq[n + 4].typ == 'Q' and seq[n + 4].j % 4 == 0:
            xi = x_items(seq[n + 4])
            if OPT['xfirst']:
                its = xi + its; pos = [1, 2, 4, 5, 7, 8, 10, 11, 13, 14, 16, 17, 19]
            else:
                its = its + xi; pos = [2, 4, 5, 7, 8, 10, 11, 13, 14, 16, 17, 19, 20]
        s.dma = its
        early = (s.typ == 'V' and pv.typ == 'K') and OPT['early'] and its
        if not early:
            for k, it in enumerate(its): s.put(pos[k], it)
        s.early = early
        if nx is not None:
            s.put(22, ptr_update())
            su = addr_setup(nx)
            for k, it in enumerate(su): s.put(23 + min(k // 2, 2), it)
            own = [('f', s.idx, 11)]
            s.put(26, barrier(need=own + [('d', nx.idx)] + ([('xd', nx.idx)] if nx.typ == 'Q' and nx.j % 4 == 0 else [])))
            xr = x_reads(nx) if nx.typ == 'Q' else []
            for j, gp in zip(range(5), (27, 28, 29, 31, 33)):
                rr = frag_reads(nx, j)
                if j < len(xr): s.put(gp, xr[j])
                for k, r in enumerate(rr): s.put(gp + (k if j >= 3 else 0), r)
    if OPT['pf']:
        def touch(what, fl):
            if what == 'wq1': return bload(V(102), V(100), S(sWQ, 4), 0, 0, ('pf', 0), fl, op='buffer_load_dword')
            return bload(V(102), V(101), S(sWO, 4), 0 if what == 'wo0' else S(s_8k), 0, ('pf', 0), fl, op='buffer_load_dword')
        def sched(slot, whats):
            for k, wh in enumerate(whats):
                seq[slot].put(19 + 2 * k, touch(wh, ' nt'))
                if OPT['pfd'] >= 0: seq[slot + OPT['pfd']].put(20 + 2 * k + (4 if OPT['pfd'] == 0 else 0), touch(wh, OPT['pff']))
        if kind == 'plain':
            sched(OPT['pfs'], ['wo0', 'wq1']); sched(52 + OPT['pfs'], ['wo1'])
        elif kind == 'W':
            sched(OPT['pfs'], ['wq1']); sched(20 + OPT['pfs'], ['wo0', 'wo1'])
    for n, s in enumerate(seq):
        nx = seq[n + 1] if n + 1 < N else None
        if s.typ == 'K' and stamps and s.i == 8:
            s.pre = stamp(nstamp) + s.pre; nstamp += 1
        if s.typ == 'K':
            ws = []
            k = n + 1
            while seq[k].typ != 'V': ws.append(seq[k]); k += 1
            vs = seq[k]
            if s.first:
                rest = softmax_init() + sm_fma(0) + sm_fma(1) + sm_exp()
            else:
                spread([(s, g) for g in range(21, 36)], sm_fma(0) + sm_max(0))
                rest = sm_fma(1) + sm_max(1) + sm_check() + sm_exp()
            if ws:
                gl = [(w, g) for w in ws for g in range(36)][3:-2]
                spread(gl, rest)
            else:
                if vs.early:
                    step = max(1, len(rest) // (len(vs.dma) + 1))
                    o = []; d = list(vs.dma)
                    for k2, it in enumerate(rest):
                        o.append(it)
                        if k2 % step == step - 1 and d: o.append(d.pop(0))
                    o += d
                    rest = o
                vs.pre += rest
        if s.typ == 'Q' and s.j == 19 and s.accv:
            nx.pre = q_convert(True, aQN if (kind == 'W' and s.rnd == 1) else aQ) + nx.pre
            if stamps: nx.pre = nx.pre + stamp(nstamp); nstamp += 1
        if s.typ == 'V' and s.i == 15:
            pre = []
            if stamps: pre += stamp(nstamp); nstamp += 1
            if kind == 'aq' and s.rnd == 0: pre += q_convert(False)
            if kind == 'W' and s.rnd == 0:
                pre += [valu('v_accvgpr_mov_b32', A(aQ + k), A(aQN + k)) for k in range(72)]
            pre += epilogue2(s.rnd, toA=(kind == 'W' and s.rnd == 0))
            if stamps: pre += stamp(nstamp); nstamp += 1
            nx.pre = pre + nx.pre
        if s.typ == 'P':
            if s.hh == 0 and s.rnd == 1 and s.nh == 2: s.pre += chunk_init(s.ch)
            if s.hh == s.nh - 1:
                ce = chunk_end(s.ch, s.rnd, store_flags)
                if s.ch == 9:
                    if stamps: ce = ce + stamp(nstamp); nstamp += 1
                    if nx is None: post += ce
                    else: nx.pre = ce + nx.pre
                else: spread([(nx, g) for g in range(3, 26)], ce)
    prog = list(head)
    def flat(items):
        o = []
        for it in items: o += it if isinstance(it, list) else [it]
        return o
    for s in seq:
        prog.append(mark('m'))
        prog += flat(s.pre)
        for k in range(36):
            prog.append(s.mf[k]); prog += flat(s.gaps[k])
    prog.append(mark('m'))
    prog += flat(post)
    return prog, nstamp

def stamp_out(nstamp):
    o = ["s_waitcnt vmcnt(0) lgkmcnt(0)"]
    o.append(f"s_memrealtime s[{s_stamp+2*nstamp}:{s_stamp+2*nstamp+1}]")
    o.append(f"s_memtime s[98:99]")
    o.append("s_waitcnt lgkmcnt(0)")
    o.append(f"s_lshl_b32 s{s_tmp}, s2, 8")
    o.append(f"s_lshr_b32 s{s_cnt}, s{s_w6144}, 11")
    o.append(f"s_mul_i32 s{s_cnt}, s{s_cnt}, 21")
    o.append(f"s_mul_hi_u32 s{s_cnt}, s{s_w6144}, 0xAAAAB")
    o.append(f"s_lshl_b32 s{s_cnt}, s{s_cnt}, 6")
    o.append(f"s_add_u32 s{s_tmp}, s{s_tmp}, s{s_cnt}")
    o.append(f"s_add_u32 s{s_tmp}, s{s_tmp}, {STAMP_OFF}")
    o.append("v_mov_b32 v1, 0")
    for n in range(nstamp + 1):
        o.append(f"v_mov_b32 v2, s{s_stamp+2*n}")
        o.append(f"buffer_store_dword v2, v1, s[{sWS}:{sWS+3}], s{s_tmp} offen offset:{4*n}")
    o.append(f"s_sub_u32 s{s_cnt}, s98, s96")
    o.append(f"v_mov_b32 v2, s{s_cnt}")
    o.append(f"buffer_store_dword v2, v1, s[{sWS}:{sWS+3}], s{s_tmp} offen offset:60")
    o.append(f"v_mov_b32 v2, {nstamp+1}")
    o.append(f"buffer_store_dword v2, v1, s[{sWS}:{sWS+3}], s{s_tmp} offen offset:56")
    return o

def reduce_kernel():
    L = []; a = L.append
    a("s_cmp_ge_u32 s2, 960"); a("s_cbranch_scc1 R_end")
    a("s_load_dwordx2 s[4:5], s[0:1], 96"); a("s_load_dwordx2 s[6:7], s[0:1], 80")
    a("v_lshrrev_b32 v1, 6, v0"); a("s_nop 0"); a("v_readfirstlane_b32 s3, v1")
    a("v_and_b32 v0, 63, v0")
    a("s_nop 2")
    a("s_lshl_b32 s16, s2, 2"); a("s_add_u32 s16, s16, s3")
    a("s_mul_hi_u32 s17, s16, 0x2222223")
    a("s_mul_i32 s18, s17, 120"); a("s_sub_u32 s18, s16, s18")
    a("s_lshr_b32 s19, s17, 4"); a("s_and_b32 s20, s17, 15")
    a("s_lshl_b32 s21, s20, 4"); a("s_lshl_b32 s22, s19, 2"); a("s_add_u32 s21, s21, s22")
    a(f"s_mul_i32 s21, s21, {PART_WG}"); a("s_lshl_b32 s22, s18, 10"); a("s_add_u32 s21, s21, s22")
    a("v_lshlrev_b32 v1, 4, v0")
    a("s_waitcnt lgkmcnt(0)")
    a("s_mov_b32 s8, s4"); a("s_mov_b32 s9, s5"); a("s_mov_b32 s10, 438042624"); a("s_mov_b32 s11, 0x20000")
    a("s_mov_b32 s12, s6"); a("s_mov_b32 s13, s7"); a("s_mov_b32 s14, 3932160"); a("s_mov_b32 s15, 0x20000")
    for hq in range(8):
        off = (((hq & 1) << 3) | (hq >> 1)) * PART_WG
        a(f"s_add_u32 s23, s21, {off}")
        a(f"buffer_load_dwordx4 v[{8+4*hq}:{11+4*hq}], v1, s[8:11], s23 offen")
    a("s_mul_hi_u32 s24, s18, 0x15555556")
    a("s_mul_i32 s25, s24, 12"); a("s_sub_u32 s25, s18, s25")
    a("s_mul_hi_u32 s26, s25, 0x55555556")
    a("s_mul_i32 s27, s26, 3"); a("s_sub_u32 s27, s25, s27")
    a("s_and_b32 s28, s26, 1"); a("s_mul_i32 s28, s28, 48"); a("s_lshl_b32 s27, s27, 4"); a("s_add_u32 s28, s28, s27")
    a("s_mul_i32 s29, s20, 96"); a("s_add_u32 s28, s28, s29")
    a("s_mul_i32 s28, s28, 2560")
    a("s_mul_i32 s29, s19, 1280"); a("s_add_u32 s28, s28, s29")
    a("s_lshl_b32 s29, s24, 7"); a("s_add_u32 s28, s28, s29")
    a("s_lshr_b32 s29, s26, 1"); a("s_lshl_b32 s29, s29, 6"); a("s_add_u32 s28, s28, s29")
    a("v_and_b32 v2, 15, v0"); a("v_mul_u32_u24 v2, 2560, v2")
    a("v_lshrrev_b32 v3, 4, v0"); a("v_lshl_add_u32 v2, v3, 4, v2")
    for hq in range(8):
        a(f"s_waitcnt vmcnt({7-hq})")
        for k in range(4):
            r = 8 + 4 * hq + k
            if hq == 0:
                a(f"v_lshlrev_b32 v{40+k}, 16, v{r}"); a(f"v_and_b32 v{44+k}, 0xffff0000, v{r}")
            else:
                a(f"v_lshlrev_b32 v4, 16, v{r}"); a(f"v_and_b32 v5, 0xffff0000, v{r}")
                a(f"v_add_f32 v{40+k}, v{40+k}, v4"); a(f"v_add_f32 v{44+k}, v{44+k}, v5")
    for k in range(4): a(f"v_cvt_pk_bf16_f32 v{48+k}, v{40+k}, v{44+k}")
    a("s_nop 1")
    a("v_permlane32_swap_b32 v48, v50"); a("v_permlane32_swap_b32 v49, v51")
    a("s_nop 1")
    a("v_permlane16_swap_b32 v48, v50"); a("v_permlane16_swap_b32 v49, v51")
    a("s_nop 1")
    a("buffer_store_dwordx4 v[48:51], v2, s[12:15], s28 offen")
    a("R_end:")
    a("s_endpgm")
    return L

DESC = """.section .rodata,"a"
.p2align 6
.amdhsa_kernel {name}
  .amdhsa_next_free_vgpr {nv}
  .amdhsa_next_free_sgpr {ns}
  .amdhsa_accum_offset {acc}
  .amdhsa_group_segment_fixed_size 0
  .amdhsa_kernarg_size 104
  .amdhsa_user_sgpr_count 2
  .amdhsa_user_sgpr_kernarg_segment_ptr 1
  .amdhsa_system_sgpr_workgroup_id_x 1
.end_amdhsa_kernel
"""

def main():
    ap = argparse.ArgumentParser()
    ap.add_argument('-o', default=f'cdna_kernels/{KN}.s')
    ap.add_argument('--kind', default='plain')
    ap.add_argument('--stamps', action='store_true')
    ap.add_argument('--st', default='')
    ap.add_argument('-v', action='store_true')
    ap.add_argument('--drop', default='', help='comma list of kinds to drop (dma,ds,barrier,vstore)')
    ap.add_argument('--opt', default='', help='k=v,... overrides; flags value: nt / df / sc1 ...')
    a = ap.parse_args()
    for kv in filter(None, a.opt.split(',')):
        k, v = kv.split('=')
        if k == 'w':
            for kk in ('wq0', 'wq1', 'wo0', 'wo1', 'x0', 'x1'): OPT[kk] = '' if v == 'df' else ' ' + v
        elif isinstance(OPT[k], int): OPT[k] = int(v)
        else: OPT[k] = '' if v == 'df' else ' ' + v
    pro, _ = fix_hazards(prologue())
    kinds = a.kind.split('+')
    lines = []; stubs = []; nn = 0
    if len(kinds) == 2:
        lines += [f"s_bitcmp1_b32 s2, {OPT['clsbit']}", "s_cbranch_scc0 L_cls0", f"s_getpc_b64 s[{s_ret}:{s_ret+1}]", "L_pc:",
                  f"s_add_u32 s{s_ret}, s{s_ret}, L_cls1-L_pc", f"s_addc_u32 s{s_ret+1}, s{s_ret+1}, 0", f"s_setpc_b64 s[{s_ret}:{s_ret+1}]"]
    for ci, kind in enumerate(kinds):
        body, nstamp = build_main(kind, a.stamps, (' ' + a.st) if a.st else '')
        body = insert_waits(body)
        if a.drop:
            dr = a.drop.split(',')
            body = [i for i in body if i.k not in dr]
        body, n1 = fix_hazards(body, a.v); nn += n1
        l1, s1 = compress(body, S(s_cnt), uid=f'C{ci}_')
        s1 = [x.replace('L_rare', f'L_rare{ci}') for x in s1]
        lines += [f"L_cls{ci}:"] + l1
        if a.stamps: lines += stamp_out(nstamp)
        lines += ["s_endpgm"] + s1 + [x.replace('L_rare', f'L_rare{ci}') for x in rare_path()]
    hdr = open(f'cdna_kernels/{KN}.s.ref').read().split('\n')
    hdr = [l for l in hdr if l.startswith(';') and '@launch' not in l and 'Override launch' not in l and 'grid=ceil' not in l]
    out = hdr + [f"; @launch kernel={KN}_kernel grid=(256,1,1) block=(256,1,1) lds={LDS_BYTES}",
                 "; @launch kernel=reduce_kernel grid=(960,1,1) block=(256,1,1) lds=0",
                 '.amdgcn_target "amdgcn-amd-amdhsa--gfx950"', '.text',
                 f'.globl {KN}_kernel', '.p2align 8', f'.type {KN}_kernel,@function', f'{KN}_kernel:']
    out += ["s_cmp_lt_u32 s2, 256", "s_cbranch_scc1 L_go", "s_endpgm", "L_go:"]
    if OPT['half']: out += [f"s_and_b32 s3, s2, {OPT['half']}", "s_cbranch_scc0 L_go2", "s_endpgm", "L_go2:"]
    out += [i.t for i in pro] + lines
    out += ['.globl reduce_kernel', '.p2align 8', '.type reduce_kernel,@function', 'reduce_kernel:'] + reduce_kernel()
    out.append(DESC.format(name=KN + '_kernel', nv=512, ns=102, acc=256))
    out.append(DESC.format(name='reduce_kernel', nv=56, ns=40, acc=56))
    open(a.o, 'w').write("\n".join(out) + "\n")
    print(f"wrote {a.o}: {len(out)} lines, {nn} hazard nops, stamps {nstamp}")

if __name__ == '__main__':
    main()
```

```python
import sys, math, argparse, struct
sys.path.insert(0, 'gen')
from asmlib import *

KN = 'concat_heads__mha_block_cached__gqa_block_cached__near_ridge'
SLOT = 24576; NBUF = 4; LEAD = 3; XT = 12288
XA = 0x18000; XB_ = 0x20000; XTOG = XA ^ XB_
LDS_BYTES = XB_ + 2 * XT
EXW = 18432
PART_WG = 122880
STAMP_OFF = 256 * PART_WG
H = 192 * 1280

OPT = {'wq0': '', 'wq1': '', 'wo0': '', 'wo1': '', 'x0': '', 'x1': '', 'kv': ' nt', 'st': ' sc1', 'rot': 1,
       'cmask': 0xAAAAAAAA, 'half': 0, 'early': 1, 'sp0': -1, 'spd': 2, 'fuse': 1, 'wper': 3, 'ovl': 1, 'outst': '', 'sleep': 2, 'polls': 3000, 'rld': ' sc1', 'rst': 0, 'cyc': 0, 'cpf': 1, 'pipe': 1, 'dend': 36, 'rot2': 1}

sK, sV, sWQ, sWO, sX, sWS = 4, 8, 12, 16, 20, 24
s_w6144, s_k, s_v, s_wq, s_wo, s_x, s_xwr, s_tmp, s_cnt, s_c = range(28, 38)
s_wqb, s_wql, s_xb, s_xl, s_wob, s_wol, s_pt, s_ptb, s_ptl = range(38, 47)
s_ew, s_er0, s_er1, s_w, s_hq = range(47, 52)
s_ret = 52
s_t0 = 54
s_stamp = 64
v_l16 = 0; v_k = 1; v_v = 5; v_p = 13; v_x = 17
v_m, v_l = 19, 22
v_t = 25
vP = 40; vS = 52; vXF = 76; v_dkv, v_dwq, v_dwx = 100, 103, 106; vO = 112
vACC = (76, 52)
aQN = 0; aRES = 0; aQ = 144; aF = 216; aE1 = 240; aE0 = 242

def Oreg(dt, qt): return vO + (dt * 3 + qt) * 4
SB = [0]
def Sbase(): return (vS, vXF)[SB[0]]
def Sreg(t, qt): return Sbase() + (t * 3 + qt) * 4

class Slot:
    def __init__(self, typ, **kw):
        self.typ = typ; self.__dict__.update(kw)
        self.pre = []; self.gaps = [[] for _ in range(36)]; self.mf = []; self.load = [0] * 36
    def put(self, gap, item):
        if isinstance(item, I): item = [item]
        self.gaps[gap].append(item); self.load[gap] += sum(i.cost for i in item)

def spread(slots_gaps, items, cap=2, even=False):
    items = [[x] if isinstance(x, I) else x for x in items]
    if not items: return
    level = cap
    while True:
        plan = []; k = 0
        free = [max(0, level - s.load[g]) for s, g in slots_gaps]
        tot_free = sum(free); tot_it = sum(sum(i.cost for i in it) for it in items)
        used = 0; seen_free = 0
        for n, (s, g) in enumerate(slots_gaps):
            ld = s.load[g]; seen_free += free[n]
            while k < len(items):
                c = sum(i.cost for i in items[k])
                if ld + c > level and not (ld == 0 and c > level): break
                if even and tot_free > tot_it and (used + c) * tot_free > seen_free * tot_it + tot_free: break
                plan.append((s, g, items[k])); ld += c; k += 1; used += c
        if k == len(items): break
        if even: even = False
        else: level += 1
    for s, g, it in plan: s.put(g, it)

def frag_reads(sl, j):
    d = aF + (j % 6) * 4
    tag = ('f', sl.idx, j)
    buf = sl.idx % NBUF
    hi = buf >> 1; bo = (buf & 1) * SLOT
    if sl.typ == 'K':
        t, ks = divmod(j, 6)
        return [dsread('ds_read_b128', A(d, 4), V(v_k + hi * 2 + (ks & 1)), bo + t * 6144 + (ks >> 1) * 128, tag)]
    if sl.typ in ('V', 'Q'):
        off = bo + (j >> 2) * 128; a = V(v_v + hi * 4 + (j & 3))
        return [dsread('ds_read_b64_tr_b16', A(d, 2), a, off, tag), dsread('ds_read_b64_tr_b16', A(d + 2, 2), a, off + 6144, tag)]
    if sl.typ == 'P':
        u, nt = divmod(j, 2); a = V(v_p + hi * 2 + nt); off = bo + u * 4096
        return [dsread('ds_read_b64_tr_b16', A(d, 2), a, off, tag), dsread('ds_read_b64_tr_b16', A(d + 2, 2), a, off + 2048, tag)]

def x_reads(sl):
    return [dsread('ds_read_b128', V(vXF + (sl.j % 2) * 12 + qt * 4, 4), V(v_x + (sl.j & 1)),
                   ((sl.j >> 1) & 1) * XT + qt * 2048, ('x', sl.idx)) for qt in range(3)]

def wrapadd(reg, inc, lim, base):
    return [salu('s_add_u32', S(reg), S(reg), inc & 0xffffffff),
            [scmp('s_cmp_eq_u32', S(reg), S(lim)), salu('s_cselect_b32', S(reg), S(base), S(reg))]]
def bump(regs3, d): return [salu('s_add_u32', S(r), S(r), d & 0xffffffff) for r in regs3]

def dma_items(sl):
    tag = ('d', sl.idx)
    if sl.typ == 'K': srd, so, vo, dl = sK, s_k, v_dkv, 3072; upd = [salu('s_add_u32', S(s_k), S(s_k), 12288)]
    elif sl.typ == 'V': srd, so, vo, dl = sV, s_v, v_dkv, 3072; upd = [salu('s_add_u32', S(s_v), S(s_v), 12288)]
    elif sl.typ == 'Q':
        srd, so, vo, dl = sWQ, s_wq, v_dwq, 16 * 12288
        upd = wrapadd(s_wq, 32 * 12288, s_wql, s_wqb) if sl.j % 2 else [salu('s_add_u32', S(s_wq), S(s_wq), 32 * 12288)]
        if sl.j == 19: upd += bump((s_wq, s_wqb, s_wql), 384)
    elif sl.typ == 'P':
        srd, so, vo, dl = sWO, s_wo, v_dwx, 24 * 1280
        incs = [2 * H, 128 - 2 * H] if sl.nh == 2 else [2 * H, -H, 2 * H, 128 - 3 * H]
        if sl.hh < sl.nh - 1: upd = [salu('s_add_u32', S(s_wo), S(s_wo), incs[sl.hh] & 0xffffffff)]
        else:
            upd = wrapadd(s_wo, incs[sl.hh], s_wol, s_wob)
            if sl.ch == 9 and sl.rnd == 0: upd += bump((s_wo, s_wob, s_wol), H)
    fl = OPT['kv'] if sl.typ in 'KV' else OPT[('wq' if sl.typ == 'Q' else 'wo') + str(sl.rnd)]
    srd = S(srd, 4); lb = (sl.idx % NBUF) * SLOT
    it = [salu('s_add_u32', 'm0', S(s_w6144), lb), salu('s_add_u32', S(s_tmp), S(so), dl)]
    it += [dma(V(vo + k), srd, S(so), 1024 * k, tag, fl) for k in range(3)]
    it += [salu('s_add_u32', 'm0', 'm0', 3072)] + upd[:1]
    it += [dma(V(vo + k), srd, S(s_tmp), 1024 * k, tag, fl) for k in range(3)]
    it += upd[1:]
    return it

def x_items(sl):
    fl = OPT['x' + str(sl.rnd)]
    xt = ('xd', sl.idx)
    it = []
    for h in range(2):
        it.append(salu('s_add_u32', 'm0', S(s_xwr), h * XT))
        if h == 1: it.append(salu('s_xor_b32', S(s_xwr), S(s_xwr), XTOG))
        it += [dma(V(v_dwx + k), S(sX, 4), S(s_x), 1024 * k, xt, fl) for k in range(3)]
        it += wrapadd(s_x, 128, s_xl, s_xb)
    return it

def build_mfmas(sl):
    mf = []
    wp = OPT['wper']
    for j in range(12):
        a = A(aF + (j % 6) * 4, 4)
        need = []
        if j % wp == 0: need = [('f', sl.idx, j + k) for k in range(wp)]
        if j == 0 and sl.typ == 'Q': need.append(('x', sl.idx))
        for qt in range(3):
            if sl.typ == 'K':
                t, ks = divmod(j, 6); SB[0] = (sl.i & 1) if OPT['pipe'] else 0
                d = V(Sreg(t, qt), 4); b = A(aQ + (ks * 3 + qt) * 4, 4); c = 0 if ks == 0 else d
            elif sl.typ == 'V':
                d = V(Oreg(j, qt), 4); b = V(vP + qt * 4, 4); c = 0 if sl.first else d
            elif sl.typ == 'Q':
                d = V(Oreg(j, qt), 4); b = V(vXF + (sl.j % 2) * 12 + qt * 4, 4); c = 0 if sl.j == 0 else d
            elif sl.typ == 'P':
                u, nt = divmod(j, 2); hh = sl.hh; ch = sl.ch
                d = V(vACC[ch % 2] + (nt * 3 + qt) * 4, 4)
                if sl.nh == 4 and hh < 2: b = A(aQN + hh * 72 + (u * 3 + qt) * 4, 4)
                else: b = V(vO + (hh % 2) * 72 + (u * 3 + qt) * 4, 4)
                c = 0 if (hh == 0 and u == 0 and (sl.rnd == 0 or sl.nh == 4)) else d
            mf.append(mfma(d, a, b, c, need=need if qt == 0 else ()))
    sl.mf = mf

def xrow(v, tmp, op):
    return [valu('v_mov_b32', V(tmp), V(v)), perm('v_permlane32_swap_b32', V(v), V(tmp)), valu(op, V(v), V(v), V(tmp)),
            valu('v_mov_b32', V(tmp), V(v)), perm('v_permlane16_swap_b32', V(v), V(tmp)), valu(op, V(v), V(v), V(tmp))]

def interleave(*lists):
    out = []
    for k in range(max(len(l) for l in lists)):
        for l in lists:
            if k < len(l): out.append(l[k])
    return out

def max8(x, vals):
    return [valu('v_max3_f32', V(x), V(vals[0]), V(vals[1]), V(vals[2])), valu('v_max3_f32', V(x), V(x), V(vals[3]), V(vals[4])),
            valu('v_max3_f32', V(x), V(x), V(vals[5]), V(vals[6])), valu('v_max_f32', V(x), V(x), V(vals[7]))]

def softmax_init():
    ch = []
    for qt in range(3):
        x = v_m + qt
        c = max8(x, [Sreg(t, qt) + r for t in range(2) for r in range(4)]) + xrow(x, v_t + qt, 'v_max_f32')
        c += [valu('v_mul_f32', V(x), S(s_c), V(x)), valu('v_mov_b32', V(v_l + qt), 0)]
        ch.append(c)
    return interleave(*ch)

def sm_fma(t):
    return [valu('v_fma_f32', V(Sreg(t, qt) + r), V(Sreg(t, qt) + r), S(s_c), '-' + V(v_m + qt)) for qt in range(3) for r in range(4)]
def sm_max(t):
    vals = [Sbase() + t * 12 + i for i in range(12)]
    x = v_t + 3
    if t == 0:
        o = [valu('v_max3_f32', V(x), V(vals[0]), V(vals[1]), V(vals[2]))]
        for i in range(3, 11, 2): o.append(valu('v_max3_f32', V(x), V(x), V(vals[i]), V(vals[i + 1])))
        o.append(valu('v_max_f32', V(x), V(x), V(vals[11])))
        return o
    return [valu('v_max3_f32', V(x), V(x), V(vals[i]), V(vals[i + 1])) for i in range(0, 12, 2)]
def sm_fmamax(t):
    f = sm_fma(t); m = sm_max(t)
    o = f[:4]; k = 0
    for i in range(4, 12, 2): o += f[i:i + 2] + [m[k]]; k += 1
    return o + m[k:]
def sm_check():
    return [[vcmp('v_cmp_lt_f32', 0x41000000, V(v_t + 3)),
             raw('s_cbranch_vccnz {L}_r', 'branch', ['vcc']), raw('{L}_b:', 'label'),
             raw('{L}_r:\ns_call_b64 s[%d:%d], L_rare_%d\ns_branch {L}_b' % (s_ret, s_ret + 1, SB[0]), 'stub')]]
def sm_exp():
    o = []
    order = [(t, r) for t in range(2) for r in range(4)]
    for k, (t, r) in enumerate(order):
        for qt in range(3): o.append(valu('v_exp_f32', V(Sreg(t, qt) + r), V(Sreg(t, qt) + r)))
        if k >= 1:
            pt, pr = order[k - 1]
            for qt in range(3): o.append(valu('v_add_f32', V(v_l + qt), V(v_l + qt), V(Sreg(pt, qt) + pr)))
            if pr % 2 == 1:
                for qt in range(3):
                    o.append(valu('v_cvt_pk_bf16_f32', V(vP + qt * 4 + pt * 2 + pr // 2), V(Sreg(pt, qt) + pr - 1), V(Sreg(pt, qt) + pr)))
    for qt in range(3): o.append(valu('v_cvt_pk_bf16_f32', V(vP + qt * 4 + 3), V(Sreg(1, qt) + 2), V(Sreg(1, qt) + 3)))
    tail = [valu('v_add_f32', V(v_l + qt), V(v_l + qt), V(Sreg(1, qt) + 3)) for qt in range(3)]
    return o, tail

def rare_path(name, sb):
    SB[0] = sb
    ch = []
    for qt in range(3):
        vals = [Sreg(t, qt) + r for t in range(2) for r in range(4)]
        x = v_t + 4 + qt; f = v_t + 7 + qt
        c = max8(x, vals) + xrow(x, v_t + qt, 'v_max_f32')
        c += [valu('v_max_f32', V(x), 0, V(x)), valu('v_add_f32', V(v_m + qt), V(v_m + qt), V(x)),
              valu('v_sub_f32', V(f), 0, V(x)), valu('v_exp_f32', V(f), V(f))]
        c += [valu('v_sub_f32', V(s), V(s), V(x)) for s in vals]
        c += [valu('v_mul_f32', V(v_l + qt), V(v_l + qt), V(f))]
        c += [valu('v_mul_f32', V(Oreg(dt, qt) + r), V(Oreg(dt, qt) + r), V(f)) for dt in range(12) for r in range(4)]
        ch.append(c)
    p, _ = fix_hazards([nop(7)] + interleave(*ch) + [nop(3)])
    return [name + ":"] + [i.t for i in p] + [f"s_setpc_b64 s[{s_ret}:{s_ret+1}]"]

def q_convert_u(u, dest):
    T = [vS + (u % 2) * 12 + 4 * qt for qt in range(3)]
    out = []
    for qt in range(3):
        for h in range(2):
            for k in range(2):
                s0 = Oreg(2 * u + h, qt) + 2 * k
                out.append(valu('v_cvt_pk_bf16_f32', V(T[qt] + h * 2 + k), V(s0), V(s0 + 1)))
    for op in ('v_permlane32_swap_b32', 'v_permlane16_swap_b32'):
        for qt in range(3):
            for k in range(2): out.append(perm(op, V(T[qt] + k), V(T[qt] + 2 + k)))
    for qt in range(3):
        for k in range(4): out.append(valu('v_accvgpr_write_b32', A(dest + (u * 3 + qt) * 4 + k), V(T[qt] + k)))
    return out

RL = 30
def e_head():
    out = interleave(*[xrow(v_l + qt, v_t + qt, 'v_add_f32') + [valu('v_rcp_f32', V(RL + 2 * qt), V(v_l + qt)),
                       valu('v_mov_b32', V(RL + 1 + 2 * qt), V(RL + 2 * qt))] for qt in range(3)])
    out += [valu('v_add_u32', V(36), S(s_ew), V(v_l16)), valu('v_add_u32', V(37), S(s_er0), V(v_l16)),
            valu('v_add_u32', V(38), S(s_er1), V(v_l16))]
    return out
def e_pack(u, eid, packed):
    T = vS + (u % 2) * 12
    o = []
    for qt in range(3):
        for h in range(2):
            s = Oreg(2 * u + h, qt)
            if packed:
                o += [valu('v_pk_mul_f32', V(s + 2 * k, 2), V(s + 2 * k, 2), V(RL + 2 * qt, 2)) for k in range(2)]
            else:
                o += [valu('v_mul_f32', V(s + k), V(s + k), V(RL + 2 * qt)) for k in range(4)]
    for qt in range(3):
        for h in range(2):
            s = Oreg(2 * u + h, qt)
            for k in range(2):
                o.append(valu('v_cvt_pk_bf16_f32', V(T + qt * 4 + h * 2 + k), V(s + 2 * k), V(s + 2 * k + 1)))
        o.append(dswrite('ds_write_b128', V(36), V(T + qt * 4, 4), (u * 3 + qt) * 1024, ('ew', eid)))
    return o
def e_tail(eid, toA):
    out = [barrier(need=[('ew', eid)])]
    for f in range(18):
        for hh in range(2):
            dst = A(aQN + hh * 72 + f * 4, 4) if toA else V(vO + hh * 72 + f * 4, 4)
            out.append(dsread('ds_read_b128', dst, V(37 + hh), f * 1024, ('er', eid)))
    out.append(barrier(need=[('er', eid)]))
    return out

def chunk_end(ch, store):
    acc = vACC[ch % 2]
    o = []
    for qt in range(3):
        for nt in range(2):
            for k in range(2):
                s = acc + (nt * 3 + qt) * 4 + 2 * k
                o.append(valu('v_cvt_pk_bf16_f32', V(vP + qt * 4 + nt * 2 + k), V(s), V(s + 1)))
        if store:
            o.append(bstore(V(vP + qt * 4, 4), V(v_l16), S(sWS, 4), S(s_pt), qt * 1024, ('st', ch), OPT['st']))
    if not store: o += [valu('v_accvgpr_write_b32', A(aRES + ch * 12 + i), V(vP + i)) for i in range(12)]
    else: o += wrapadd(s_pt, 12288, s_ptl, s_ptb)
    return o

def chunk_init(ch):
    acc = vACC[ch % 2]
    return [mfma(V(acc + (nt * 3 + qt) * 4, 4), A(aE1 if nt else aE0, 4), A(aRES + ch * 12 + qt * 4, 4), 0)
            for nt in range(2) for qt in range(3)]

def stamp(n): return [raw(f"{'s_memtime' if OPT['cyc'] else 's_memrealtime'} s[{s_stamp+2*n}:{s_stamp+2*n+1}]", 'smem')]

def prologue():
    P = []; a = P.append
    T = s_t0
    a(salu('s_and_b32', S(T), 's2', 7)); a(salu('s_lshr_b32', S(T + 1), 's2', 3))
    a(salu('s_lshr_b32', S(T + 2), S(T), 2))
    a(salu('s_mul_i32', S(T + 2), S(T + 2), 40))
    a(salu('s_add_u32', S(T + 4), 's0', S(T + 2))); a(salu('s_addc_u32', S(T + 5), 's1', 0))
    a(raw(f"s_load_dwordx8 s[68:75], s[{T+4}:{T+5}], 0", 'smem'))
    a(raw(f"s_load_dwordx2 s[76:77], s[{T+4}:{T+5}], 32", 'smem'))
    a(raw("s_load_dwordx2 s[78:79], s[0:1], 96", 'smem'))
    a(salu('s_and_b32', S(T), S(T), 3)); a(salu('s_lshl_b32', S(T), S(T), 1))
    a(salu('s_and_b32', S(T + 3), S(T + 1), 1)); a(salu('s_or_b32', S(s_hq), S(T), S(T + 3)))
    a(salu('s_lshr_b32', S(T + 1), S(T + 1), 1))
    a(valu('v_lshrrev_b32', V(v_t), 6, 'v0'))
    a(nop(0))
    a(raw(f"v_readfirstlane_b32 s{s_w}, v{v_t}", 'valu', [f'v{v_t}'], [f's{s_w}']))
    lane, n16, g, tmp, tmp2, row, sw = range(v_t, v_t + 7)
    a(valu('v_and_b32', V(lane), 63, 'v0'))
    a(valu('v_lshlrev_b32', V(v_l16), 4, V(lane)))
    W = s_w; Pp = T + 7; QH = T + 8; HQ = s_hq; B = T + 1; ROT = T + 2
    def swz(dst, r): a(valu('v_and_b32', V(dst), 6, V(r)))
    a(valu('v_lshrrev_b32', V(row), 3, V(lane)))
    swz(sw, row)
    a(valu('v_and_b32', V(tmp), 7, V(lane))); a(valu('v_xor_b32', V(tmp), V(tmp), V(sw)))
    a(valu('v_lshlrev_b32', V(tmp), 4, V(tmp)))
    a(valu('v_mul_u32_u24', V(row), 1280, V(row)))
    a(valu('v_add_u32', V(v_dwx), V(tmp), V(row)))
    a(valu('v_add_u32', V(v_dwx + 1), 8 * 1280 - 1024, V(v_dwx)))
    a(valu('v_add_u32', V(v_dwx + 2), 2 * (8 * 1280 - 1024), V(v_dwx)))
    a(salu('s_mov_b32', S(s_tmp), 0xAAAAAAB))
    for j in range(3):
        a(valu('v_add_u32', V(tmp), 64 * j, V(lane)))
        a(valu('v_mul_hi_u32', V(row), V(tmp), S(s_tmp)))
        swz(sw, row)
        a(valu('v_lshlrev_b32', V(sw), 4, V(sw)))
        a(valu('v_xor_b32', V(v_dkv + j), V(v_l16), V(sw)))
        a(valu('v_mul_u32_u24', V(tmp2), 24, V(row))); a(valu('v_sub_u32', V(tmp), V(tmp), V(tmp2)))
        a(valu('v_lshlrev_b32', V(tmp), 4, V(tmp))); a(valu('v_xor_b32', V(tmp), V(tmp), V(sw)))
        a(valu('v_lshrrev_b32', V(tmp2), 2, V(row))); a(valu('v_lshl_add_u32', V(row), V(tmp2), 2, V(row)))
        a(valu('v_mul_u32_u24', V(row), 12288, V(row)))
        a(valu('v_add_u32', V(tmp), V(tmp), V(row)))
        a(valu('v_subrev_u32', V(v_dwq + j), 1024 * j, V(tmp)))
    a(salu('s_lshr_b32', S(Pp), S(W), 1)); a(salu('s_and_b32', S(QH), S(W), 1))
    a(salu('s_mul_i32', S(s_w6144), S(W), 6144))
    a(salu('s_lshl_b32', S(T + 3), S(HQ), 2)); a(salu('s_lshl_b32', S(T + 9), S(Pp), 1))
    a(salu('s_add_u32', S(T + 9), S(T + 9), S(T + 3)))
    a(salu('s_mul_i32', S(ROT), S(B), 5 * OPT['rot'])); a(salu('s_lshr_b32', S(ROT), S(ROT), 3))
    if OPT['rot2']:
        a(salu('s_and_b32', S(s_tmp), S(HQ), 1)); a(salu('s_mul_i32', S(s_tmp), S(s_tmp), 5))
        a(salu('s_add_u32', S(ROT), S(ROT), S(s_tmp)))
        a(scmp('s_cmp_ge_u32', S(ROT), 10)); a(salu('s_cselect_b32', S(s_tmp), 10, 0)); a(salu('s_sub_u32', S(ROT), S(ROT), S(s_tmp)))
    a(salu('s_mul_i32', S(s_wqb), S(T + 9), 384)); a(salu('s_mul_i32', S(s_tmp), S(QH), 4 * 12288))
    a(salu('s_add_u32', S(s_wqb), S(s_wqb), S(s_tmp)))
    a(salu('s_add_u32', S(s_wql), S(s_wqb), 640 * 12288))
    a(salu('s_mul_i32', S(s_tmp), S(ROT), 64 * 12288)); a(salu('s_add_u32', S(s_wq), S(s_wqb), S(s_tmp)))
    a(salu('s_mul_i32', S(s_xb), S(B), 96)); a(salu('s_mul_i32', S(s_tmp), S(W), 24))
    a(salu('s_add_u32', S(s_xb), S(s_xb), S(s_tmp))); a(salu('s_mul_i32', S(s_xb), S(s_xb), 1280))
    a(salu('s_add_u32', S(s_xl), S(s_xb), 1280))
    a(salu('s_lshl_b32', S(T + 6), S(ROT), 7)); a(salu('s_add_u32', S(s_x), S(s_xb), S(T + 6)))
    a(salu('s_mul_i32', S(s_tmp), S(W), 3072)); a(salu('s_add_u32', S(s_xwr), S(s_tmp), XA))
    a(raw("s_waitcnt lgkmcnt(0)", 'wait'))
    for srd, p, n in ((sX, 68, 1966080), (sWQ, 74, 7864320)):
        a(salu('s_mov_b32', S(srd), S(p))); a(salu('s_mov_b32', S(srd + 1), S(p + 1)))
        a(salu('s_mov_b32', S(srd + 2), n)); a(salu('s_mov_b32', S(srd + 3), 0x20000))
    P2 = []; a = P2.append
    if OPT['cpf']:
        a(salu('s_lshr_b32', S(T), 's2', 3)); a(salu('s_lshl_b32', S(T), S(T), 2)); a(salu('s_add_u32', S(T), S(T), S(W)))
        a(salu('s_lshl_b32', S(T), S(T), 4))
        a(valu('v_and_b32', V(tmp), 15, V(lane))); a(valu('v_add_u32', V(tmp), S(T), V(tmp)))
        a(valu('v_lshlrev_b32', V(tmp), 7, V(tmp)))
        a(raw(f"v_min_u32 v{tmp}, L_code_end-L_go-4, v{tmp}", 'valu', [f'v{tmp}'], [f'v{tmp}']))
        a(I(f"global_load_dword v{v_t+10}, v{tmp}, s[{s_ret}:{s_ret+1}]", 'vload', [f'v{tmp}', f's{s_ret}', f's{s_ret+1}'], [f'v{v_t+10}'], tag=('cpf',)))
    for srd, p, n in ((sK, 70, 100663296), (sV, 72, 100663296), (sWO, 76, 7864320), (sWS, 78, 438042624)):
        a(salu('s_mov_b32', S(srd), S(p))); a(salu('s_mov_b32', S(srd + 1), S(p + 1)))
        a(salu('s_mov_b32', S(srd + 2), n)); a(salu('s_mov_b32', S(srd + 3), 0x20000))
    a(valu('v_and_b32', V(n16), 15, V(lane))); a(valu('v_lshrrev_b32', V(g), 4, V(lane)))
    a(salu('s_lshl_b32', S(s_k), S(B), 5)); a(salu('s_add_u32', S(s_k), S(s_k), S(T + 9)))
    a(salu('s_mul_i32', S(s_k), S(s_k), 196608))
    a(salu('s_mul_i32', S(s_cnt), S(QH), 6144)); a(salu('s_add_u32', S(s_k), S(s_k), S(s_cnt)))
    a(salu('s_mov_b32', S(s_v), S(s_k)))
    a(salu('s_mul_i32', S(s_wob), S(T + 3), 192)); a(salu('s_mul_i32', S(s_wol), S(W), 48))
    a(salu('s_add_u32', S(s_wob), S(s_wob), S(s_wol))); a(salu('s_mul_i32', S(s_wob), S(s_wob), 1280))
    a(salu('s_add_u32', S(s_wol), S(s_wob), 1280))
    a(salu('s_add_u32', S(s_wo), S(s_wob), S(T + 6)))
    a(salu('s_mul_i32', S(s_ptb), 's2', PART_WG)); a(salu('s_mul_i32', S(T), S(W), 3072))
    a(salu('s_add_u32', S(s_ptb), S(s_ptb), S(T))); a(salu('s_add_u32', S(s_ptl), S(s_ptb), PART_WG))
    a(salu('s_mul_i32', S(T), S(ROT), 12288)); a(salu('s_add_u32', S(s_pt), S(s_ptb), S(T)))
    c = (192 ** -0.5) * math.log2(math.e)
    a(salu('s_mov_b32', S(s_c), struct.unpack('<I', struct.pack('<f', c))[0]))
    a(salu('s_mul_i32', S(T), S(Pp), 12288))
    swz(sw, n16)
    a(valu('v_xor_b32', V(tmp), V(g), V(sw))); a(valu('v_lshlrev_b32', V(tmp), 4, V(tmp)))
    a(valu('v_mul_u32_u24', V(tmp2), 384, V(n16))); a(valu('v_add3_u32', V(v_k), V(tmp), V(tmp2), S(T)))
    a(valu('v_xor_b32', V(v_k + 1), 64, V(v_k)))
    a(valu('v_add_u32', V(v_k + 2), 2 * SLOT, V(v_k))); a(valu('v_add_u32', V(v_k + 3), 2 * SLOT, V(v_k + 1)))
    a(salu('s_add_u32', S(s_cnt), S(s_cnt), XA))
    a(valu('v_lshlrev_b32', V(tmp2), 7, V(n16))); a(valu('v_add3_u32', V(v_x), V(tmp), V(tmp2), S(s_cnt)))
    a(valu('v_xor_b32', V(v_x + 1), 64, V(v_x)))
    a(valu('v_lshrrev_b32', V(row), 2, V(lane)))
    swz(sw, row)
    a(valu('v_bfe_u32', V(tmp), V(lane), 1, 1))
    a(valu('v_xor_b32', V(tmp), V(tmp), V(sw))); a(valu('v_lshlrev_b32', V(tmp), 4, V(tmp)))
    a(valu('v_and_b32', V(tmp2), 1, V(lane))); a(valu('v_lshl_add_u32', V(tmp), V(tmp2), 3, V(tmp)))
    a(valu('v_mul_u32_u24', V(tmp2), 384, V(row))); a(valu('v_add3_u32', V(v_v), V(tmp), V(tmp2), S(T)))
    for j in (1, 2, 3): a(valu('v_xor_b32', V(v_v + j), j << 5, V(v_v)))
    for j in range(4): a(valu('v_add_u32', V(v_v + 4 + j), 2 * SLOT, V(v_v + j)))
    a(valu('v_lshl_add_u32', V(v_p), V(row), 7, V(tmp)))
    a(salu('s_lshl_b32', S(T), S(Pp), 6))
    a(valu('v_xor_b32', V(v_p), S(T), V(v_p))); a(valu('v_xor_b32', V(v_p + 1), 32, V(v_p)))
    for j in range(2): a(valu('v_add_u32', V(v_p + 2 + j), 2 * SLOT, V(v_p + j)))
    a(valu('v_lshrrev_b32', V(tmp), 2, V(n16)))
    a(vcmp('v_cmp_eq_u32', V(tmp), V(g)))
    a(valu('v_and_b32', V(tmp2), 1, V(n16))); a(valu('v_lshlrev_b32', V(tmp2), 4, V(tmp2)))
    a(salu('s_mov_b32', S(T), 0x3F80))
    a(valu('v_lshlrev_b32', V(tmp2), V(tmp2), S(T)))
    a(valu('v_cndmask_b32', V(tmp2), 0, V(tmp2)))
    a(valu('v_and_b32', V(tmp), 2, V(n16)))
    a(vcmp('v_cmp_eq_u32', 0, V(tmp)))
    a(valu('v_cndmask_b32', V(row), 0, V(tmp2)))
    a(valu('v_sub_u32', V(sw), V(tmp2), V(row)))
    for r in (240, 241, 244, 245): a(valu('v_accvgpr_write_b32', A(r), 0))
    a(valu('v_accvgpr_write_b32', A(242), V(row))); a(valu('v_accvgpr_write_b32', A(243), V(sw)))
    a(salu('s_mul_i32', S(s_ew), S(W), EXW)); a(salu('s_add_u32', S(s_ew), S(s_ew), XA))
    a(scmp('s_cmp_eq_u32', S(W), 3)); a(salu('s_cselect_b32', S(s_ew), 3 * SLOT, S(s_ew)))
    a(salu('s_mul_i32', S(s_er0), S(QH), EXW)); a(salu('s_add_u32', S(s_er0), S(s_er0), XA))
    a(salu('s_mov_b32', S(s_er1), XA + 2 * EXW)); a(scmp('s_cmp_eq_u32', S(QH), 1)); a(salu('s_cselect_b32', S(s_er1), 3 * SLOT, S(s_er1)))
    return P, [x for x in P2 if x is not None]

def make_seq(kind):
    seq = []
    def Q(r): return [Slot('Q', j=j, rnd=r) for j in range(20)]
    def Aa(r):
        if not OPT['pipe']: return [Slot(t, i=i, rnd=r, first=(i == 0)) for i in range(16) for t in 'KV']
        o = [('K', 0)]
        for i in range(15): o += [('K', i + 1), ('V', i)]
        o.append(('V', 15))
        return [Slot(t, i=i, rnd=r, first=(i == 0)) for t, i in o]
    def Pp(r): return [Slot('P', j=j, rnd=r, nh=2, ch=j // 2, hh=j % 2) for j in range(20)]
    def P4(): return [Slot('P', j=j, rnd=1, nh=4, ch=j // 4, hh=j % 4) for j in range(40)]
    if kind == 'X': seq = Q(0) + Aa(0) + Pp(0) + Q(1) + Aa(1) + Pp(1)
    elif kind == 'W': seq = Q(0) + Q(1) + Aa(0) + Aa(1) + P4()
    for n, s in enumerate(seq): s.idx = n
    return seq

def flat(items):
    o = []
    for it in items: o += flat(it) if isinstance(it, list) else [it]
    return o

def build_main(kind, stamps, pro2):
    seq = make_seq(kind)
    N = len(seq)
    for s in seq: build_mfmas(s)
    head = flat(x_items(seq[0])[:6]) + flat(dma_items(seq[0])) + flat(x_items(seq[0])[6:])
    for n in range(1, LEAD): head += flat(dma_items(seq[n]))
    head += pro2
    head.append(barrier(need=[('d', 0), ('xd', 0)]))
    head += x_reads(seq[0])
    for j in range(5): head += frag_reads(seq[0], j)
    nstamp = 0
    fine = stamps and OPT['sp0'] >= 0
    if stamps: head = stamp(0) + [raw("s_memtime s[96:97]", 'smem')] + head + stamp(1); nstamp = 2
    post = []
    if fine:
        stamps = False
        for k in range(11):
            if OPT['sp0'] + k * OPT['spd'] < N:
                seq[OPT['sp0'] + k * OPT['spd']].put(0, stamp(nstamp)); nstamp += 1
    wp = OPT['wper']
    for n, s in enumerate(seq):
        nx = seq[n + 1] if n + 1 < N else None
        pv = seq[n - 1] if n else None
        for j in range(wp, 9, wp): s.load[3 * j - 1] += 1
        s.load[35] += 1
        for j in range(5, 12):
            for k, r in enumerate(frag_reads(s, j)): s.put(3 * (j - 5) + k, r)
        if nx is not None:
            need = [('f', s.idx, 11), ('d', nx.idx)] + ([('xd', nx.idx)] if nx.typ == 'Q' and nx.j % 4 == 0 else [])
            s.put(26, barrier(need=need)); s.load[26] += 1
            if nx.typ == 'Q' and nx.j % 4 == 0 and nx.idx > 0:
                s.put(24, valu('v_xor_b32', V(v_x), XTOG, V(v_x))); s.put(25, valu('v_xor_b32', V(v_x + 1), XTOG, V(v_x + 1)))
            rr = [frag_reads(nx, j) for j in range(5)]
            xr = x_reads(nx) if nx.typ == 'Q' else []
            spread([(s, g) for g in range(27, 32)], flat(rr[0] + xr[:1] + rr[1] + xr[1:] + rr[2]))
            spread([(s, g) for g in range(30, 34)], rr[3])
            spread([(s, g) for g in range(32, 36)], rr[4])
        its = dma_items(seq[n + LEAD]) if n + LEAD < N else []
        if n + 4 < N and seq[n + 4].typ == 'Q' and seq[n + 4].j % 4 == 0: its = its + x_items(seq[n + 4])[:6]
        if n + 3 < N and n >= 1 and seq[n + 3].typ == 'Q' and seq[n + 3].j % 4 == 0: its = its + x_items(seq[n + 3])[6:]
        s.dma = its
        s.early = bool(s.typ == 'V' and OPT['early'] and its and not OPT['pipe'])
    for n, s in enumerate(seq):
        nx = seq[n + 1] if n + 1 < N else None
        if not s.early: spread([(s, g) for g in range(0, OPT['dend'])], s.dma, even=True)
        if s.typ == 'K' and stamps and s.i == 8: s.pre = stamp(nstamp) + s.pre; nstamp += 1
        if OPT['pipe'] and s.typ in 'KV':
            if s.typ == 'K' and s.i == 0:
                SB[0] = 0
                nx.pre += softmax_init() + sm_fma(0) + sm_fma(1)
            elif s.typ == 'K':
                SB[0] = (s.i - 1) & 1
                ex, tail = sm_exp()
                spread([(s, g) for g in range(0, 35)], ex + tail)
            elif s.i < 15:
                SB[0] = (s.i + 1) & 1
                spread([(s, g) for g in range(3, 36)], sm_fmamax(0) + sm_fmamax(1), even=True)
                nx.pre += sm_check()
                if s.i == 14:
                    ex, tail = sm_exp()
                    nx.pre += ex
                    spread([(nx, g) for g in range(0, 6)], tail)
        elif s.typ == 'K':
            SB[0] = 0
            ex, tail = sm_exp()
            if s.first: rest = softmax_init() + sm_fma(0) + sm_fma(1) + ex
            else:
                spread([(s, g) for g in range(20, 36)], sm_fmamax(0))
                rest = sm_fmamax(1) + sm_check() + ex
            if nx.early:
                d = list(nx.dma); o = d[:2]; d = d[2:]
                step = max(1, len(rest) // (len(d) + 1))
                for k2, it in enumerate(rest):
                    o.append(it)
                    if k2 % step == step - 1 and d: o.append(d.pop(0))
                rest = o + d
            nx.pre += rest
            spread([(nx, g) for g in range(0, 6)], tail)
        if s.typ == 'Q' and s.j == 19:
            dest = aQN if (kind == 'W' and s.rnd == 1) else aQ
            cv = [q_convert_u(u, dest) for u in range(6)]
            k0 = 0
            if OPT['ovl']:
                spread([(s, g) for g in range(9, 20)], cv[0]); spread([(s, g) for g in range(20, 36)], cv[1]); k0 = 2
            nx.pre = flat(cv[k0:]) + nx.pre
            if stamps: nx.pre = nx.pre + stamp(nstamp); nstamp += 1
        if s.typ == 'V' and s.i == 15:
            pre = []
            if stamps: pre += stamp(nstamp); nstamp += 1
            toA = (kind == 'W' and s.rnd == 0)
            if toA: pre += [valu('v_accvgpr_mov_b32', A(aQ + k), A(aQN + k)) for k in range(72)]
            k0 = 0
            if OPT['ovl']:
                spread([(s, g) for g in range(6, 14)], e_head())
                spread([(s, g) for g in range(14, 36)], [i for i in e_pack(0, s.rnd, False) if i.k != 'ds'], cap=2)
                pre += [i for i in e_pack(0, s.rnd, False) if i.k == 'ds']
                k0 = 1
            else: pre += e_head()
            for u in range(k0, 6): pre += e_pack(u, s.rnd, True)
            pre += e_tail(s.rnd, toA)
            if stamps: pre += stamp(nstamp); nstamp += 1
            nx.pre = pre + nx.pre
        if s.typ == 'P':
            if s.hh == 0 and s.rnd == 1 and s.nh == 2: s.pre += chunk_init(s.ch)
            if s.hh == s.nh - 1:
                ce = chunk_end(s.ch, s.rnd == 1)
                if s.ch == 9:
                    if stamps: ce = ce + stamp(nstamp); nstamp += 1
                    if nx is None: post += ce
                    else: nx.pre = ce + nx.pre
                else: spread([(seq[n + 1 + k], g) for k in range(s.nh) for g in range(36)][3:-3], ce, even=True)
    prog = list(head)
    for s in seq:
        prog.append(mark('m'))
        prog += flat(s.pre)
        for k in range(36):
            prog.append(s.mf[k]); prog += flat(s.gaps[k])
    prog.append(mark('m'))
    prog += flat(post)
    return prog, nstamp

def stamp_out(nstamp):
    o = ["s_waitcnt vmcnt(0) lgkmcnt(0)"]
    o.append(f"s_memrealtime s[{s_stamp+2*nstamp}:{s_stamp+2*nstamp+1}]")
    o.append(f"s_memtime s[98:99]")
    o.append("s_waitcnt lgkmcnt(0)")
    o.append(f"s_lshl_b32 s{s_tmp}, s2, 8")
    o.append(f"s_lshl_b32 s{s_cnt}, s{s_w}, 6")
    o.append(f"s_add_u32 s{s_tmp}, s{s_tmp}, s{s_cnt}")
    o.append(f"s_add_u32 s{s_tmp}, s{s_tmp}, {STAMP_OFF}")
    o.append("v_mov_b32 v1, 0")
    for n in range(nstamp + 1):
        o.append(f"v_mov_b32 v2, s{s_stamp+2*n}")
        o.append(f"buffer_store_dword v2, v1, s[{sWS}:{sWS+3}], s{s_tmp} offen offset:{4*n}")
    o.append(f"s_sub_u32 s{s_cnt}, s98, s96")
    o.append(f"v_mov_b32 v2, s{s_cnt}")
    o.append(f"buffer_store_dword v2, v1, s[{sWS}:{sWS+3}], s{s_tmp} offen offset:60")
    o.append(f"v_mov_b32 v2, {nstamp+1}")
    o.append(f"buffer_store_dword v2, v1, s[{sWS}:{sWS+3}], s{s_tmp} offen offset:56")
    return o

def reduce_frag_code(a, fs, pb, br, b, nf, ldfl, vb=112):
    for k in range(nf):
        a(f"s_lshl_b32 s{s_t0}, s{fs[k]}, 10"); a(f"s_add_u32 s{s_t0}, s{s_t0}, s{pb}")
        for hq in range(8):
            off = (((hq & 1) << 3) | (hq >> 1)) * PART_WG
            r = vb + (k * 8 + hq) * 4
            a(f"s_add_u32 s{s_t0+1}, s{s_t0}, {off}")
            a(f"buffer_load_dwordx4 v[{r}:{r+3}], v{v_l16}, s[{sWS}:{sWS+3}], s{s_t0+1} offen{ldfl}")
    for k in range(nf):
        f = fs[k]; t = s_t0
        a(f"s_mul_hi_u32 s{t}, s{f}, 0x15555556")
        a(f"s_mul_i32 s{t+1}, s{t}, 12"); a(f"s_sub_u32 s{t+1}, s{f}, s{t+1}")
        a(f"s_mul_hi_u32 s{t+2}, s{t+1}, 0x55555556")
        a(f"s_mul_i32 s{t+3}, s{t+2}, 3"); a(f"s_sub_u32 s{t+3}, s{t+1}, s{t+3}")
        a(f"s_and_b32 s{t+4}, s{t+2}, 1"); a(f"s_mul_i32 s{t+4}, s{t+4}, 48"); a(f"s_lshl_b32 s{t+3}, s{t+3}, 4")
        a(f"s_add_u32 s{t+4}, s{t+4}, s{t+3}")
        a(f"s_mul_i32 s{t+3}, s{b}, 96"); a(f"s_add_u32 s{t+4}, s{t+4}, s{t+3}")
        a(f"s_mul_i32 s{t+4}, s{t+4}, 2560")
        a(f"s_mul_i32 s{t+3}, s{br}, 1280"); a(f"s_add_u32 s{t+4}, s{t+4}, s{t+3}")
        a(f"s_lshl_b32 s{t+3}, s{t}, 7"); a(f"s_add_u32 s{t+4}, s{t+4}, s{t+3}")
        a(f"s_lshr_b32 s{t+3}, s{t+2}, 1"); a(f"s_lshl_b32 s{t+3}, s{t+3}, 6"); a(f"s_add_u32 s{t+4}, s{t+4}, s{t+3}")
        for hq in range(8):
            a(f"s_waitcnt vmcnt({(nf-k)*8 - 1 - hq + k})")
            for q in range(4):
                r = vb + (k * 8 + hq) * 4 + q
                if hq == 0:
                    a(f"v_lshlrev_b32 v{40+q}, 16, v{r}"); a(f"v_and_b32 v{44+q}, 0xffff0000, v{r}")
                else:
                    a(f"v_lshlrev_b32 v4, 16, v{r}"); a(f"v_and_b32 v5, 0xffff0000, v{r}")
                    a(f"v_add_f32 v{40+q}, v{40+q}, v4"); a(f"v_add_f32 v{44+q}, v{44+q}, v5")
        o = 48 + 4 * k
        for q in range(4): a(f"v_cvt_pk_bf16_f32 v{o+q}, v{40+q}, v{44+q}")
        a("s_nop 1")
        a(f"v_permlane32_swap_b32 v{o}, v{o+2}"); a(f"v_permlane32_swap_b32 v{o+1}, v{o+3}")
        a("s_nop 1")
        a(f"v_permlane16_swap_b32 v{o}, v{o+2}"); a(f"v_permlane16_swap_b32 v{o+1}, v{o+3}")
        a("s_nop 1")
        a(f"buffer_store_dwordx4 v[{o}:{o+3}], v2, s[{sK}:{sK+3}], s{t+4} offen{OPT['outst']}")

def fused_reduce(stamps=False):
    L = []; a = L.append
    def st(n):
        if stamps: a(f"s_memrealtime s[{s_stamp+2*n}:{s_stamp+2*n+1}]")
    sD = sV
    br, b, pb, msk, last, it = 28, 29, 30, 31, 32, 33
    fs = [34, 35, 36, 37]
    a("L_red:")
    a("s_load_dwordx4 s[60:63], s[0:1], 80")
    a(f"s_bfe_u32 s{br}, s2, 0x10002"); a(f"s_lshr_b32 s{b}, s2, 4")
    a(f"s_lshl_b32 s{pb}, s{b}, 4"); a(f"s_lshl_b32 s{it}, s{br}, 2"); a(f"s_add_u32 s{pb}, s{pb}, s{it}")
    a(f"s_mul_i32 s{pb}, s{pb}, {PART_WG}")
    a(f"v_lshrrev_b32 v3, 4, v{v_l16}")
    a("v_and_b32 v2, 15, v3"); a("v_mul_u32_u24 v2, 2560, v2")
    a("v_lshrrev_b32 v3, 4, v3"); a("v_lshl_add_u32 v2, v3, 4, v2")
    a(f"s_lshl_b32 s{it}, s{br}, 4"); a(f"s_add_u32 s{it}, s{it}, s{b}"); a(f"s_lshl_b32 s{it}, s{it}, 2")
    a(f"v_mov_b32 v6, s{it}")
    a("v_mov_b32 v7, 0")
    a(f"v_lshlrev_b32 v9, 5, v6")
    a(f"v_add_u32 v9, {STAMP_OFF + 65536}, v9")
    a(f"buffer_load_dword v10, v9, s[{sWS}:{sWS+3}], 0 offen sc1")
    a("s_waitcnt lgkmcnt(0)")
    a(f"s_mov_b32 s{sK}, s60"); a(f"s_mov_b32 s{sK+1}, s61"); a(f"s_mov_b32 s{sK+2}, 3932160"); a(f"s_mov_b32 s{sK+3}, 0x20000")
    a(f"s_mov_b32 s{sD}, s62"); a(f"s_mov_b32 s{sD+1}, s63"); a(f"s_mov_b32 s{sD+2}, 256"); a(f"s_mov_b32 s{sD+3}, 0x20000")
    a("s_waitcnt vmcnt(0)")
    a("s_barrier")
    st(8)
    a(f"s_cmp_lg_u32 s{s_w}, 0"); a("s_cbranch_scc1 L_red_get")
    a("s_mov_b64 exec, 1")
    a("v_mov_b32 v8, 1")
    a(f"buffer_atomic_add v8, v6, s[{sD}:{sD+3}], 0 offen sc0")
    a(f"s_lshl_b32 s{msk}, 1, s{s_hq}")
    a(f"s_mov_b32 s{it}, 0")
    a("s_waitcnt vmcnt(0)")
    a(f"v_readfirstlane_b32 s{last}, v8")
    st(9)
    a("s_nop 3")
    a(f"s_cmp_eq_u32 s{last}, 7"); a(f"s_cselect_b32 s{last}, 0x100, 0"); a("s_cbranch_scc0 L_red_poll")
    a("v_add_u32 v10, 1, v10")
    a(f"buffer_store_dword v10, v9, s[{sWS}:{sWS+3}], 0 offen sc1")
    a("s_branch L_red_pub")
    a("L_red_poll:")
    a(f"buffer_load_dword v8, v9, s[{sWS}:{sWS+3}], 0 offen sc1")
    a(f"s_add_u32 s{it}, s{it}, 1")
    a("s_waitcnt vmcnt(0)")
    a("v_cmp_ne_u32 vcc, v8, v10")
    a("s_cbranch_vccnz L_red_pub")
    a(f"s_sleep {OPT['sleep']}")
    a(f"s_cmp_lt_u32 s{it}, {OPT['polls']}"); a("s_cbranch_scc1 L_red_poll")
    a(f"v_mov_b32 v8, s{msk}")
    a(f"buffer_atomic_or v8, v6, s[{sD}:{sD+3}], 0 offen offset:128 sc0")
    a("s_waitcnt vmcnt(0)")
    a("v_mov_b32 v8, 0")
    a(f"buffer_atomic_add v8, v6, s[{sD}:{sD+3}], 0 offen sc0")
    a("s_waitcnt vmcnt(0)")
    a(f"v_readfirstlane_b32 s{s_t0}, v8")
    a("s_nop 3")
    a(f"s_cmp_eq_u32 s{s_t0}, 8"); a(f"s_cselect_b32 s{msk}, s{msk}, 0")
    a("L_red_pub:")
    a(f"s_or_b32 s{msk}, s{msk}, s{last}")
    a(f"v_mov_b32 v8, s{msk}")
    a("ds_write_b32 v7, v8")
    a("s_waitcnt lgkmcnt(0)")
    a("s_mov_b64 exec, -1")
    a("L_red_get:")
    a("s_barrier")
    a("ds_read_b32 v8, v7")
    a("s_waitcnt lgkmcnt(0)")
    a(f"v_readfirstlane_b32 s{msk}, v8")
    st(10)
    a("s_nop 3")
    a(f"s_and_b32 s{last}, s{msk}, 0x100"); a(f"s_and_b32 s{msk}, s{msk}, 0xff")
    a("L_red_loop:")
    a(f"s_cmp_eq_u32 s{msk}, 0"); a("s_cbranch_scc1 L_red_next")
    a(f"s_ff1_i32_b32 s{it}, s{msk}"); a(f"s_bitset0_b32 s{msk}, s{it}")
    a(f"s_mul_i32 s{it}, s{it}, 15")
    for k in range(4):
        a(f"s_add_u32 s{fs[k]}, s{s_w}, {4*k}")
        if k == 3: a(f"s_min_u32 s{fs[k]}, s{fs[k]}, 14")
        a(f"s_add_u32 s{fs[k]}, s{fs[k]}, s{it}")
    reduce_frag_code(a, fs, pb, br, b, 4, OPT['rld'])
    st(11)
    a("s_branch L_red_loop")
    a("L_red_next:")
    a(f"s_cmp_eq_u32 s{last}, 0"); a("s_cbranch_scc1 L_red_done")
    a("s_barrier")
    a(f"s_mov_b32 s{last}, 0")
    a(f"s_cmp_lg_u32 s{s_w}, 0"); a("s_cbranch_scc1 L_red_get")
    a("s_mov_b64 exec, 1")
    a("v_mov_b32 v8, 0")
    a(f"buffer_atomic_or v8, v6, s[{sD}:{sD+3}], 0 offen offset:128 sc0")
    a("s_waitcnt vmcnt(0)")
    a(f"v_readfirstlane_b32 s{msk}, v8")
    a("s_nop 3")
    a("s_branch L_red_pub")
    a("L_red_done:")
    return L

def reduce_kernel():
    L = []; a = L.append
    a("s_cmp_ge_u32 s2, 960"); a("s_cbranch_scc1 R_end")
    a("s_load_dwordx2 s[12:13], s[0:1], 96"); a("s_load_dwordx2 s[14:15], s[0:1], 80")
    a("v_lshrrev_b32 v1, 6, v0"); a("s_nop 0"); a("v_readfirstlane_b32 s3, v1")
    a("v_and_b32 v3, 63, v0")
    a("s_nop 2")
    a("s_lshl_b32 s16, s2, 2"); a("s_add_u32 s16, s16, s3")
    a("s_mul_hi_u32 s17, s16, 0x2222223")
    a("s_mul_i32 s18, s17, 120"); a("s_sub_u32 s34, s16, s18")
    a("s_lshr_b32 s28, s17, 4"); a("s_and_b32 s29, s17, 15")
    a("s_lshl_b32 s30, s29, 4"); a("s_lshl_b32 s22, s28, 2"); a("s_add_u32 s30, s30, s22")
    a(f"s_mul_i32 s30, s30, {PART_WG}")
    a(f"v_lshlrev_b32 v{v_l16}, 4, v3")
    a("v_and_b32 v2, 15, v3"); a("v_mul_u32_u24 v2, 2560, v2")
    a("v_lshrrev_b32 v3, 4, v3"); a("v_lshl_add_u32 v2, v3, 4, v2")
    a("s_waitcnt lgkmcnt(0)")
    a(f"s_mov_b32 s{sWS}, s12"); a(f"s_mov_b32 s{sWS+1}, s13"); a(f"s_mov_b32 s{sWS+2}, 438042624"); a(f"s_mov_b32 s{sWS+3}, 0x20000")
    a(f"s_mov_b32 s{sK}, s14"); a(f"s_mov_b32 s{sK+1}, s15"); a(f"s_mov_b32 s{sK+2}, 3932160"); a(f"s_mov_b32 s{sK+3}, 0x20000")
    reduce_frag_code(a, [34], 30, 28, 29, 1, "", vb=8)
    a("R_end:")
    a("s_endpgm")
    return L

DESC = """.section .rodata,"a"
.p2align 6
.amdhsa_kernel {name}
  .amdhsa_next_free_vgpr {nv}
  .amdhsa_next_free_sgpr {ns}
  .amdhsa_accum_offset {acc}
  .amdhsa_group_segment_fixed_size 0
  .amdhsa_kernarg_size 104
  .amdhsa_user_sgpr_count 2
  .amdhsa_user_sgpr_kernarg_segment_ptr 1
  .amdhsa_system_sgpr_workgroup_id_x 1
.end_amdhsa_kernel
"""
def far_jump(lbl, uid):
    return [f"s_getpc_b64 s[{s_ret}:{s_ret+1}]", f"{uid}:", f"s_add_u32 s{s_ret}, s{s_ret}, {lbl}-{uid}",
            f"s_addc_u32 s{s_ret+1}, s{s_ret+1}, 0", f"s_setpc_b64 s[{s_ret}:{s_ret+1}]"]

def main():
    ap = argparse.ArgumentParser()
    ap.add_argument('-o', default=f'cdna_kernels/{KN}.s')
    ap.add_argument('--kind', default='X+W')
    ap.add_argument('--stamps', action='store_true')
    ap.add_argument('-v', action='store_true')
    ap.add_argument('--drop', default='')
    ap.add_argument('--opt', default='')
    a = ap.parse_args()
    for kv in filter(None, a.opt.split(',')):
        k, v = kv.split('=')
        fl = '' if v == 'df' else ' ' + v.replace('+', ' ')
        if k == 'w':
            for kk in ('wq0', 'wq1', 'wo0', 'wo1', 'x0', 'x1'): OPT[kk] = fl
        elif isinstance(OPT[k], int): OPT[k] = int(v, 0)
        else: OPT[k] = fl
    if not OPT['fuse'] and OPT['st'] == ' sc1': OPT['st'] = ''
    p1, p2 = prologue()
    p1, _ = fix_hazards(p1)
    kinds = a.kind.split('+')
    lines = []; nn = 0
    if len(kinds) == 2:
        lines += [f"s_lshr_b32 s{s_cnt}, s2, 3", f"s_mov_b32 s{s_tmp}, {hex(OPT['cmask'])}", f"s_bitcmp1_b32 s{s_tmp}, s{s_cnt}",
                  "s_cbranch_scc0 L_cls0"] + far_jump('L_cls1', 'L_pc')
    for ci, kind in enumerate(kinds):
        body, nstamp = build_main(kind, a.stamps, p2)
        body = insert_waits(body)
        if a.drop:
            dr = a.drop.split(',')
            body = [i for i in body if i.k not in dr]
        body, n1 = fix_hazards(body, a.v); nn += n1
        l1, s1 = compress(body, S(s_cnt), uid=f'C{ci}_')
        s1 = [x.replace('L_rare', f'L_rare{ci}') for x in s1]
        lines += [f"L_cls{ci}:"]
        if OPT['cpf']: lines += [f"s_getpc_b64 s[{s_ret}:{s_ret+1}]", f"L_cp{ci}:", f"s_sub_u32 s{s_ret}, s{s_ret}, L_cp{ci}-L_go", f"s_subb_u32 s{s_ret+1}, s{s_ret+1}, 0"]
        lines += l1
        if a.stamps: lines += [f"s_mov_b32 s3, {12 if OPT['rst'] else nstamp}"]
        if ci < len(kinds) - 1: lines += far_jump('L_fin', f'L_pf{ci}')
        else: lines += ["s_branch L_fin"]
        lines += s1 + rare_path(f'L_rare{ci}_0', 0) + rare_path(f'L_rare{ci}_1', 1)
    lines += ["L_fin:"]
    NS = 12
    if a.stamps: lines += [f"s_memrealtime s[{s_stamp+2*NS}:{s_stamp+2*NS+1}]"]
    if OPT['fuse']: lines += fused_reduce(a.stamps and OPT['rst'])
    if a.stamps:
        so = stamp_out(NS + 1)
        so = [x.replace(f"v_mov_b32 v2, {NS+2}", "v_mov_b32 v2, s3") for x in so]
        lines += ["s_mov_b64 exec, -1"] + so
    lines += ["s_endpgm"]
    hdr = open(f'cdna_kernels/{KN}.s.ref').read().split('\n')
    hdr = [l for l in hdr if l.startswith(';') and '@launch' not in l and 'Override launch' not in l and 'grid=ceil' not in l]
    if OPT['fuse']: out = hdr + [f"; @launch grid=(256,1,1) block=(256,1,1) lds={LDS_BYTES}"]
    else: out = hdr + [f"; @launch kernel={KN}_kernel grid=(256,1,1) block=(256,1,1) lds={LDS_BYTES}",
                       "; @launch kernel=reduce_kernel grid=(960,1,1) block=(256,1,1) lds=0"]
    out += ['.amdgcn_target "amdgcn-amd-amdhsa--gfx950"', '.text',
            f'.globl {KN}_kernel', '.p2align 8', f'.type {KN}_kernel,@function', f'{KN}_kernel:']
    out += ["s_cmp_lt_u32 s2, 256", "s_cbranch_scc1 L_go", "s_endpgm", "L_go:"]
    if OPT['half']: out += [f"s_and_b32 s3, s2, {OPT['half']}", "s_cbranch_scc0 L_go2", "s_endpgm", "L_go2:"]
    out += [i.t for i in p1] + lines + ["L_code_end:"]
    if not OPT['fuse']:
        out += ['.globl reduce_kernel', '.p2align 8', '.type reduce_kernel,@function', 'reduce_kernel:'] + reduce_kernel()
    out.append(DESC.format(name=KN + '_kernel', nv=512, ns=102, acc=256))
    if not OPT['fuse']: out.append(DESC.format(name='reduce_kernel', nv=72, ns=72, acc=72))
    open(a.o, 'w').write("\n".join(out) + "\n")
    print(f"wrote {a.o}: {len(out)} lines, {nn} hazard nops")

if __name__ == '__main__':
    main()
```

```python
import sys, math, argparse, struct
sys.path.insert(0, 'gen')
from asmlib import *

KN = 'concat_heads__mha_block_cached__gqa_block_cached__near_ridge'
SLOT = 24576; NBUF = 4; LEAD = 3; XT = 12288
XA = 0x18000; XB_ = 0x20000; XTOG = XA ^ XB_
LDS_BYTES = XB_ + 2 * XT
EXW = 18432
PART_WG = 122880
STAMP_OFF = 256 * PART_WG
H = 192 * 1280

OPT = {'wq0': '', 'wq1': '', 'wo0': '', 'wo1': '', 'x0': '', 'x1': '', 'kv': ' nt', 'st': ' sc1', 'rot': 1,
       'cmask': 0xAAAAAAAA, 'half': 0, 'early': 1, 'sp0': -1, 'spd': 2, 'fuse': 1, 'wper': 3, 'ovl': 1, 'outst': ' sc1', 'sleep': 2, 'polls': 3000, 'rld': ' sc1', 'rst': 0, 'cyc': 0, 'cpf': 1, 'pipe': 1, 'dend': 36, 'rot2': 1, 'pat': '01', 'mac': 1, 'hold': 0, 'nost': 0, 'pf': 0, 'pfs': 4, 'pfd': 4, 'ntp': 0}

sK, sV, sWQ, sWO, sX, sWS = 4, 8, 12, 16, 20, 24
s_w6144, s_k, s_v, s_wq, s_wo, s_x, s_xwr, s_tmp, s_cnt, s_c = range(28, 38)
s_wqb, s_wql, s_xb, s_xl, s_wob, s_wol, s_pt, s_ptb, s_ptl = range(38, 47)
s_ew, s_er0, s_er1, s_w, s_hq = range(47, 52)
s_ret = 52
s_t0 = 54
s_stamp = 64
v_l16 = 0; v_k = 1; v_v = 5; v_p = 13; v_x = 17
v_m, v_l = 19, 22
v_t = 25
vP = 40; vS = 52; vXF = 76; v_dkv, v_dwq, v_dwx = 100, 103, 106; vO = 112
vACC = (76, 52)
aQN = 0; aRES = 0; aQ = 144; aF = 216; aE1 = 240; aE0 = 242

def Oreg(dt, qt): return vO + (dt * 3 + qt) * 4
SB = [0]
def Sbase(): return (vS, vXF)[SB[0]]
def Sreg(t, qt): return Sbase() + (t * 3 + qt) * 4

class Slot:
    def __init__(self, typ, **kw):
        self.typ = typ; self.__dict__.update(kw)
        self.pre = []; self.gaps = [[] for _ in range(36)]; self.mf = []; self.load = [0] * 36
    def put(self, gap, item):
        if isinstance(item, I): item = [item]
        self.gaps[gap].append(item); self.load[gap] += sum(i.cost for i in item)

def spread(slots_gaps, items, cap=2, even=False):
    items = [[x] if isinstance(x, I) else x for x in items]
    if not items: return
    level = cap
    while True:
        plan = []; k = 0
        free = [max(0, level - s.load[g]) for s, g in slots_gaps]
        tot_free = sum(free); tot_it = sum(sum(i.cost for i in it) for it in items)
        used = 0; seen_free = 0
        for n, (s, g) in enumerate(slots_gaps):
            ld = s.load[g]; seen_free += free[n]
            while k < len(items):
                c = sum(i.cost for i in items[k])
                if ld + c > level and not (ld == 0 and c > level): break
                if even and tot_free > tot_it and (used + c) * tot_free > seen_free * tot_it + tot_free: break
                plan.append((s, g, items[k])); ld += c; k += 1; used += c
        if k == len(items): break
        if even: even = False
        else: level += 1
    for s, g, it in plan: s.put(g, it)

def frag_reads(sl, j):
    d = aF + (j % 6) * 4
    tag = ('f', sl.idx, j)
    buf = sl.idx % NBUF
    hi = buf >> 1; bo = (buf & 1) * SLOT
    if sl.typ == 'K':
        t, ks = divmod(j, 6)
        return [dsread('ds_read_b128', A(d, 4), V(v_k + hi * 2 + (ks & 1)), bo + t * 6144 + (ks >> 1) * 128, tag)]
    if sl.typ in ('V', 'Q'):
        off = bo + (j >> 2) * 128; a = V(v_v + hi * 4 + (j & 3))
        return [dsread('ds_read_b64_tr_b16', A(d, 2), a, off, tag), dsread('ds_read_b64_tr_b16', A(d + 2, 2), a, off + 6144, tag)]
    if sl.typ == 'P':
        u, nt = divmod(j, 2); a = V(v_p + hi * 2 + nt); off = bo + u * 4096
        return [dsread('ds_read_b64_tr_b16', A(d, 2), a, off, tag), dsread('ds_read_b64_tr_b16', A(d + 2, 2), a, off + 2048, tag)]

def x_reads(sl):
    return [dsread('ds_read_b128', V(vXF + (sl.j % 2) * 12 + qt * 4, 4), V(v_x + (sl.j & 1)),
                   ((sl.j >> 1) & 1) * XT + qt * 2048, ('x', sl.idx)) for qt in range(3)]

def wrapadd(reg, inc, lim, base):
    return [salu('s_add_u32', S(reg), S(reg), inc & 0xffffffff),
            [scmp('s_cmp_eq_u32', S(reg), S(lim)), salu('s_cselect_b32', S(reg), S(base), S(reg))]]
def bump(regs3, d): return [salu('s_add_u32', S(r), S(r), d & 0xffffffff) for r in regs3]

def dma_items(sl):
    tag = ('d', sl.idx)
    if sl.typ == 'K': srd, so, vo, dl = sK, s_k, v_dkv, 3072; upd = [salu('s_add_u32', S(s_k), S(s_k), 12288)]
    elif sl.typ == 'V': srd, so, vo, dl = sV, s_v, v_dkv, 3072; upd = [salu('s_add_u32', S(s_v), S(s_v), 12288)]
    elif sl.typ == 'Q':
        srd, so, vo, dl = sWQ, s_wq, v_dwq, 16 * 12288
        upd = wrapadd(s_wq, 32 * 12288, s_wql, s_wqb) if sl.j % 2 else [salu('s_add_u32', S(s_wq), S(s_wq), 32 * 12288)]
        if sl.j == 19: upd += bump((s_wq, s_wqb, s_wql), 384)
    elif sl.typ == 'P':
        srd, so, vo, dl = sWO, s_wo, v_dwx, 24 * 1280
        incs = [2 * H, 128 - 2 * H] if sl.nh == 2 else [2 * H, -H, 2 * H, 128 - 3 * H]
        if sl.hh < sl.nh - 1: upd = [salu('s_add_u32', S(s_wo), S(s_wo), incs[sl.hh] & 0xffffffff)]
        else:
            upd = wrapadd(s_wo, incs[sl.hh], s_wol, s_wob)
            if sl.ch == 9 and sl.rnd == 0: upd += bump((s_wo, s_wob, s_wol), H)
    fl = OPT['kv'] if sl.typ in 'KV' else OPT[('wq' if sl.typ == 'Q' else 'wo') + str(sl.rnd)]
    if sl.typ == 'Q' and sl.j < 2 * OPT['ntp']: fl = ' nt'
    if sl.typ == 'P' and sl.ch < OPT['ntp']: fl = ' nt'
    srd = S(srd, 4); lb = (sl.idx % NBUF) * SLOT
    it = [salu('s_add_u32', 'm0', S(s_w6144), lb), salu('s_add_u32', S(s_tmp), S(so), dl)]
    it += [dma(V(vo + k), srd, S(so), 1024 * k, tag, fl) for k in range(3)]
    it += [salu('s_add_u32', 'm0', 'm0', 3072)] + upd[:1]
    it += [dma(V(vo + k), srd, S(s_tmp), 1024 * k, tag, fl) for k in range(3)]
    it += upd[1:]
    return it

def x_items(sl):
    fl = OPT['x' + str(sl.rnd)]
    xt = ('xd', sl.idx)
    it = []
    for h in range(2):
        it.append(salu('s_add_u32', 'm0', S(s_xwr), h * XT))
        if h == 1: it.append(salu('s_xor_b32', S(s_xwr), S(s_xwr), XTOG))
        it += [dma(V(v_dwx + k), S(sX, 4), S(s_x), 1024 * k, xt, fl) for k in range(3)]
        it += wrapadd(s_x, 128, s_xl, s_xb)
    return it

def build_mfmas(sl):
    mf = []
    wp = OPT['wper']
    for j in range(12):
        a = A(aF + (j % 6) * 4, 4)
        need = []
        if j % wp == 0: need = [('f', sl.idx, j + k) for k in range(wp)]
        if j == 0 and sl.typ == 'Q': need.append(('x', sl.idx))
        for qt in range(3):
            if sl.typ == 'K':
                t, ks = divmod(j, 6); SB[0] = (sl.i & 1) if OPT['pipe'] else 0
                d = V(Sreg(t, qt), 4); b = A(aQ + (ks * 3 + qt) * 4, 4); c = 0 if ks == 0 else d
            elif sl.typ == 'V':
                d = V(Oreg(j, qt), 4); b = V(vP + qt * 4, 4); c = 0 if sl.first else d
            elif sl.typ == 'Q':
                d = A(aQN + (j * 3 + qt) * 4, 4) if sl.accA else V(Oreg(j, qt), 4)
                b = V(vXF + (sl.j % 2) * 12 + qt * 4, 4); c = 0 if sl.j == 0 else d
            elif sl.typ == 'P':
                u, nt = divmod(j, 2); hh = sl.hh; ch = sl.ch
                d = V(vACC[ch % 2] + (nt * 3 + qt) * 4, 4)
                if sl.nh == 4 and hh < 2: b = A(aQN + hh * 72 + (u * 3 + qt) * 4, 4)
                else: b = V(vO + (hh % 2) * 72 + (u * 3 + qt) * 4, 4)
                c = 0 if (hh == 0 and u == 0 and (sl.rnd == 0 or sl.nh == 4)) else d
            mf.append(mfma(d, a, b, c, need=need if qt == 0 else ()))
    sl.mf = mf

def xrow(v, tmp, op):
    return [valu('v_mov_b32', V(tmp), V(v)), perm('v_permlane32_swap_b32', V(v), V(tmp)), valu(op, V(v), V(v), V(tmp)),
            valu('v_mov_b32', V(tmp), V(v)), perm('v_permlane16_swap_b32', V(v), V(tmp)), valu(op, V(v), V(v), V(tmp))]

def interleave(*lists):
    out = []
    for k in range(max(len(l) for l in lists)):
        for l in lists:
            if k < len(l): out.append(l[k])
    return out

def max8(x, vals):
    return [valu('v_max3_f32', V(x), V(vals[0]), V(vals[1]), V(vals[2])), valu('v_max3_f32', V(x), V(x), V(vals[3]), V(vals[4])),
            valu('v_max3_f32', V(x), V(x), V(vals[5]), V(vals[6])), valu('v_max_f32', V(x), V(x), V(vals[7]))]

def softmax_init():
    ch = []
    for qt in range(3):
        x = v_m + qt
        c = max8(x, [Sreg(t, qt) + r for t in range(2) for r in range(4)]) + xrow(x, v_t + qt, 'v_max_f32')
        c += [valu('v_mul_f32', V(x), S(s_c), V(x)), valu('v_mov_b32', V(v_l + qt), 0)]
        ch.append(c)
    return interleave(*ch)

def sm_fma(t):
    return [valu('v_fma_f32', V(Sreg(t, qt) + r), V(Sreg(t, qt) + r), S(s_c), '-' + V(v_m + qt)) for qt in range(3) for r in range(4)]
def sm_max(t):
    vals = [Sbase() + t * 12 + i for i in range(12)]
    x = v_t + 3
    if t == 0:
        o = [valu('v_max3_f32', V(x), V(vals[0]), V(vals[1]), V(vals[2]))]
        for i in range(3, 11, 2): o.append(valu('v_max3_f32', V(x), V(x), V(vals[i]), V(vals[i + 1])))
        o.append(valu('v_max_f32', V(x), V(x), V(vals[11])))
        return o
    return [valu('v_max3_f32', V(x), V(x), V(vals[i]), V(vals[i + 1])) for i in range(0, 12, 2)]
def sm_fmamax(t):
    f = sm_fma(t); m = sm_max(t)
    o = f[:4]; k = 0
    for i in range(4, 12, 2): o += f[i:i + 2] + [m[k]]; k += 1
    return o + m[k:]
def sm_check():
    return [[vcmp('v_cmp_lt_f32', 0x41000000, V(v_t + 3)),
             raw('s_cbranch_vccnz {L}_r', 'branch', ['vcc']), raw('{L}_b:', 'label'),
             raw('{L}_r:\ns_call_b64 s[%d:%d], L_rare_%d\ns_branch {L}_b' % (s_ret, s_ret + 1, SB[0]), 'stub')]]
def sm_exp():
    o = []
    order = [(t, r) for t in range(2) for r in range(4)]
    for k, (t, r) in enumerate(order):
        for qt in range(3): o.append(valu('v_exp_f32', V(Sreg(t, qt) + r), V(Sreg(t, qt) + r)))
        if k >= 1:
            pt, pr = order[k - 1]
            for qt in range(3): o.append(valu('v_add_f32', V(v_l + qt), V(v_l + qt), V(Sreg(pt, qt) + pr)))
            if pr % 2 == 1:
                for qt in range(3):
                    o.append(valu('v_cvt_pk_bf16_f32', V(vP + qt * 4 + pt * 2 + pr // 2), V(Sreg(pt, qt) + pr - 1), V(Sreg(pt, qt) + pr)))
    for qt in range(3): o.append(valu('v_cvt_pk_bf16_f32', V(vP + qt * 4 + 3), V(Sreg(1, qt) + 2), V(Sreg(1, qt) + 3)))
    tail = [valu('v_add_f32', V(v_l + qt), V(v_l + qt), V(Sreg(1, qt) + 3)) for qt in range(3)]
    return o, tail

def rare_path(name, sb):
    SB[0] = sb
    ch = []
    for qt in range(3):
        vals = [Sreg(t, qt) + r for t in range(2) for r in range(4)]
        x = v_t + 4 + qt; f = v_t + 7 + qt
        c = max8(x, vals) + xrow(x, v_t + qt, 'v_max_f32')
        c += [valu('v_max_f32', V(x), 0, V(x)), valu('v_add_f32', V(v_m + qt), V(v_m + qt), V(x)),
              valu('v_sub_f32', V(f), 0, V(x)), valu('v_exp_f32', V(f), V(f))]
        c += [valu('v_sub_f32', V(s), V(s), V(x)) for s in vals]
        c += [valu('v_mul_f32', V(v_l + qt), V(v_l + qt), V(f))]
        c += [valu('v_mul_f32', V(Oreg(dt, qt) + r), V(Oreg(dt, qt) + r), V(f)) for dt in range(12) for r in range(4)]
        ch.append(c)
    p, _ = fix_hazards([nop(7)] + interleave(*ch) + [nop(3)])
    return [name + ":"] + [i.t for i in p] + [f"s_setpc_b64 s[{s_ret}:{s_ret+1}]"]

def q_convert_u(u, dest):
    T = [vS + (u % 2) * 12 + 4 * qt for qt in range(3)]
    out = []
    for qt in range(3):
        for h in range(2):
            for k in range(2):
                s0 = Oreg(2 * u + h, qt) + 2 * k
                out.append(valu('v_cvt_pk_bf16_f32', V(T[qt] + h * 2 + k), V(s0), V(s0 + 1)))
    for op in ('v_permlane32_swap_b32', 'v_permlane16_swap_b32'):
        for qt in range(3):
            for k in range(2): out.append(perm(op, V(T[qt] + k), V(T[qt] + 2 + k)))
    for qt in range(3):
        for k in range(4): out.append(valu('v_accvgpr_write_b32', A(dest + (u * 3 + qt) * 4 + k), V(T[qt] + k)))
    return out

def q_convert_a(u):
    T = [vS + 12 + 4 * qt for qt in range(3)]
    rd = []; out = []
    for qt in range(3):
        for h in range(2):
            for k in range(2):
                s0 = vXF + (qt * 4 + h * 2 + k) * 2; a0 = aQN + ((2 * u + h) * 3 + qt) * 4 + 2 * k
                rd += [valu('v_accvgpr_read_b32', V(s0), A(a0)), valu('v_accvgpr_read_b32', V(s0 + 1), A(a0 + 1))]
                out.append(valu('v_cvt_pk_bf16_f32', V(T[qt] + h * 2 + k), V(s0), V(s0 + 1)))
    for op in ('v_permlane32_swap_b32', 'v_permlane16_swap_b32'):
        for qt in range(3):
            for k in range(2): out.append(perm(op, V(T[qt] + k), V(T[qt] + 2 + k)))
    for qt in range(3):
        for k in range(4): out.append(valu('v_accvgpr_write_b32', A(aQ + (u * 3 + qt) * 4 + k), V(T[qt] + k)))
    return rd + out

RL = 30
def e_head():
    out = interleave(*[xrow(v_l + qt, v_t + qt, 'v_add_f32') + [valu('v_rcp_f32', V(RL + 2 * qt), V(v_l + qt)),
                       valu('v_mov_b32', V(RL + 1 + 2 * qt), V(RL + 2 * qt))] for qt in range(3)])
    out += [valu('v_add_u32', V(36), S(s_ew), V(v_l16)), valu('v_add_u32', V(37), S(s_er0), V(v_l16)),
            valu('v_add_u32', V(38), S(s_er1), V(v_l16))]
    return out
def e_pack(u, eid, packed):
    T = vS + (u % 2) * 12
    o = []
    for qt in range(3):
        for h in range(2):
            s = Oreg(2 * u + h, qt)
            if packed:
                o += [valu('v_pk_mul_f32', V(s + 2 * k, 2), V(s + 2 * k, 2), V(RL + 2 * qt, 2)) for k in range(2)]
            else:
                o += [valu('v_mul_f32', V(s + k), V(s + k), V(RL + 2 * qt)) for k in range(4)]
    for qt in range(3):
        for h in range(2):
            s = Oreg(2 * u + h, qt)
            for k in range(2):
                o.append(valu('v_cvt_pk_bf16_f32', V(T + qt * 4 + h * 2 + k), V(s + 2 * k), V(s + 2 * k + 1)))
        o.append(dswrite('ds_write_b128', V(36), V(T + qt * 4, 4), (u * 3 + qt) * 1024, ('ew', eid)))
    return o
def e_tail(eid, toA):
    out = [barrier(need=[('ew', eid)])]
    for f in range(18):
        for hh in range(2):
            dst = A(aQN + hh * 72 + f * 4, 4) if toA else V(vO + hh * 72 + f * 4, 4)
            out.append(dsread('ds_read_b128', dst, V(37 + hh), f * 1024, ('er', eid)))
    out.append(barrier(need=[('er', eid)]))
    return out

def flush_held(ch):
    o = [bstore(A(aQ + ch * 12 + qt * 4, 4), V(v_l16), S(sWS, 4), S(s_ew), qt * 1024, ('st', ch), OPT['st']) for qt in range(3)]
    return o + wrapadd(s_ew, 12288, s_ptl, s_ptb)
def chunk_end(ch, store, held=False):
    acc = vACC[ch % 2]
    if held:
        o = chunk_end(ch, False)
        o = o[:12] + [valu('v_accvgpr_write_b32', A(aQ + ch * 12 + i), V(vP + i)) for i in range(12)]
        if ch == 0: o.append(salu('s_mov_b32', S(s_ew), S(s_pt)))
        return o + wrapadd(s_pt, 12288, s_ptl, s_ptb)
    o = []
    for qt in range(3):
        for nt in range(2):
            for k in range(2):
                s = acc + (nt * 3 + qt) * 4 + 2 * k
                o.append(valu('v_cvt_pk_bf16_f32', V(vP + qt * 4 + nt * 2 + k), V(s), V(s + 1)))
        if store:
            o.append(bstore(V(vP + qt * 4, 4), V(v_l16), S(sWS, 4), S(s_pt), qt * 1024, ('st', ch), OPT['st']))
    if not store: o += [valu('v_accvgpr_write_b32', A(aRES + ch * 12 + i), V(vP + i)) for i in range(12)]
    else: o += wrapadd(s_pt, 12288, s_ptl, s_ptb)
    return o

def chunk_init(ch):
    acc = vACC[ch % 2]
    return [mfma(V(acc + (nt * 3 + qt) * 4, 4), A(aE1 if nt else aE0, 4), A(aRES + ch * 12 + qt * 4, 4), 0)
            for nt in range(2) for qt in range(3)]

def stamp(n): return [raw(f"{'s_memtime' if OPT['cyc'] else 's_memrealtime'} s[{s_stamp+2*n}:{s_stamp+2*n+1}]", 'smem')]

def prologue():
    P = []; a = P.append
    T = s_t0
    a(salu('s_and_b32', S(T), 's2', 7)); a(salu('s_lshr_b32', S(T + 1), 's2', 3))
    a(salu('s_lshr_b32', S(T + 2), S(T), 2))
    a(salu('s_mul_i32', S(T + 2), S(T + 2), 40))
    a(salu('s_add_u32', S(T + 4), 's0', S(T + 2))); a(salu('s_addc_u32', S(T + 5), 's1', 0))
    a(raw(f"s_load_dwordx8 s[68:75], s[{T+4}:{T+5}], 0", 'smem'))
    a(raw(f"s_load_dwordx2 s[76:77], s[{T+4}:{T+5}], 32", 'smem'))
    a(raw("s_load_dwordx2 s[78:79], s[0:1], 96", 'smem'))
    a(salu('s_and_b32', S(T), S(T), 3)); a(salu('s_lshl_b32', S(T), S(T), 1))
    a(salu('s_and_b32', S(T + 3), S(T + 1), 1)); a(salu('s_or_b32', S(s_hq), S(T), S(T + 3)))
    a(salu('s_lshr_b32', S(T + 1), S(T + 1), 1))
    a(valu('v_lshrrev_b32', V(v_t), 6, 'v0'))
    a(nop(0))
    a(raw(f"v_readfirstlane_b32 s{s_w}, v{v_t}", 'valu', [f'v{v_t}'], [f's{s_w}']))
    lane, n16, g, tmp, tmp2, row, sw = range(v_t, v_t + 7)
    a(valu('v_and_b32', V(lane), 63, 'v0'))
    a(valu('v_lshlrev_b32', V(v_l16), 4, V(lane)))
    W = s_w; Pp = T + 7; QH = T + 8; HQ = s_hq; B = T + 1; ROT = T + 2
    def swz(dst, r): a(valu('v_and_b32', V(dst), 6, V(r)))
    a(valu('v_lshrrev_b32', V(row), 3, V(lane)))
    swz(sw, row)
    a(valu('v_and_b32', V(tmp), 7, V(lane))); a(valu('v_xor_b32', V(tmp), V(tmp), V(sw)))
    a(valu('v_lshlrev_b32', V(tmp), 4, V(tmp)))
    a(valu('v_mul_u32_u24', V(row), 1280, V(row)))
    a(valu('v_add_u32', V(v_dwx), V(tmp), V(row)))
    a(valu('v_add_u32', V(v_dwx + 1), 8 * 1280 - 1024, V(v_dwx)))
    a(valu('v_add_u32', V(v_dwx + 2), 2 * (8 * 1280 - 1024), V(v_dwx)))
    a(salu('s_mov_b32', S(s_tmp), 0xAAAAAAB))
    for j in range(3):
        a(valu('v_add_u32', V(tmp), 64 * j, V(lane)))
        a(valu('v_mul_hi_u32', V(row), V(tmp), S(s_tmp)))
        swz(sw, row)
        a(valu('v_lshlrev_b32', V(sw), 4, V(sw)))
        a(valu('v_xor_b32', V(v_dkv + j), V(v_l16), V(sw)))
        a(valu('v_mul_u32_u24', V(tmp2), 24, V(row))); a(valu('v_sub_u32', V(tmp), V(tmp), V(tmp2)))
        a(valu('v_lshlrev_b32', V(tmp), 4, V(tmp))); a(valu('v_xor_b32', V(tmp), V(tmp), V(sw)))
        a(valu('v_lshrrev_b32', V(tmp2), 2, V(row))); a(valu('v_lshl_add_u32', V(row), V(tmp2), 2, V(row)))
        a(valu('v_mul_u32_u24', V(row), 12288, V(row)))
        a(valu('v_add_u32', V(tmp), V(tmp), V(row)))
        a(valu('v_subrev_u32', V(v_dwq + j), 1024 * j, V(tmp)))
    a(salu('s_lshr_b32', S(Pp), S(W), 1)); a(salu('s_and_b32', S(QH), S(W), 1))
    a(salu('s_mul_i32', S(s_w6144), S(W), 6144))
    a(salu('s_lshl_b32', S(T + 3), S(HQ), 2)); a(salu('s_lshl_b32', S(T + 9), S(Pp), 1))
    a(salu('s_add_u32', S(T + 9), S(T + 9), S(T + 3)))
    a(salu('s_mul_i32', S(ROT), S(B), 5 * OPT['rot'])); a(salu('s_lshr_b32', S(ROT), S(ROT), 3))
    if OPT['rot2']:
        a(salu('s_and_b32', S(s_tmp), S(HQ), 1)); a(salu('s_mul_i32', S(s_tmp), S(s_tmp), 5))
        a(salu('s_add_u32', S(ROT), S(ROT), S(s_tmp)))
        a(scmp('s_cmp_ge_u32', S(ROT), 10)); a(salu('s_cselect_b32', S(s_tmp), 10, 0)); a(salu('s_sub_u32', S(ROT), S(ROT), S(s_tmp)))
    a(salu('s_mul_i32', S(s_wqb), S(T + 9), 384)); a(salu('s_mul_i32', S(s_tmp), S(QH), 4 * 12288))
    a(salu('s_add_u32', S(s_wqb), S(s_wqb), S(s_tmp)))
    a(salu('s_add_u32', S(s_wql), S(s_wqb), 640 * 12288))
    a(salu('s_mul_i32', S(s_tmp), S(ROT), 64 * 12288)); a(salu('s_add_u32', S(s_wq), S(s_wqb), S(s_tmp)))
    a(salu('s_mul_i32', S(s_xb), S(B), 96)); a(salu('s_mul_i32', S(s_tmp), S(W), 24))
    a(salu('s_add_u32', S(s_xb), S(s_xb), S(s_tmp))); a(salu('s_mul_i32', S(s_xb), S(s_xb), 1280))
    a(salu('s_add_u32', S(s_xl), S(s_xb), 1280))
    a(salu('s_lshl_b32', S(T + 6), S(ROT), 7)); a(salu('s_add_u32', S(s_x), S(s_xb), S(T + 6)))
    a(salu('s_mul_i32', S(s_tmp), S(W), 3072)); a(salu('s_add_u32', S(s_xwr), S(s_tmp), XA))
    a(raw("s_waitcnt lgkmcnt(0)", 'wait'))
    for srd, p, n in ((sX, 68, 1966080), (sWQ, 74, 7864320)):
        a(salu('s_mov_b32', S(srd), S(p))); a(salu('s_mov_b32', S(srd + 1), S(p + 1)))
        a(salu('s_mov_b32', S(srd + 2), n)); a(salu('s_mov_b32', S(srd + 3), 0x20000))
    P2 = []; a = P2.append
    if OPT['cpf']:
        a(salu('s_lshr_b32', S(T), 's2', 3)); a(salu('s_lshl_b32', S(T), S(T), 2)); a(salu('s_add_u32', S(T), S(T), S(W)))
        a(salu('s_lshl_b32', S(T), S(T), 4))
        a(valu('v_and_b32', V(tmp), 15, V(lane))); a(valu('v_add_u32', V(tmp), S(T), V(tmp)))
        a(valu('v_lshlrev_b32', V(tmp), 7, V(tmp)))
        a(raw(f"v_min_u32 v{tmp}, L_code_end-L_go-4, v{tmp}", 'valu', [f'v{tmp}'], [f'v{tmp}']))
        a(I(f"global_load_dword v{v_t+10}, v{tmp}, s[{s_ret}:{s_ret+1}]", 'vload', [f'v{tmp}', f's{s_ret}', f's{s_ret+1}'], [f'v{v_t+10}'], tag=('cpf',)))
    for srd, p, n in ((sK, 70, 100663296), (sV, 72, 100663296), (sWO, 76, 7864320), (sWS, 78, 438042624)):
        a(salu('s_mov_b32', S(srd), S(p))); a(salu('s_mov_b32', S(srd + 1), S(p + 1)))
        a(salu('s_mov_b32', S(srd + 2), n)); a(salu('s_mov_b32', S(srd + 3), 0x20000))
    a(valu('v_and_b32', V(n16), 15, V(lane))); a(valu('v_lshrrev_b32', V(g), 4, V(lane)))
    a(salu('s_bfe_u32', S(T), 's2', 0x10002)); a(salu('s_lshl_b32', S(T), S(T), 4)); a(salu('s_add_u32', S(T), S(T), S(B)))
    a(salu('s_lshl_b32', S(T), S(T), 7)); a(salu('s_add_u32', S(T), S(T), FLAG_OFF))
    a(valu('v_and_b32', V(v_fa), 7, V(lane))); a(valu('v_lshl_add_u32', V(v_fa), V(v_fa), 2, S(T)))
    a(bload(V(v_fl), V(v_fa), S(sWS, 4), 0, 0, ('fl',), ' sc1', op='buffer_load_dword'))
    a(salu('s_lshl_b32', S(s_k), S(B), 5)); a(salu('s_add_u32', S(s_k), S(s_k), S(T + 9)))
    a(salu('s_mul_i32', S(s_k), S(s_k), 196608))
    a(salu('s_mul_i32', S(s_cnt), S(QH), 6144)); a(salu('s_add_u32', S(s_k), S(s_k), S(s_cnt)))
    a(salu('s_mov_b32', S(s_v), S(s_k)))
    a(salu('s_mul_i32', S(s_wob), S(T + 3), 192)); a(salu('s_mul_i32', S(s_wol), S(W), 48))
    a(salu('s_add_u32', S(s_wob), S(s_wob), S(s_wol))); a(salu('s_mul_i32', S(s_wob), S(s_wob), 1280))
    a(salu('s_add_u32', S(s_wol), S(s_wob), 1280))
    a(salu('s_add_u32', S(s_wo), S(s_wob), S(T + 6)))
    a(salu('s_mul_i32', S(s_ptb), 's2', PART_WG)); a(salu('s_mul_i32', S(T), S(W), 3072))
    a(salu('s_add_u32', S(s_ptb), S(s_ptb), S(T))); a(salu('s_add_u32', S(s_ptl), S(s_ptb), PART_WG))
    a(salu('s_mul_i32', S(T), S(ROT), 12288)); a(salu('s_add_u32', S(s_pt), S(s_ptb), S(T)))
    c = (192 ** -0.5) * math.log2(math.e)
    a(salu('s_mov_b32', S(s_c), struct.unpack('<I', struct.pack('<f', c))[0]))
    a(salu('s_mul_i32', S(T), S(Pp), 12288))
    swz(sw, n16)
    a(valu('v_xor_b32', V(tmp), V(g), V(sw))); a(valu('v_lshlrev_b32', V(tmp), 4, V(tmp)))
    a(valu('v_mul_u32_u24', V(tmp2), 384, V(n16))); a(valu('v_add3_u32', V(v_k), V(tmp), V(tmp2), S(T)))
    a(valu('v_xor_b32', V(v_k + 1), 64, V(v_k)))
    a(valu('v_add_u32', V(v_k + 2), 2 * SLOT, V(v_k))); a(valu('v_add_u32', V(v_k + 3), 2 * SLOT, V(v_k + 1)))
    a(salu('s_add_u32', S(s_cnt), S(s_cnt), XA))
    a(valu('v_lshlrev_b32', V(tmp2), 7, V(n16))); a(valu('v_add3_u32', V(v_x), V(tmp), V(tmp2), S(s_cnt)))
    a(valu('v_xor_b32', V(v_x + 1), 64, V(v_x)))
    a(valu('v_lshrrev_b32', V(row), 2, V(lane)))
    swz(sw, row)
    a(valu('v_bfe_u32', V(tmp), V(lane), 1, 1))
    a(valu('v_xor_b32', V(tmp), V(tmp), V(sw))); a(valu('v_lshlrev_b32', V(tmp), 4, V(tmp)))
    a(valu('v_and_b32', V(tmp2), 1, V(lane))); a(valu('v_lshl_add_u32', V(tmp), V(tmp2), 3, V(tmp)))
    a(valu('v_mul_u32_u24', V(tmp2), 384, V(row))); a(valu('v_add3_u32', V(v_v), V(tmp), V(tmp2), S(T)))
    for j in (1, 2, 3): a(valu('v_xor_b32', V(v_v + j), j << 5, V(v_v)))
    for j in range(4): a(valu('v_add_u32', V(v_v + 4 + j), 2 * SLOT, V(v_v + j)))
    a(valu('v_lshl_add_u32', V(v_p), V(row), 7, V(tmp)))
    a(salu('s_lshl_b32', S(T), S(Pp), 6))
    a(valu('v_xor_b32', V(v_p), S(T), V(v_p))); a(valu('v_xor_b32', V(v_p + 1), 32, V(v_p)))
    for j in range(2): a(valu('v_add_u32', V(v_p + 2 + j), 2 * SLOT, V(v_p + j)))
    a(valu('v_lshrrev_b32', V(tmp), 2, V(n16)))
    a(vcmp('v_cmp_eq_u32', V(tmp), V(g)))
    a(valu('v_and_b32', V(tmp2), 1, V(n16))); a(valu('v_lshlrev_b32', V(tmp2), 4, V(tmp2)))
    a(salu('s_mov_b32', S(T), 0x3F80))
    a(valu('v_lshlrev_b32', V(tmp2), V(tmp2), S(T)))
    a(valu('v_cndmask_b32', V(tmp2), 0, V(tmp2)))
    a(valu('v_and_b32', V(tmp), 2, V(n16)))
    a(vcmp('v_cmp_eq_u32', 0, V(tmp)))
    a(valu('v_cndmask_b32', V(row), 0, V(tmp2)))
    a(valu('v_sub_u32', V(sw), V(tmp2), V(row)))
    for r in (240, 241, 244, 245): a(valu('v_accvgpr_write_b32', A(r), 0))
    a(valu('v_accvgpr_write_b32', A(242), V(row))); a(valu('v_accvgpr_write_b32', A(243), V(sw)))
    if OPT['pf']:
        a(salu('s_lshr_b32', S(T), 's2', 3)); a(salu('s_lshl_b32', S(T), S(T), 2))
        a(salu('s_and_b32', S(s_cnt), 's2', 3)); a(salu('s_add_u32', S(T), S(T), S(s_cnt)))
        a(salu('s_lshl_b32', S(T), S(T), 2)); a(salu('s_add_u32', S(T), S(T), S(W)))
        a(salu('s_mul_i32', S(s_cnt), S(T), 120))
        a(valu('v_add_u32', V(38), S(s_cnt), V(lane))); a(valu('v_lshlrev_b32', V(38), 7, V(38)))
        a(valu('v_add_u32', V(39), 8192, V(38)))
        a(salu('s_mul_i32', S(s_cnt), S(T), 60))
        a(valu('v_add_u32', V(tmp), S(s_cnt), V(lane)))
        a(salu('s_mov_b32', S(s_cnt), 0x5555556))
        a(valu('v_mul_hi_u32', V(row), V(tmp), S(s_cnt)))
        a(valu('v_mul_u32_u24', V(tmp2), 48, V(row))); a(valu('v_sub_u32', V(tmp), V(tmp), V(tmp2)))
        a(valu('v_mul_u32_u24', V(tmp2), 86, V(tmp))); a(valu('v_lshrrev_b32', V(tmp2), 8, V(tmp2)))
        a(valu('v_mul_u32_u24', V(row), 12288, V(row)))
        a(valu('v_lshl_add_u32', V(row), V(tmp), 7, V(row)))
        a(valu('v_mul_u32_u24', V(tmp2), 384, V(tmp2)))
        a(valu('v_add_u32', V(row), V(row), V(tmp2))); a(valu('v_add_u32', V(37), 384, V(row)))
    a(salu('s_mul_i32', S(s_ew), S(W), EXW)); a(salu('s_add_u32', S(s_ew), S(s_ew), XA))
    a(scmp('s_cmp_eq_u32', S(W), 3)); a(salu('s_cselect_b32', S(s_ew), 3 * SLOT, S(s_ew)))
    a(salu('s_mul_i32', S(s_er0), S(QH), EXW)); a(salu('s_add_u32', S(s_er0), S(s_er0), XA))
    a(salu('s_mov_b32', S(s_er1), XA + 2 * EXW)); a(scmp('s_cmp_eq_u32', S(QH), 1)); a(salu('s_cselect_b32', S(s_er1), 3 * SLOT, S(s_er1)))
    return P, [x for x in P2 if x is not None]

def make_seq(kind):
    seq = []
    def Q(r, accA=False): return [Slot('Q', j=j, rnd=r, accA=accA) for j in range(20)]
    def Aa(r):
        if not OPT['pipe']: return [Slot(t, i=i, rnd=r, first=(i == 0)) for i in range(16) for t in 'KV']
        o = [('K', 0)]
        for i in range(15): o += [('K', i + 1), ('V', i)]
        o.append(('V', 15))
        return [Slot(t, i=i, rnd=r, first=(i == 0)) for t, i in o]
    def Pp(r): return [Slot('P', j=j, rnd=r, nh=2, ch=j // 2, hh=j % 2) for j in range(20)]
    def P4(): return [Slot('P', j=j, rnd=1, nh=4, ch=j // 4, hh=j % 4) for j in range(40)]
    if kind == 'X': seq = Q(0) + Aa(0) + Pp(0) + Q(1) + Aa(1) + Pp(1)
    elif kind == 'W': seq = Q(0) + Q(1) + Aa(0) + Aa(1) + P4()
    elif kind == 'Y': seq = Q(0) + Q(1) + Aa(0) + Pp(0) + Aa(1) + Pp(1)
    elif kind == 'Z': seq = Q(0) + Aa(0) + Q(1) + Aa(1) + P4()
    elif kind[0] in 'FG':
        k = int(kind[1:]); assert k % 2 == 0 and 2 <= k <= 14
        a0 = Aa(0)
        seq = Q(0) + a0[:2 * k] + Q(1, True) + a0[2 * k:]
        seq += (Aa(1) + P4()) if kind[0] == 'F' else (Pp(0) + Aa(1) + Pp(1))
    for n, s in enumerate(seq): s.idx = n
    return seq

def flat(items):
    o = []
    for it in items: o += flat(it) if isinstance(it, list) else [it]
    return o

def build_main(kind, stamps, pro2):
    seq = make_seq(kind)
    N = len(seq)
    for s in seq: build_mfmas(s)
    head = flat(x_items(seq[0])[:6]) + flat(dma_items(seq[0])) + flat(x_items(seq[0])[6:])
    for n in range(1, LEAD): head += flat(dma_items(seq[n]))
    head += pro2
    head.append(barrier(need=[('d', 0), ('xd', 0)]))
    head += x_reads(seq[0])
    for j in range(5): head += frag_reads(seq[0], j)
    nstamp = 0
    fine = stamps and OPT['sp0'] >= 0
    if stamps: head = stamp(0) + [raw("s_memtime s[96:97]", 'smem')] + head + stamp(1); nstamp = 2
    post = []
    if fine:
        stamps = False
        for k in range(11):
            if OPT['sp0'] + k * OPT['spd'] < N:
                seq[OPT['sp0'] + k * OPT['spd']].put(0, stamp(nstamp)); nstamp += 1
    if OPT['pf']:
        for k, (vr, srd) in enumerate(((37, sWQ), (38, sWO), (39, sWO))):
            seq[OPT['pfs'] + k * OPT['pfd']].put(21, bload(V(111), V(vr), S(srd, 4), 0, 0, ('pf', k), '', op='buffer_load_dword'))
    wp = OPT['wper']
    for n, s in enumerate(seq):
        nx = seq[n + 1] if n + 1 < N else None
        pv = seq[n - 1] if n else None
        for j in range(wp, 9, wp): s.load[3 * j - 1] += 1
        s.load[35] += 1
        for j in range(5, 12):
            for k, r in enumerate(frag_reads(s, j)): s.put(3 * (j - 5) + k, r)
        if nx is not None:
            need = [('f', s.idx, 11), ('d', nx.idx)] + ([('xd', nx.idx)] if nx.typ == 'Q' and nx.j % 4 == 0 else [])
            s.put(26, barrier(need=need)); s.load[26] += 1
            if nx.typ == 'Q' and nx.j % 4 == 0 and nx.idx > 0:
                s.put(24, valu('v_xor_b32', V(v_x), XTOG, V(v_x))); s.put(25, valu('v_xor_b32', V(v_x + 1), XTOG, V(v_x + 1)))
            rr = [frag_reads(nx, j) for j in range(5)]
            xr = x_reads(nx) if nx.typ == 'Q' else []
            if s.typ == 'K' and xr: nx.pre += xr; xr = []
            spread([(s, g) for g in range(27, 32)], flat(rr[0] + xr[:1] + rr[1] + xr[1:] + rr[2]))
            spread([(s, g) for g in range(30, 34)], rr[3])
            spread([(s, g) for g in range(32, 36)], rr[4])
        its = dma_items(seq[n + LEAD]) if n + LEAD < N else []
        if n + 4 < N and seq[n + 4].typ == 'Q' and seq[n + 4].j % 4 == 0: its = its + x_items(seq[n + 4])[:6]
        if n + 3 < N and n >= 1 and seq[n + 3].typ == 'Q' and seq[n + 3].j % 4 == 0: its = its + x_items(seq[n + 3])[6:]
        s.dma = its
        s.early = bool(s.typ == 'V' and OPT['early'] and its and not OPT['pipe'])
    for n, s in enumerate(seq):
        nx = seq[n + 1] if n + 1 < N else None
        if not s.early: spread([(s, g) for g in range(0, OPT['dend'])], s.dma, even=True)
        if s.typ == 'K' and stamps and s.i == 8 and not (kind[0] in 'FG' and s.rnd == 0): s.pre = stamp(nstamp) + s.pre; nstamp += 1
        if OPT['pipe'] and s.typ in 'KV':
            if s.typ == 'K' and s.i == 0:
                SB[0] = 0
                nx.pre += softmax_init() + sm_fma(0) + sm_fma(1)
            elif s.typ == 'K':
                SB[0] = (s.i - 1) & 1
                ex, tail = sm_exp()
                spread([(s, g) for g in range(0, 35)], ex + tail)
            elif s.i < 15:
                SB[0] = (s.i + 1) & 1
                spread([(s, g) for g in range(3, 36)], sm_fmamax(0) + sm_fmamax(1), even=True)
                nx.pre += sm_check()
                if s.i == 14:
                    ex, tail = sm_exp()
                    nx.pre += ex
                    spread([(nx, g) for g in range(0, 6)], tail)
        elif s.typ == 'K':
            SB[0] = 0
            ex, tail = sm_exp()
            if s.first: rest = softmax_init() + sm_fma(0) + sm_fma(1) + ex
            else:
                spread([(s, g) for g in range(20, 36)], sm_fmamax(0))
                rest = sm_fmamax(1) + sm_check() + ex
            if nx.early:
                d = list(nx.dma); o = d[:2]; d = d[2:]
                step = max(1, len(rest) // (len(d) + 1))
                for k2, it in enumerate(rest):
                    o.append(it)
                    if k2 % step == step - 1 and d: o.append(d.pop(0))
                rest = o + d
            nx.pre += rest
            spread([(nx, g) for g in range(0, 6)], tail)
        if s.typ == 'Q' and s.accA and stamps and s.j in (0, 19):
            if s.j == 0: s.pre += stamp(nstamp)
            else: nx.pre = stamp(nstamp) + nx.pre
            nstamp += 1
        if s.typ == 'Q' and s.j == 19 and not s.accA:
            dest = aQN if (kind in 'WY' and s.rnd == 1) else aQ
            cv = [q_convert_u(u, dest) for u in range(6)]
            k0 = 0
            if OPT['ovl']:
                spread([(s, g) for g in range(9, 20)], cv[0]); spread([(s, g) for g in range(20, 36)], cv[1]); k0 = 2
            nx.pre = flat(cv[k0:]) + nx.pre
            if stamps: nx.pre = nx.pre + stamp(nstamp); nstamp += 1
        if s.typ == 'V' and s.i == 15:
            pre = []
            if stamps: pre += stamp(nstamp); nstamp += 1
            toA = (kind[0] in 'WZF' and s.rnd == 0)
            if kind in 'WY' and s.rnd == 0: pre += [valu('v_accvgpr_mov_b32', A(aQ + k), A(aQN + k)) for k in range(72)]
            k0 = 0
            if OPT['ovl']:
                spread([(s, g) for g in range(6, 14)], e_head())
                spread([(s, g) for g in range(14, 36)], [i for i in e_pack(0, s.rnd, False) if i.k != 'ds'], cap=2)
                pre += [i for i in e_pack(0, s.rnd, False) if i.k == 'ds']
                k0 = 1
            else: pre += e_head()
            if kind[0] in 'FG' and s.rnd == 0:
                for u in range(6): pre += q_convert_a(u)
            for u in range(k0, 6): pre += e_pack(u, s.rnd, True)
            pre += e_tail(s.rnd, toA)
            if stamps: pre += stamp(nstamp); nstamp += 1
            nx.pre = pre + nx.pre
        if s.typ == 'P':
            if s.hh == 0 and s.rnd == 1 and s.nh == 2: s.pre += chunk_init(s.ch)
            if s.hh == s.nh - 1:
                hold = OPT['hold'] if s.nh == 4 else 0
                ce = chunk_end(s.ch, s.rnd == 1, s.ch < hold)
                if s.nh == 4 and OPT['nost']: ce = [i for i in ce if not (isinstance(i, I) and i.k == 'vstore')]
                if s.ch >= hold > 0:
                    per = -(-hold // (10 - hold)); k0 = (s.ch - hold) * per
                    for c2 in range(k0, min(hold, k0 + per)): ce = ce + flush_held(c2)
                if s.ch == 9:
                    if stamps: ce = ce + stamp(nstamp); nstamp += 1
                    if nx is None: post += ce
                    else: nx.pre = ce + nx.pre
                else: spread([(seq[n + 1 + k], g) for k in range(s.nh) for g in range(36)][3:-3], ce, even=True)
    prog = list(head)
    for s in seq:
        prog.append(mark('m'))
        prog += flat(s.pre)
        for k in range(36):
            prog.append(s.mf[k]); prog += flat(s.gaps[k])
    prog.append(mark('m'))
    prog += flat(post)
    return prog, nstamp

def stamp_out(nstamp):
    o = ["s_waitcnt vmcnt(0) lgkmcnt(0)"]
    o.append(f"s_memrealtime s[{s_stamp+2*nstamp}:{s_stamp+2*nstamp+1}]")
    o.append(f"s_memtime s[98:99]")
    o.append("s_waitcnt lgkmcnt(0)")
    o.append(f"s_lshl_b32 s{s_tmp}, s2, 8")
    o.append(f"s_lshl_b32 s{s_cnt}, s{s_w}, 6")
    o.append(f"s_add_u32 s{s_tmp}, s{s_tmp}, s{s_cnt}")
    o.append(f"s_add_u32 s{s_tmp}, s{s_tmp}, {STAMP_OFF}")
    o.append("v_mov_b32 v1, 0")
    for n in range(nstamp + 1):
        o.append(f"v_mov_b32 v2, s{s_stamp+2*n}")
        o.append(f"buffer_store_dword v2, v1, s[{sWS}:{sWS+3}], s{s_tmp} offen offset:{4*n}")
    o.append(f"s_sub_u32 s{s_cnt}, s98, s96")
    o.append(f"v_mov_b32 v2, s{s_cnt}")
    o.append(f"buffer_store_dword v2, v1, s[{sWS}:{sWS+3}], s{s_tmp} offen offset:60")
    o.append(f"v_mov_b32 v2, {nstamp+1}")
    o.append(f"buffer_store_dword v2, v1, s[{sWS}:{sWS+3}], s{s_tmp} offen offset:56")
    return o

FLAG_OFF = STAMP_OFF + 65536
v_fl = 109; v_fa = 110
def red_loads(a, bases, hq, ldfl, vb):
    off = (((hq & 1) << 3) | (hq >> 1)) * PART_WG
    for k, bs in enumerate(bases):
        r = vb + (k * 8 + hq) * 4
        a(f"s_add_u32 s{s_t0+1}, s{bs}, {off}")
        a(f"buffer_load_dwordx4 v[{r}:{r+3}], v{v_l16}, s[{sWS}:{sWS+3}], s{s_t0+1} offen{ldfl}")
def red_outaddr(a, f, dst, br, b):
    t = s_t0
    a(f"s_mul_hi_u32 s{t}, s{f}, 0x15555556")
    a(f"s_mul_i32 s{t+1}, s{t}, 12"); a(f"s_sub_u32 s{t+1}, s{f}, s{t+1}")
    a(f"s_mul_hi_u32 s{t+2}, s{t+1}, 0x55555556")
    a(f"s_mul_i32 s{t+3}, s{t+2}, 3"); a(f"s_sub_u32 s{t+3}, s{t+1}, s{t+3}")
    a(f"s_and_b32 s{dst}, s{t+2}, 1"); a(f"s_mul_i32 s{dst}, s{dst}, 48"); a(f"s_lshl_b32 s{t+3}, s{t+3}, 4")
    a(f"s_add_u32 s{dst}, s{dst}, s{t+3}")
    a(f"s_mul_i32 s{t+3}, s{b}, 96"); a(f"s_add_u32 s{dst}, s{dst}, s{t+3}")
    a(f"s_mul_i32 s{dst}, s{dst}, 2560")
    a(f"s_mul_i32 s{t+3}, s{br}, 1280"); a(f"s_add_u32 s{dst}, s{dst}, s{t+3}")
    a(f"s_lshl_b32 s{t+3}, s{t}, 7"); a(f"s_add_u32 s{dst}, s{dst}, s{t+3}")
    a(f"s_lshr_b32 s{t+3}, s{t+2}, 1"); a(f"s_lshl_b32 s{t+3}, s{t+3}, 6"); a(f"s_add_u32 s{dst}, s{dst}, s{t+3}")
def red_sum(a, nf, outs, vb):
    for k in range(nf):
        ac = 64 + 8 * (k % 2)
        for hq in range(8):
            for q in range(4):
                r = vb + (k * 8 + hq) * 4 + q
                if hq == 0:
                    a(f"v_lshlrev_b32 v{ac+q}, 16, v{r}"); a(f"v_and_b32 v{ac+4+q}, 0xffff0000, v{r}")
                else:
                    a(f"v_lshlrev_b32 v4, 16, v{r}"); a(f"v_and_b32 v{r}, 0xffff0000, v{r}")
                    a(f"v_add_f32 v{ac+q}, v{ac+q}, v4"); a(f"v_add_f32 v{ac+4+q}, v{ac+4+q}, v{r}")
        o = 48 + 4 * k
        for q in range(4): a(f"v_cvt_pk_bf16_f32 v{o+q}, v{ac+q}, v{ac+4+q}")
        a("s_nop 1")
        a(f"v_permlane32_swap_b32 v{o}, v{o+2}"); a(f"v_permlane32_swap_b32 v{o+1}, v{o+3}")
        a("s_nop 1")
        a(f"v_permlane16_swap_b32 v{o}, v{o+2}"); a(f"v_permlane16_swap_b32 v{o+1}, v{o+3}")
        a("s_nop 1")
        a(f"buffer_store_dwordx4 v[{o}:{o+3}], v2, s[{sK}:{sK+3}], s{outs[k]} offen{OPT['outst']}")

def fused_reduce(stamps=False):
    L = []; a = L.append
    def st(n):
        if stamps: a(f"s_memrealtime s[{s_stamp+2*n}:{s_stamp+2*n+1}]")
    sD = sV
    br, b, pb, done, last, it, new, slc, vw, extra = 28, 29, 30, 31, 32, 33, 34, 35, 36, 37
    fs = [38, 39, 40, 41]; bases = [42, 43, 44, 45]; outs = [12, 13, 14, 15]
    a("L_red:")
    a("s_load_dwordx4 s[60:63], s[0:1], 80")
    a(f"s_bfe_u32 s{br}, s2, 0x10002"); a(f"s_lshr_b32 s{b}, s2, 4")
    a(f"s_lshl_b32 s{pb}, s{b}, 4"); a(f"s_lshl_b32 s{it}, s{br}, 2"); a(f"s_add_u32 s{pb}, s{pb}, s{it}")
    a(f"s_mul_i32 s{pb}, s{pb}, {PART_WG}")
    a(f"v_lshrrev_b32 v3, 4, v{v_l16}")
    a("v_and_b32 v2, 15, v3"); a("v_mul_u32_u24 v2, 2560, v2")
    a("v_lshrrev_b32 v3, 4, v3"); a("v_lshl_add_u32 v2, v3, 4, v2")
    a(f"s_lshl_b32 s{it}, s{br}, 4"); a(f"s_add_u32 s{it}, s{it}, s{b}"); a(f"s_lshl_b32 s{it}, s{it}, 2")
    a(f"v_mov_b32 v6, s{it}")
    a(f"s_mov_b32 s{slc}, s{s_hq}"); a(f"s_mov_b32 s{vw}, s{s_w}"); a(f"s_mov_b32 s{last}, 0"); a(f"s_mov_b32 s{extra}, 0")
    a(f"s_lshl_b32 s{new}, 1, s{s_hq}")
    a("L_red_setup:")
    a(f"s_mul_i32 s{it}, s{slc}, 15")
    for k in range(4):
        a(f"s_add_u32 s{fs[k]}, s{vw}, {4*k}")
        if k == 3: a(f"s_min_u32 s{fs[k]}, s{fs[k]}, 14")
        a(f"s_add_u32 s{fs[k]}, s{fs[k]}, s{it}")
        a(f"s_lshl_b32 s{bases[k]}, s{fs[k]}, 10"); a(f"s_add_u32 s{bases[k]}, s{bases[k]}, s{pb}")
        red_outaddr(a, fs[k], outs[k], br, b)
    a(f"s_mov_b32 s{done}, 0"); a(f"s_mov_b32 s{it}, 0")
    a(f"s_cmp_eq_u32 s{new}, 0xff"); a("s_cbranch_scc1 L_red_issue")
    a("s_waitcnt lgkmcnt(0)")
    a(f"s_mov_b32 s{sK}, s60"); a(f"s_mov_b32 s{sK+1}, s61"); a(f"s_mov_b32 s{sK+2}, 3932160"); a(f"s_mov_b32 s{sK+3}, 0x20000")
    a(f"s_mov_b32 s{sD}, s62"); a(f"s_mov_b32 s{sD+1}, s63"); a(f"s_mov_b32 s{sD+2}, 256"); a(f"s_mov_b32 s{sD+3}, 0x20000")
    a("s_waitcnt vmcnt(0)")
    a("s_barrier")
    st(8)
    a(f"s_cmp_lg_u32 s{s_w}, 0"); a("s_cbranch_scc1 L_red_issue")
    a(f"s_mov_b32 exec_lo, s{new}"); a("s_mov_b32 exec_hi, 0")
    a(f"v_add_u32 v8, 1, v{v_fl}")
    a(f"buffer_store_dword v8, v{v_fa}, s[{sWS}:{sWS+3}], 0 offen sc1")
    a("v_mov_b32 v7, 1")
    a(f"buffer_atomic_add v7, v6, s[{sD}:{sD+3}], 0 offen sc0")
    a("s_mov_b64 exec, -1")
    a("L_red_issue:")
    for hq in range(8):
        a(f"s_bitcmp1_b32 s{new}, {hq}"); a(f"s_cbranch_scc0 L_red_s{hq}")
        red_loads(a, bases, hq, OPT['rld'], 112)
        a(f"L_red_s{hq}:")
    a(f"s_or_b32 s{done}, s{done}, s{new}")
    a(f"s_cmp_eq_u32 s{done}, 0xff"); a("s_cbranch_scc1 L_red_sum")
    a("L_red_poll:")
    a(f"buffer_load_dword v8, v{v_fa}, s[{sWS}:{sWS+3}], 0 offen sc1")
    a(f"s_add_u32 s{it}, s{it}, 1")
    a("s_waitcnt vmcnt(0)")
    a(f"v_cmp_ne_u32 vcc, v8, v{v_fl}")
    a("s_nop 4")
    a(f"s_andn2_b32 s{new}, vcc_lo, s{done}"); a(f"s_and_b32 s{new}, s{new}, 0xff")
    a("s_cbranch_scc1 L_red_issue")
    a(f"s_sleep {OPT['sleep']}")
    a(f"s_cmp_lt_u32 s{it}, {OPT['polls']}"); a("s_cbranch_scc1 L_red_poll")
    a("s_mov_b64 exec, 1")
    a(f"s_lshl_b32 s{new}, 1, s{s_hq}")
    a(f"v_mov_b32 v8, s{new}")
    a(f"buffer_atomic_or v8, v6, s[{sD}:{sD+3}], 0 offen offset:128 sc0")
    a("s_waitcnt vmcnt(0)")
    a("v_mov_b32 v8, 0")
    a(f"buffer_atomic_add v8, v6, s[{sD}:{sD+3}], 0 offen sc0")
    a("s_waitcnt vmcnt(0)")
    a(f"v_readfirstlane_b32 s{s_t0}, v8")
    a("s_mov_b64 exec, -1")
    a(f"s_andn2_b32 s{new}, 0xff, s{done}")
    a("s_nop 2")
    a(f"s_cmp_eq_u32 s{s_t0}, 8"); a("s_cbranch_scc1 L_red_issue")
    a("s_branch L_red_next")
    a("L_red_sum:")
    st(10)
    a("s_waitcnt vmcnt(0)")
    st(11)
    red_sum(a, 4, outs, 112)
    a("L_red_next:")
    a(f"s_cmp_lg_u32 s{s_w}, 0"); a("s_cbranch_scc1 L_red_done")
    a(f"s_cmp_lg_u32 s{last}, 0"); a("s_cbranch_scc1 L_red_more")
    a(f"v_readlane_b32 s{last}, v7, s{s_hq}")
    a("s_nop 3")
    a(f"s_cmp_eq_u32 s{last}, 7"); a("s_cbranch_scc0 L_red_done")
    a("s_mov_b64 exec, 1")
    a("v_mov_b32 v8, 0")
    a(f"buffer_atomic_or v8, v6, s[{sD}:{sD+3}], 0 offen offset:128 sc0")
    a("s_waitcnt vmcnt(0)")
    a(f"v_readfirstlane_b32 s{extra}, v8")
    a("s_mov_b64 exec, -1")
    a(f"s_mov_b32 s{vw}, 3")
    a("L_red_more:")
    a(f"s_add_u32 s{vw}, s{vw}, 1"); a(f"s_and_b32 s{vw}, s{vw}, 3"); a("s_cbranch_scc1 L_red_go")
    a(f"s_cmp_eq_u32 s{extra}, 0"); a("s_cbranch_scc1 L_red_done")
    a(f"s_ff1_i32_b32 s{slc}, s{extra}"); a(f"s_bitset0_b32 s{extra}, s{slc}")
    a("L_red_go:")
    a(f"s_mov_b32 s{new}, 0xff")
    a("s_branch L_red_setup")
    a("L_red_done:")
    return L

def reduce_kernel():
    L = []; a = L.append
    a("s_cmp_ge_u32 s2, 960"); a("s_cbranch_scc1 R_end")
    a("s_load_dwordx2 s[12:13], s[0:1], 96"); a("s_load_dwordx2 s[14:15], s[0:1], 80")
    a("v_lshrrev_b32 v1, 6, v0"); a("s_nop 0"); a("v_readfirstlane_b32 s3, v1")
    a("v_and_b32 v3, 63, v0")
    a("s_nop 2")
    a("s_lshl_b32 s16, s2, 2"); a("s_add_u32 s16, s16, s3")
    a("s_mul_hi_u32 s17, s16, 0x2222223")
    a("s_mul_i32 s18, s17, 120"); a("s_sub_u32 s34, s16, s18")
    a("s_lshr_b32 s28, s17, 4"); a("s_and_b32 s29, s17, 15")
    a("s_lshl_b32 s30, s29, 4"); a("s_lshl_b32 s22, s28, 2"); a("s_add_u32 s30, s30, s22")
    a(f"s_mul_i32 s30, s30, {PART_WG}")
    a(f"v_lshlrev_b32 v{v_l16}, 4, v3")
    a("v_and_b32 v2, 15, v3"); a("v_mul_u32_u24 v2, 2560, v2")
    a("v_lshrrev_b32 v3, 4, v3"); a("v_lshl_add_u32 v2, v3, 4, v2")
    a("s_waitcnt lgkmcnt(0)")
    a(f"s_mov_b32 s{sWS}, s12"); a(f"s_mov_b32 s{sWS+1}, s13"); a(f"s_mov_b32 s{sWS+2}, 438042624"); a(f"s_mov_b32 s{sWS+3}, 0x20000")
    a(f"s_mov_b32 s{sK}, s14"); a(f"s_mov_b32 s{sK+1}, s15"); a(f"s_mov_b32 s{sK+2}, 3932160"); a(f"s_mov_b32 s{sK+3}, 0x20000")
    a("s_lshl_b32 s42, s34, 10"); a("s_add_u32 s42, s42, s30")
    for hq in range(8): red_loads(a, [42], hq, "", 8)
    red_outaddr(a, 34, 12, 28, 29)
    a("s_waitcnt vmcnt(0)")
    red_sum(a, 1, [12], 8)
    a("R_end:")
    a("s_endpgm")
    return L

DESC = """.section .rodata,"a"
.p2align 6
.amdhsa_kernel {name}
  .amdhsa_next_free_vgpr {nv}
  .amdhsa_next_free_sgpr {ns}
  .amdhsa_accum_offset {acc}
  .amdhsa_group_segment_fixed_size 0
  .amdhsa_kernarg_size 104
  .amdhsa_user_sgpr_count 2
  .amdhsa_user_sgpr_kernarg_segment_ptr 1
  .amdhsa_system_sgpr_workgroup_id_x 1
.end_amdhsa_kernel
"""
def far_jump(lbl, uid):
    return [f"s_getpc_b64 s[{s_ret}:{s_ret+1}]", f"{uid}:", f"s_add_u32 s{s_ret}, s{s_ret}, {lbl}-{uid}",
            f"s_addc_u32 s{s_ret+1}, s{s_ret+1}, 0", f"s_setpc_b64 s[{s_ret}:{s_ret+1}]"]

def main():
    ap = argparse.ArgumentParser()
    ap.add_argument('-o', default=f'cdna_kernels/{KN}.s')
    ap.add_argument('--kind', default='X+W')
    ap.add_argument('--stamps', action='store_true')
    ap.add_argument('-v', action='store_true')
    ap.add_argument('--drop', default='')
    ap.add_argument('--opt', default='')
    a = ap.parse_args()
    for kv in filter(None, a.opt.split(',')):
        k, v = kv.split('=')
        fl = '' if v == 'df' else ' ' + v.replace('+', ' ')
        if k == 'w':
            for kk in ('wq0', 'wq1', 'wo0', 'wo1', 'x0', 'x1'): OPT[kk] = fl
        elif isinstance(OPT[k], int): OPT[k] = int(v, 0)
        else: OPT[k] = fl
    if not OPT['fuse'] and OPT['st'] == ' sc1': OPT['st'] = ''
    p1, p2 = prologue()
    p1, _ = fix_hazards(p1)
    kinds = a.kind.split('+')
    lines = []; nn = 0
    if len(kinds) > 1:
        pat = OPT['pat'].strip()
        pat = (pat * 32)[:32]
        lo = sum(int(c) << (2 * i) for i, c in enumerate(pat[:16])); hi = sum(int(c) << (2 * i) for i, c in enumerate(pat[16:]))
        lines += [f"; classes {pat}", f"s_mov_b32 s{s_ret}, {hex(lo)}", f"s_mov_b32 s{s_ret+1}, {hex(hi)}", f"s_lshr_b32 s{s_cnt}, s2, 3", f"s_lshl_b32 s{s_cnt}, s{s_cnt}, 1",
                  f"s_lshr_b64 s[{s_ret}:{s_ret+1}], s[{s_ret}:{s_ret+1}], s{s_cnt}", f"s_and_b32 s{s_cnt}, s{s_ret}, 3"]
        for ci in range(1, len(kinds)):
            lines += [f"s_cmp_eq_u32 s{s_cnt}, {ci}", f"s_cbranch_scc0 L_nc{ci}"] + far_jump(f'L_cls{ci}', f'L_pc{ci}') + [f"L_nc{ci}:"]
    for ci, kind in enumerate(kinds):
        body, nstamp = build_main(kind, a.stamps, p2)
        body = insert_waits(body)
        if a.drop:
            dr = a.drop.split(',')
            body = [i for i in body if i.k not in dr]
        body, n1 = fix_hazards(body, a.v); nn += n1
        l1, s1 = compress(body, S(s_cnt), uid=f'C{ci}_')
        s1 = [x.replace('L_rare', f'L_rare{ci}') for x in s1]
        lines += [f"L_cls{ci}:"]
        if OPT['cpf']: lines += [f"s_getpc_b64 s[{s_ret}:{s_ret+1}]", f"L_cp{ci}:", f"s_sub_u32 s{s_ret}, s{s_ret}, L_cp{ci}-L_go", f"s_subb_u32 s{s_ret+1}, s{s_ret+1}, 0"]
        lines += l1
        if a.stamps: lines += [f"s_mov_b32 s3, {12 if OPT['rst'] else nstamp}"]
        if ci < len(kinds) - 1: lines += far_jump('L_fin', f'L_pf{ci}')
        else: lines += ["s_branch L_fin"]
        lines += s1 + rare_path(f'L_rare{ci}_0', 0) + rare_path(f'L_rare{ci}_1', 1)
    lines += ["L_fin:"]
    NS = 12
    if a.stamps: lines += [f"s_memrealtime s[{s_stamp+2*NS}:{s_stamp+2*NS+1}]"]
    if OPT['fuse']: lines += fused_reduce(a.stamps and OPT['rst'])
    if a.stamps:
        so = stamp_out(NS + 1)
        so = [x.replace(f"v_mov_b32 v2, {NS+2}", "v_mov_b32 v2, s3") for x in so]
        lines += ["s_mov_b64 exec, -1"] + so
    lines += ["s_endpgm"]
    hdr = open(f'cdna_kernels/{KN}.s.ref').read().split('\n')
    hdr = [l for l in hdr if l.startswith(';') and '@launch' not in l and 'Override launch' not in l and 'grid=ceil' not in l]
    if OPT['fuse']: out = hdr + [f"; @launch grid=(256,1,1) block=(256,1,1) lds={LDS_BYTES}"]
    else: out = hdr + [f"; @launch kernel={KN}_kernel grid=(256,1,1) block=(256,1,1) lds={LDS_BYTES}",
                       "; @launch kernel=reduce_kernel grid=(960,1,1) block=(256,1,1) lds=0"]
    out += ['.amdgcn_target "amdgcn-amd-amdhsa--gfx950"', '.text',
            f'.globl {KN}_kernel', '.p2align 8', f'.type {KN}_kernel,@function', f'{KN}_kernel:']
    out += ["s_cmp_lt_u32 s2, 256", "s_cbranch_scc1 L_go", "s_endpgm", "L_go:"]
    if OPT['half']: out += [f"s_and_b32 s3, s2, {OPT['half']}", "s_cbranch_scc0 L_go2", "s_endpgm", "L_go2:"]
    out += [i.t for i in p1] + lines + ["L_code_end:"]
    if not OPT['fuse']:
        out += ['.globl reduce_kernel', '.p2align 8', '.type reduce_kernel,@function', 'reduce_kernel:'] + reduce_kernel()
    out.append(DESC.format(name=KN + '_kernel', nv=512, ns=102, acc=256))
    if not OPT['fuse']: out.append(DESC.format(name='reduce_kernel', nv=88, ns=72, acc=88))
    txt = "\n".join(out) + "\n"
    if OPT['mac']:
        txt = txt.replace("v_mfma_f32_16x16x32_bf16 ", "M ").replace("ds_read_b64_tr_b16 ", "T ").replace("v_cvt_pk_bf16_f32 ", "C ")
        txt = txt.replace("v_accvgpr_write_b32 ", "AW ").replace("buffer_load_dwordx4 ", "L ").replace(", ", ",")
        mac = [".macro M a:vararg", "v_mfma_f32_16x16x32_bf16 \\a", ".endm", ".macro T a:vararg", "ds_read_b64_tr_b16 \\a", ".endm",
               ".macro C a:vararg", "v_cvt_pk_bf16_f32 \\a", ".endm", ".macro AW a:vararg", "v_accvgpr_write_b32 \\a", ".endm",
               ".macro L a:vararg", "buffer_load_dwordx4 \\a", ".endm"]
        txt = txt.replace(".text\n", ".text\n" + "\n".join(mac) + "\n", 1)
        head = "\n".join(out[:len(hdr) + 2])
        txt = head + txt[txt.index("\n.text\n"):] if OPT['fuse'] else txt
    open(a.o, 'w').write(txt)
    print(f"wrote {a.o}: {len(out)} lines, {nn} hazard nops")

if __name__ == '__main__':
    main()
```

```python
import sys, math, argparse, struct
sys.path.insert(0, 'gen')
from asmlib import *

KN = 'concat_heads__mha_block_cached__gqa_block_cached__near_ridge'
SLOT = 24576; NBUF = 4; LEAD = 3; XT = 12288
XA = 0x18000; XB_ = 0x20000; XTOG = XA ^ XB_
LDS_BYTES = XB_ + 2 * XT
EXW = 18432
PART_WG = 122880
STAMP_OFF = 256 * PART_WG
H = 192 * 1280

OPT = {'wq0': '', 'wq1': '', 'wo0': '', 'wo1': '', 'x0': '', 'x1': '', 'kv': ' nt', 'st': ' sc1', 'rot': 1,
       'cmask': 0xAAAAAAAA, 'half': 0, 'early': 1, 'sp0': -1, 'spd': 2, 'fuse': 1, 'wper': 3, 'ovl': 1, 'outst': ' sc1', 'sleep': 2, 'polls': 3000, 'rld': ' sc1', 'rst': 0, 'cyc': 0, 'cpf': 1, 'pipe': 1, 'dend': 36, 'rot2': 1, 'pat': '01', 'mac': 1, 'hold': 6, 'nost': 0, 'pf': 0, 'pfs': 4, 'pfd': 4, 'ntp': 0, 'st0': 1, 'pfx0': 0, 'pfx1': 0, 'pfw0': 0, 'pfat': 3, 'pfstep': 2, 'rotq0': 1, 'snake': 1, 'edef': 1, 'vinit': 0}

sK, sV, sWQ, sWO, sX, sWS = 4, 8, 12, 16, 20, 24
s_w6144, s_k, s_v, s_wq, s_wo, s_x, s_xwr, s_tmp, s_cnt, s_c = range(28, 38)
s_wqb, s_wql, s_xb, s_xl, s_wob, s_wol, s_pt, s_ptb, s_ptl = range(38, 47)
s_ew, s_er0, s_er1, s_w, s_hq = range(47, 52)
s_ret = 52
s_tmp2 = 63
s_rq = 100; s_rx = 101
s_t0 = 54
s_stamp = 64
v_l16 = 0; v_k = 1; v_v = 5; v_p = 13; v_x = 17
v_m, v_l = 19, 22
v_t = 25
vP = 40; vS = 52; vXF = 76; v_dkv, v_dwq, v_dwx = 100, 103, 106; vO = 112
vACC = (76, 52)
aQN = 0; aRES = 0; aQ = 144; aF = 216; aE1 = 240; aE0 = 242

def Oreg(dt, qt): return vO + (dt * 3 + qt) * 4
SB = [0]
def Sbase(): return (vS, vXF)[SB[0]]
def Sreg(t, qt): return Sbase() + (t * 3 + qt) * 4

class Slot:
    def __init__(self, typ, **kw):
        self.typ = typ; self.__dict__.update(kw)
        self.pre = []; self.gaps = [[] for _ in range(36)]; self.mf = []; self.load = [0] * 36
    def put(self, gap, item):
        if isinstance(item, I): item = [item]
        self.gaps[gap].append(item); self.load[gap] += sum(i.cost for i in item)

def spread(slots_gaps, items, cap=2, even=False):
    items = [[x] if isinstance(x, I) else x for x in items]
    if not items: return
    level = cap
    while True:
        plan = []; k = 0
        free = [max(0, level - s.load[g]) for s, g in slots_gaps]
        tot_free = sum(free); tot_it = sum(sum(i.cost for i in it) for it in items)
        used = 0; seen_free = 0
        for n, (s, g) in enumerate(slots_gaps):
            ld = s.load[g]; seen_free += free[n]
            while k < len(items):
                c = sum(i.cost for i in items[k])
                if ld + c > level and not (ld == 0 and c > level): break
                if even and tot_free > tot_it and (used + c) * tot_free > seen_free * tot_it + tot_free: break
                plan.append((s, g, items[k])); ld += c; k += 1; used += c
        if k == len(items): break
        if even: even = False
        else: level += 1
    for s, g, it in plan: s.put(g, it)

def frag_reads(sl, j):
    d = aF + (j % 6) * 4
    tag = ('f', sl.idx, j)
    buf = sl.idx % NBUF
    hi = buf >> 1; bo = (buf & 1) * SLOT
    if sl.typ == 'K':
        t, ks = divmod(j, 6)
        return [dsread('ds_read_b128', A(d, 4), V(v_k + hi * 2 + (ks & 1)), bo + t * 6144 + (ks >> 1) * 128, tag)]
    if sl.typ in ('V', 'Q'):
        off = bo + (j >> 2) * 128; a = V(v_v + hi * 4 + (j & 3))
        return [dsread('ds_read_b64_tr_b16', A(d, 2), a, off, tag), dsread('ds_read_b64_tr_b16', A(d + 2, 2), a, off + 6144, tag)]
    if sl.typ == 'P':
        u, nt = divmod(j, 2); a = V(v_p + hi * 2 + nt); off = bo + u * 4096
        return [dsread('ds_read_b64_tr_b16', A(d, 2), a, off, tag), dsread('ds_read_b64_tr_b16', A(d + 2, 2), a, off + 2048, tag)]

def x_reads(sl):
    return [dsread('ds_read_b128', V(vXF + (sl.j % 2) * 12 + qt * 4, 4), V(v_x + (sl.j & 1)),
                   ((sl.j >> 1) & 1) * XT + qt * 2048, ('x', sl.idx)) for qt in range(3)]

def wrapadd(reg, inc, lim, base):
    return [salu('s_add_u32', S(reg), S(reg), inc & 0xffffffff),
            [scmp('s_cmp_eq_u32', S(reg), S(lim)), salu('s_cselect_b32', S(reg), S(base), S(reg))]]
def bump(regs3, d): return [salu('s_add_u32', S(r), S(r), d & 0xffffffff) for r in regs3]

v_pw = 111
def prefill_loads(sl):
    srd, so = (sK, s_k) if sl.typ == 'K' else (sV, s_v)
    tag = ('pfl', sl.idx)
    it = [salu('s_add_u32', S(s_tmp2), S(so), 3072)]
    for j in range(6):
        it.append(bload(A(sl.pfreg + 4 * j, 4), V(v_dkv + j % 3), S(srd, 4), S(so if j < 3 else s_tmp2), 1024 * (j % 3), tag, OPT['kv']))
    it.append(salu('s_add_u32', S(so), S(so), 12288))
    return it
def prefill_writes(sl):
    buf = sl.idx % NBUF
    it = []
    a = v_pw
    if buf >= 2:
        a = v_t + 14; it.append(valu('v_add_u32', V(a), 2 * SLOT, V(v_pw)))
    for j in range(6):
        w = dswrite('ds_write_b128', V(a), A(sl.pfreg + 4 * j, 4), (buf & 1) * SLOT + 1024 * j, ('d', sl.idx))
        if j == 0: w.need = [('pfl', sl.idx)]
        it.append(w)
    return it
def dma_items(sl):
    if getattr(sl, 'pfreg', None) is not None: return prefill_writes(sl)
    tag = ('d', sl.idx)
    if sl.typ == 'K': srd, so, vo, dl = sK, s_k, v_dkv, 3072; upd = [salu('s_add_u32', S(s_k), S(s_k), 12288)]
    elif sl.typ == 'V': srd, so, vo, dl = sV, s_v, v_dkv, 3072; upd = [salu('s_add_u32', S(s_v), S(s_v), 12288)]
    elif sl.typ == 'Q':
        srd, so, vo, dl = sWQ, s_wq, v_dwq, 16 * 12288
        upd = wrapadd(s_wq, 32 * 12288, s_wql, s_wqb) if sl.j % 2 else [salu('s_add_u32', S(s_wq), S(s_wq), 32 * 12288)]
        if sl.j == 19: upd += bump((s_wq, s_wqb, s_wql), 384)
        if sl.j == 19 and sl.rnd == 0 and not OPT['rotq0']: upd.append(salu('s_add_u32', S(s_wq), S(s_wq), S(s_rq)))
    elif sl.typ == 'P':
        srd, so, vo, dl = sWO, s_wo, v_dwx, 24 * 1280
        incs = [2 * H, 128 - 2 * H] if sl.nh == 2 else [2 * H, -H, 2 * H, 128 - 3 * H]
        if sl.hh < sl.nh - 1: upd = [salu('s_add_u32', S(s_wo), S(s_wo), incs[sl.hh] & 0xffffffff)]
        else:
            upd = wrapadd(s_wo, incs[sl.hh], s_wol, s_wob)
            if sl.ch == 9 and sl.rnd == 0: upd += bump((s_wo, s_wob, s_wol), H)
    fl = OPT['kv'] if sl.typ in 'KV' else OPT[('wq' if sl.typ == 'Q' else 'wo') + str(sl.rnd)]
    if sl.typ == 'Q' and sl.j < 2 * OPT['ntp']: fl = ' nt'
    if sl.typ == 'P' and sl.ch < OPT['ntp']: fl = ' nt'
    srd = S(srd, 4); lb = (sl.idx % NBUF) * SLOT
    it = [salu('s_add_u32', 'm0', S(s_w6144), lb), salu('s_add_u32', S(s_tmp), S(so), dl)]
    it += [dma(V(vo + k), srd, S(so), 1024 * k, tag, fl) for k in range(3)]
    it += [salu('s_add_u32', 'm0', 'm0', 3072)] + upd[:1]
    it += [dma(V(vo + k), srd, S(s_tmp), 1024 * k, tag, fl) for k in range(3)]
    it += upd[1:]
    return it

def x_items(sl):
    fl = OPT['x' + str(sl.rnd)]
    xt = ('xd', sl.idx)
    it = []
    for h in range(2):
        it.append(salu('s_add_u32', 'm0', S(s_xwr), h * XT))
        if h == 1: it.append(salu('s_xor_b32', S(s_xwr), S(s_xwr), XTOG))
        it += [dma(V(v_dwx + k), S(sX, 4), S(s_x), 1024 * k, xt, fl) for k in range(3)]
        it += wrapadd(s_x, 128, s_xl, s_xb)
    if sl.j == 16 and sl.rnd == 0 and not OPT['rotq0']: it.append(salu('s_add_u32', S(s_x), S(s_x), S(s_rx)))
    return it

def build_mfmas(sl):
    mf = []
    wp = OPT['wper']
    for j in range(12):
        a = A(aF + (j % 6) * 4, 4)
        need = []
        if j % wp == 0: need = [('f', sl.idx, j + k) for k in range(wp)]
        if j == 0 and sl.typ == 'Q': need.append(('x', sl.idx))
        for qi in range(3):
            qt = 2 - qi if (OPT['snake'] and j % 2) else qi
            if sl.typ == 'K':
                t, ks = divmod(j, 6); SB[0] = (sl.i & 1) if OPT['pipe'] else 0
                d = V(Sreg(t, qt), 4); b = A(aQ + (ks * 3 + qt) * 4, 4); c = 0 if ks == 0 else d
            elif sl.typ == 'V':
                d = V(Oreg(j, qt), 4); b = V(vP + qt * 4, 4); c = 0 if sl.first else d
            elif sl.typ == 'Q':
                d = A(aQN + (j * 3 + qt) * 4, 4) if sl.accA else V(Oreg(j, qt), 4)
                b = V(vXF + (sl.j % 2) * 12 + qt * 4, 4); c = 0 if sl.j == 0 else d
            elif sl.typ == 'P':
                u, nt = divmod(j, 2); hh = sl.hh; ch = sl.ch
                d = V(vACC[ch % 2] + (nt * 3 + qt) * 4, 4)
                if sl.nh == 4 and hh < 2: b = A(aQN + hh * 72 + (u * 3 + qt) * 4, 4)
                else: b = V(vO + (hh % 2) * 72 + (u * 3 + qt) * 4, 4)
                c = 0 if (hh == 0 and u == 0 and (sl.rnd == 0 or sl.nh == 4)) else d
            mf.append(mfma(d, a, b, c, need=need if qi == 0 else ()))
    sl.mf = mf

def xrow(v, tmp, op):
    return [valu('v_mov_b32', V(tmp), V(v)), perm('v_permlane32_swap_b32', V(v), V(tmp)), valu(op, V(v), V(v), V(tmp)),
            valu('v_mov_b32', V(tmp), V(v)), perm('v_permlane16_swap_b32', V(v), V(tmp)), valu(op, V(v), V(v), V(tmp))]

def interleave(*lists):
    out = []
    for k in range(max(len(l) for l in lists)):
        for l in lists:
            if k < len(l): out.append(l[k])
    return out

def max8(x, vals):
    return [valu('v_max3_f32', V(x), V(vals[0]), V(vals[1]), V(vals[2])), valu('v_max3_f32', V(x), V(x), V(vals[3]), V(vals[4])),
            valu('v_max3_f32', V(x), V(x), V(vals[5]), V(vals[6])), valu('v_max_f32', V(x), V(x), V(vals[7]))]

def softmax_init():
    ch = []
    for qt in range(3):
        x = v_m + qt
        c = max8(x, [Sreg(t, qt) + r for t in range(2) for r in range(4)]) + xrow(x, v_t + qt, 'v_max_f32')
        c += [valu('v_mul_f32', V(x), S(s_c), V(x)), valu('v_mov_b32', V(v_l + qt), 0)]
        ch.append(c)
    return interleave(*ch)

def sm_fma(t):
    return [valu('v_fma_f32', V(Sreg(t, qt) + r), V(Sreg(t, qt) + r), S(s_c), '-' + V(v_m + qt)) for qt in range(3) for r in range(4)]
def sm_max(t):
    vals = [Sbase() + t * 12 + i for i in range(12)]
    x = v_t + 3
    if t == 0:
        o = [valu('v_max3_f32', V(x), V(vals[0]), V(vals[1]), V(vals[2]))]
        for i in range(3, 11, 2): o.append(valu('v_max3_f32', V(x), V(x), V(vals[i]), V(vals[i + 1])))
        o.append(valu('v_max_f32', V(x), V(x), V(vals[11])))
        return o
    return [valu('v_max3_f32', V(x), V(x), V(vals[i]), V(vals[i + 1])) for i in range(0, 12, 2)]
def sm_fmamax(t):
    f = sm_fma(t); m = sm_max(t)
    o = f[:4]; k = 0
    for i in range(4, 12, 2): o += f[i:i + 2] + [m[k]]; k += 1
    return o + m[k:]
def sm_check():
    return [[vcmp('v_cmp_lt_f32', 0x41000000, V(v_t + 3)),
             raw('s_cbranch_vccnz {L}_r', 'branch', ['vcc']), raw('{L}_b:', 'label'),
             raw('{L}_r:\ns_call_b64 s[%d:%d], L_rare_%d\ns_branch {L}_b' % (s_ret, s_ret + 1, SB[0]), 'stub')]]
def sm_exp():
    o = []
    order = [(t, r) for t in range(2) for r in range(4)]
    for k, (t, r) in enumerate(order):
        for qt in range(3): o.append(valu('v_exp_f32', V(Sreg(t, qt) + r), V(Sreg(t, qt) + r)))
        if k >= 1:
            pt, pr = order[k - 1]
            for qt in range(3): o.append(valu('v_add_f32', V(v_l + qt), V(v_l + qt), V(Sreg(pt, qt) + pr)))
            if pr % 2 == 1:
                for qt in range(3):
                    o.append(valu('v_cvt_pk_bf16_f32', V(vP + qt * 4 + pt * 2 + pr // 2), V(Sreg(pt, qt) + pr - 1), V(Sreg(pt, qt) + pr)))
    for qt in range(3): o.append(valu('v_cvt_pk_bf16_f32', V(vP + qt * 4 + 3), V(Sreg(1, qt) + 2), V(Sreg(1, qt) + 3)))
    tail = [valu('v_add_f32', V(v_l + qt), V(v_l + qt), V(Sreg(1, qt) + 3)) for qt in range(3)]
    return o, tail

def rare_path(name, sb):
    SB[0] = sb
    ch = []
    for qt in range(3):
        vals = [Sreg(t, qt) + r for t in range(2) for r in range(4)]
        x = v_t + 4 + qt; f = v_t + 7 + qt
        c = max8(x, vals) + xrow(x, v_t + qt, 'v_max_f32')
        c += [valu('v_max_f32', V(x), 0, V(x)), valu('v_add_f32', V(v_m + qt), V(v_m + qt), V(x)),
              valu('v_sub_f32', V(f), 0, V(x)), valu('v_exp_f32', V(f), V(f))]
        c += [valu('v_sub_f32', V(s), V(s), V(x)) for s in vals]
        c += [valu('v_mul_f32', V(v_l + qt), V(v_l + qt), V(f))]
        c += [valu('v_mul_f32', V(Oreg(dt, qt) + r), V(Oreg(dt, qt) + r), V(f)) for dt in range(12) for r in range(4)]
        ch.append(c)
    p, _ = fix_hazards([nop(7)] + interleave(*ch) + [nop(3)])
    return [name + ":"] + [i.t for i in p] + [f"s_setpc_b64 s[{s_ret}:{s_ret+1}]"]

def q_convert_u(u, dest):
    T = [vS + (u % 2) * 12 + 4 * qt for qt in range(3)]
    out = []
    for qt in range(3):
        for h in range(2):
            for k in range(2):
                s0 = Oreg(2 * u + h, qt) + 2 * k
                out.append(valu('v_cvt_pk_bf16_f32', V(T[qt] + h * 2 + k), V(s0), V(s0 + 1)))
    for op in ('v_permlane32_swap_b32', 'v_permlane16_swap_b32'):
        for qt in range(3):
            for k in range(2): out.append(perm(op, V(T[qt] + k), V(T[qt] + 2 + k)))
    for qt in range(3):
        for k in range(4): out.append(valu('v_accvgpr_write_b32', A(dest + (u * 3 + qt) * 4 + k), V(T[qt] + k)))
    return out

def q_convert_a(u):
    T = [vS + 12 + 4 * qt for qt in range(3)]
    rd = []; out = []
    for qt in range(3):
        for h in range(2):
            for k in range(2):
                s0 = vXF + (qt * 4 + h * 2 + k) * 2; a0 = aQN + ((2 * u + h) * 3 + qt) * 4 + 2 * k
                rd += [valu('v_accvgpr_read_b32', V(s0), A(a0)), valu('v_accvgpr_read_b32', V(s0 + 1), A(a0 + 1))]
                out.append(valu('v_cvt_pk_bf16_f32', V(T[qt] + h * 2 + k), V(s0), V(s0 + 1)))
    for op in ('v_permlane32_swap_b32', 'v_permlane16_swap_b32'):
        for qt in range(3):
            for k in range(2): out.append(perm(op, V(T[qt] + k), V(T[qt] + 2 + k)))
    for qt in range(3):
        for k in range(4): out.append(valu('v_accvgpr_write_b32', A(aQ + (u * 3 + qt) * 4 + k), V(T[qt] + k)))
    return rd + out

RL = 30
def e_head():
    out = interleave(*[xrow(v_l + qt, v_t + qt, 'v_add_f32') + [valu('v_rcp_f32', V(RL + 2 * qt), V(v_l + qt)),
                       valu('v_mov_b32', V(RL + 1 + 2 * qt), V(RL + 2 * qt))] for qt in range(3)])
    out += [valu('v_add_u32', V(36), S(s_ew), V(v_l16)), valu('v_add_u32', V(37), S(s_er0), V(v_l16)),
            valu('v_add_u32', V(38), S(s_er1), V(v_l16))]
    return out
def e_pack(u, eid, packed):
    T = vS + (u % 2) * 12
    o = []
    for qt in range(3):
        for h in range(2):
            s = Oreg(2 * u + h, qt)
            if packed:
                o += [valu('v_pk_mul_f32', V(s + 2 * k, 2), V(s + 2 * k, 2), V(RL + 2 * qt, 2)) for k in range(2)]
            else:
                o += [valu('v_mul_f32', V(s + k), V(s + k), V(RL + 2 * qt)) for k in range(4)]
    for qt in range(3):
        for h in range(2):
            s = Oreg(2 * u + h, qt)
            for k in range(2):
                o.append(valu('v_cvt_pk_bf16_f32', V(T + qt * 4 + h * 2 + k), V(s + 2 * k), V(s + 2 * k + 1)))
        o.append(dswrite('ds_write_b128', V(36), V(T + qt * 4, 4), (u * 3 + qt) * 1024, ('ew', eid)))
    return o
def e_reads(eid, toA):
    out = []
    for hh in range(2):
        for f in range(18):
            dst = A(aQN + hh * 72 + f * 4, 4) if toA else V(vO + hh * 72 + f * 4, 4)
            out.append(dsread('ds_read_b128', dst, V(37 + hh), f * 1024, ('er', eid, hh, f)))
    return out

def flush_held(ch):
    o = [bstore(A(aQ + ch * 12 + qt * 4, 4), V(v_l16), S(sWS, 4), S(s_ew), qt * 1024, ('st', ch), OPT['st']) for qt in range(3)]
    return o + wrapadd(s_ew, 12288, s_ptl, s_ptb)
def chunk_end(ch, store, held=False):
    acc = vACC[ch % 2]
    if held:
        o = chunk_end(ch, False)
        o = o[:12] + [valu('v_accvgpr_write_b32', A(aQ + ch * 12 + i), V(vP + i)) for i in range(12)]
        if ch == 0: o.append(salu('s_mov_b32', S(s_ew), S(s_pt)))
        return o + wrapadd(s_pt, 12288, s_ptl, s_ptb)
    o = []
    for qt in range(3):
        for nt in range(2):
            for k in range(2):
                s = acc + (nt * 3 + qt) * 4 + 2 * k
                o.append(valu('v_cvt_pk_bf16_f32', V(vP + qt * 4 + nt * 2 + k), V(s), V(s + 1)))
        if store:
            o.append(bstore(V(vP + qt * 4, 4), V(v_l16), S(sWS, 4), S(s_pt), qt * 1024, ('st', ch), OPT['st']))
    if not store: o += [valu('v_accvgpr_write_b32', A(aRES + ch * 12 + i), V(vP + i)) for i in range(12)]
    else: o += wrapadd(s_pt, 12288, s_ptl, s_ptb)
    return o

def chunk_init_valu(ch):
    acc = vACC[ch % 2]
    o = []
    for qt in range(3):
        for nt in range(2):
            for k in range(2):
                d = acc + (nt * 3 + qt) * 4 + 2 * k
                o.append(valu('v_accvgpr_read_b32', V(d + 1), A(aRES + ch * 12 + qt * 4 + nt * 2 + k)))
                o.append(valu('v_lshlrev_b32', V(d), 16, V(d + 1)))
                o.append(valu('v_and_b32', V(d + 1), 0xffff0000, V(d + 1)))
    return o
def chunk_init(ch):
    acc = vACC[ch % 2]
    return [mfma(V(acc + (nt * 3 + qt) * 4, 4), A(aE1 if nt else aE0, 4), A(aRES + ch * 12 + qt * 4, 4), 0)
            for nt in range(2) for qt in range(3)]

def stamp(n): return [raw(f"{'s_memtime' if OPT['cyc'] == 1 else 's_memrealtime'} s[{s_stamp+2*n}:{s_stamp+2*n+1}]", 'smem')]

def prologue():
    P = []; a = P.append
    T = s_t0
    a(salu('s_and_b32', S(T), 's2', 7)); a(salu('s_lshr_b32', S(T + 1), 's2', 3))
    a(salu('s_lshr_b32', S(T + 2), S(T), 2))
    a(salu('s_mul_i32', S(T + 2), S(T + 2), 40))
    a(salu('s_add_u32', S(T + 4), 's0', S(T + 2))); a(salu('s_addc_u32', S(T + 5), 's1', 0))
    a(raw(f"s_load_dwordx8 s[68:75], s[{T+4}:{T+5}], 0", 'smem'))
    a(raw(f"s_load_dwordx2 s[76:77], s[{T+4}:{T+5}], 32", 'smem'))
    a(raw("s_load_dwordx2 s[78:79], s[0:1], 96", 'smem'))
    a(salu('s_and_b32', S(T), S(T), 3)); a(salu('s_lshl_b32', S(T), S(T), 1))
    a(salu('s_and_b32', S(T + 3), S(T + 1), 1)); a(salu('s_or_b32', S(s_hq), S(T), S(T + 3)))
    a(salu('s_lshr_b32', S(T + 1), S(T + 1), 1))
    a(valu('v_lshrrev_b32', V(v_t), 6, 'v0'))
    a(nop(0))
    a(raw(f"v_readfirstlane_b32 s{s_w}, v{v_t}", 'valu', [f'v{v_t}'], [f's{s_w}']))
    lane, n16, g, tmp, tmp2, row, sw = range(v_t, v_t + 7)
    a(valu('v_and_b32', V(lane), 63, 'v0'))
    a(valu('v_lshlrev_b32', V(v_l16), 4, V(lane)))
    W = s_w; Pp = T + 7; QH = T + 8; HQ = s_hq; B = T + 1; ROT = T + 2
    def swz(dst, r): a(valu('v_and_b32', V(dst), 6, V(r)))
    a(valu('v_lshrrev_b32', V(row), 3, V(lane)))
    swz(sw, row)
    a(valu('v_and_b32', V(tmp), 7, V(lane))); a(valu('v_xor_b32', V(tmp), V(tmp), V(sw)))
    a(valu('v_lshlrev_b32', V(tmp), 4, V(tmp)))
    a(valu('v_mul_u32_u24', V(row), 1280, V(row)))
    a(valu('v_add_u32', V(v_dwx), V(tmp), V(row)))
    a(valu('v_add_u32', V(v_dwx + 1), 8 * 1280 - 1024, V(v_dwx)))
    a(valu('v_add_u32', V(v_dwx + 2), 2 * (8 * 1280 - 1024), V(v_dwx)))
    a(salu('s_mov_b32', S(s_tmp), 0xAAAAAAB))
    for j in range(3):
        a(valu('v_add_u32', V(tmp), 64 * j, V(lane)))
        a(valu('v_mul_hi_u32', V(row), V(tmp), S(s_tmp)))
        swz(sw, row)
        a(valu('v_lshlrev_b32', V(sw), 4, V(sw)))
        a(valu('v_xor_b32', V(v_dkv + j), V(v_l16), V(sw)))
        a(valu('v_mul_u32_u24', V(tmp2), 24, V(row))); a(valu('v_sub_u32', V(tmp), V(tmp), V(tmp2)))
        a(valu('v_lshlrev_b32', V(tmp), 4, V(tmp))); a(valu('v_xor_b32', V(tmp), V(tmp), V(sw)))
        a(valu('v_lshrrev_b32', V(tmp2), 2, V(row))); a(valu('v_lshl_add_u32', V(row), V(tmp2), 2, V(row)))
        a(valu('v_mul_u32_u24', V(row), 12288, V(row)))
        a(valu('v_add_u32', V(tmp), V(tmp), V(row)))
        a(valu('v_subrev_u32', V(v_dwq + j), 1024 * j, V(tmp)))
    a(salu('s_lshr_b32', S(Pp), S(W), 1)); a(salu('s_and_b32', S(QH), S(W), 1))
    a(salu('s_mul_i32', S(s_w6144), S(W), 6144))
    a(salu('s_lshl_b32', S(T + 3), S(HQ), 2)); a(salu('s_lshl_b32', S(T + 9), S(Pp), 1))
    a(salu('s_add_u32', S(T + 9), S(T + 9), S(T + 3)))
    a(salu('s_mul_i32', S(ROT), S(B), 5 * OPT['rot'])); a(salu('s_lshr_b32', S(ROT), S(ROT), 3))
    if OPT['rot2']:
        a(salu('s_and_b32', S(s_tmp), S(HQ), 1)); a(salu('s_mul_i32', S(s_tmp), S(s_tmp), 5))
        a(salu('s_add_u32', S(ROT), S(ROT), S(s_tmp)))
        a(scmp('s_cmp_ge_u32', S(ROT), 10)); a(salu('s_cselect_b32', S(s_tmp), 10, 0)); a(salu('s_sub_u32', S(ROT), S(ROT), S(s_tmp)))
    a(salu('s_mul_i32', S(s_wqb), S(T + 9), 384)); a(salu('s_mul_i32', S(s_tmp), S(QH), 4 * 12288))
    a(salu('s_add_u32', S(s_wqb), S(s_wqb), S(s_tmp)))
    a(salu('s_add_u32', S(s_wql), S(s_wqb), 640 * 12288))
    a(salu('s_mul_i32', S(s_rq), S(ROT), 64 * 12288))
    if OPT['rotq0']: a(salu('s_add_u32', S(s_wq), S(s_wqb), S(s_rq)))
    else: a(salu('s_mov_b32', S(s_wq), S(s_wqb)))
    a(salu('s_mul_i32', S(s_xb), S(B), 96)); a(salu('s_mul_i32', S(s_tmp), S(W), 24))
    a(salu('s_add_u32', S(s_xb), S(s_xb), S(s_tmp))); a(salu('s_mul_i32', S(s_xb), S(s_xb), 1280))
    a(salu('s_add_u32', S(s_xl), S(s_xb), 1280))
    a(salu('s_lshl_b32', S(T + 6), S(ROT), 7)); a(salu('s_mov_b32', S(s_rx), S(T + 6)))
    if OPT['rotq0']: a(salu('s_add_u32', S(s_x), S(s_xb), S(T + 6)))
    else: a(salu('s_mov_b32', S(s_x), S(s_xb)))
    a(salu('s_mul_i32', S(s_tmp), S(W), 3072)); a(salu('s_add_u32', S(s_xwr), S(s_tmp), XA))
    a(raw("s_waitcnt lgkmcnt(0)", 'wait'))
    for srd, p, n in ((sX, 68, 1966080), (sWQ, 74, 7864320)):
        a(salu('s_mov_b32', S(srd), S(p))); a(salu('s_mov_b32', S(srd + 1), S(p + 1)))
        a(salu('s_mov_b32', S(srd + 2), n)); a(salu('s_mov_b32', S(srd + 3), 0x20000))
    P2 = []; a = P2.append
    if OPT['cpf'] == 1:
        a(salu('s_lshr_b32', S(T), 's2', 3)); a(salu('s_lshl_b32', S(T), S(T), 2)); a(salu('s_add_u32', S(T), S(T), S(W)))
        a(salu('s_lshl_b32', S(T), S(T), 4))
        a(valu('v_and_b32', V(tmp), 15, V(lane))); a(valu('v_add_u32', V(tmp), S(T), V(tmp)))
        a(valu('v_lshlrev_b32', V(tmp), 7, V(tmp)))
        a(raw(f"v_min_u32 v{tmp}, L_code_end-L_go-4, v{tmp}", 'valu', [f'v{tmp}'], [f'v{tmp}']))
        a(I(f"global_load_dword v{v_t+10}, v{tmp}, s[{s_ret}:{s_ret+1}]", 'vload', [f'v{tmp}', f's{s_ret}', f's{s_ret+1}'], [f'v{v_t+10}'], tag=('cpf',)))
    for srd, p, n in ((sK, 70, 100663296), (sV, 72, 100663296), (sWO, 76, 7864320), (sWS, 78, 438042624)):
        a(salu('s_mov_b32', S(srd), S(p))); a(salu('s_mov_b32', S(srd + 1), S(p + 1)))
        a(salu('s_mov_b32', S(srd + 2), n)); a(salu('s_mov_b32', S(srd + 3), 0x20000))
    a(valu('v_and_b32', V(n16), 15, V(lane))); a(valu('v_lshrrev_b32', V(g), 4, V(lane)))
    a(salu('s_bfe_u32', S(T), 's2', 0x10002)); a(salu('s_lshl_b32', S(T), S(T), 4)); a(salu('s_add_u32', S(T), S(T), S(B)))
    a(salu('s_lshl_b32', S(T), S(T), 7)); a(salu('s_add_u32', S(T), S(T), FLAG_OFF))
    a(valu('v_and_b32', V(v_fa), 7, V(lane))); a(valu('v_lshl_add_u32', V(v_fa), V(v_fa), 2, S(T)))
    a(bload(V(v_fl), V(v_fa), S(sWS, 4), 0, 0, ('fl',), ' sc1', op='buffer_load_dword'))
    a(salu('s_lshl_b32', S(s_k), S(B), 5)); a(salu('s_add_u32', S(s_k), S(s_k), S(T + 9)))
    a(salu('s_mul_i32', S(s_k), S(s_k), 196608))
    a(salu('s_mul_i32', S(s_cnt), S(QH), 6144)); a(salu('s_add_u32', S(s_k), S(s_k), S(s_cnt)))
    a(salu('s_mov_b32', S(s_v), S(s_k)))
    a(salu('s_mul_i32', S(s_wob), S(T + 3), 192)); a(salu('s_mul_i32', S(s_wol), S(W), 48))
    a(salu('s_add_u32', S(s_wob), S(s_wob), S(s_wol))); a(salu('s_mul_i32', S(s_wob), S(s_wob), 1280))
    a(salu('s_add_u32', S(s_wol), S(s_wob), 1280))
    a(salu('s_add_u32', S(s_wo), S(s_wob), S(T + 6)))
    a(salu('s_mul_i32', S(s_ptb), 's2', PART_WG)); a(salu('s_mul_i32', S(T), S(W), 3072))
    a(salu('s_add_u32', S(s_ptb), S(s_ptb), S(T))); a(salu('s_add_u32', S(s_ptl), S(s_ptb), PART_WG))
    a(salu('s_mul_i32', S(T), S(ROT), 12288)); a(salu('s_add_u32', S(s_pt), S(s_ptb), S(T)))
    c = (192 ** -0.5) * math.log2(math.e)
    a(salu('s_mov_b32', S(s_c), struct.unpack('<I', struct.pack('<f', c))[0]))
    a(salu('s_mul_i32', S(T), S(Pp), 12288))
    swz(sw, n16)
    a(valu('v_xor_b32', V(tmp), V(g), V(sw))); a(valu('v_lshlrev_b32', V(tmp), 4, V(tmp)))
    a(valu('v_mul_u32_u24', V(tmp2), 384, V(n16))); a(valu('v_add3_u32', V(v_k), V(tmp), V(tmp2), S(T)))
    a(valu('v_xor_b32', V(v_k + 1), 64, V(v_k)))
    a(valu('v_add_u32', V(v_k + 2), 2 * SLOT, V(v_k))); a(valu('v_add_u32', V(v_k + 3), 2 * SLOT, V(v_k + 1)))
    a(salu('s_add_u32', S(s_cnt), S(s_cnt), XA))
    a(valu('v_lshlrev_b32', V(tmp2), 7, V(n16))); a(valu('v_add3_u32', V(v_x), V(tmp), V(tmp2), S(s_cnt)))
    a(valu('v_xor_b32', V(v_x + 1), 64, V(v_x)))
    a(valu('v_lshrrev_b32', V(row), 2, V(lane)))
    swz(sw, row)
    a(valu('v_bfe_u32', V(tmp), V(lane), 1, 1))
    a(valu('v_xor_b32', V(tmp), V(tmp), V(sw))); a(valu('v_lshlrev_b32', V(tmp), 4, V(tmp)))
    a(valu('v_and_b32', V(tmp2), 1, V(lane))); a(valu('v_lshl_add_u32', V(tmp), V(tmp2), 3, V(tmp)))
    a(valu('v_mul_u32_u24', V(tmp2), 384, V(row))); a(valu('v_add3_u32', V(v_v), V(tmp), V(tmp2), S(T)))
    for j in (1, 2, 3): a(valu('v_xor_b32', V(v_v + j), j << 5, V(v_v)))
    for j in range(4): a(valu('v_add_u32', V(v_v + 4 + j), 2 * SLOT, V(v_v + j)))
    a(valu('v_lshl_add_u32', V(v_p), V(row), 7, V(tmp)))
    a(salu('s_lshl_b32', S(T), S(Pp), 6))
    a(valu('v_xor_b32', V(v_p), S(T), V(v_p))); a(valu('v_xor_b32', V(v_p + 1), 32, V(v_p)))
    for j in range(2): a(valu('v_add_u32', V(v_p + 2 + j), 2 * SLOT, V(v_p + j)))
    a(valu('v_lshrrev_b32', V(tmp), 2, V(n16)))
    a(vcmp('v_cmp_eq_u32', V(tmp), V(g)))
    a(valu('v_and_b32', V(tmp2), 1, V(n16))); a(valu('v_lshlrev_b32', V(tmp2), 4, V(tmp2)))
    a(salu('s_mov_b32', S(T), 0x3F80))
    a(valu('v_lshlrev_b32', V(tmp2), V(tmp2), S(T)))
    a(valu('v_cndmask_b32', V(tmp2), 0, V(tmp2)))
    a(valu('v_and_b32', V(tmp), 2, V(n16)))
    a(vcmp('v_cmp_eq_u32', 0, V(tmp)))
    a(valu('v_cndmask_b32', V(row), 0, V(tmp2)))
    a(valu('v_sub_u32', V(sw), V(tmp2), V(row)))
    for r in (240, 241, 244, 245): a(valu('v_accvgpr_write_b32', A(r), 0))
    a(valu('v_accvgpr_write_b32', A(242), V(row))); a(valu('v_accvgpr_write_b32', A(243), V(sw)))
    if OPT['pf']:
        a(salu('s_lshr_b32', S(T), 's2', 3)); a(salu('s_lshl_b32', S(T), S(T), 2))
        a(salu('s_and_b32', S(s_cnt), 's2', 3)); a(salu('s_add_u32', S(T), S(T), S(s_cnt)))
        a(salu('s_lshl_b32', S(T), S(T), 2)); a(salu('s_add_u32', S(T), S(T), S(W)))
        a(salu('s_mul_i32', S(s_cnt), S(T), 120))
        a(valu('v_add_u32', V(38), S(s_cnt), V(lane))); a(valu('v_lshlrev_b32', V(38), 7, V(38)))
        a(valu('v_add_u32', V(39), 8192, V(38)))
        a(salu('s_mul_i32', S(s_cnt), S(T), 60))
        a(valu('v_add_u32', V(tmp), S(s_cnt), V(lane)))
        a(salu('s_mov_b32', S(s_cnt), 0x5555556))
        a(valu('v_mul_hi_u32', V(row), V(tmp), S(s_cnt)))
        a(valu('v_mul_u32_u24', V(tmp2), 48, V(row))); a(valu('v_sub_u32', V(tmp), V(tmp), V(tmp2)))
        a(valu('v_mul_u32_u24', V(tmp2), 86, V(tmp))); a(valu('v_lshrrev_b32', V(tmp2), 8, V(tmp2)))
        a(valu('v_mul_u32_u24', V(row), 12288, V(row)))
        a(valu('v_lshl_add_u32', V(row), V(tmp), 7, V(row)))
        a(valu('v_mul_u32_u24', V(tmp2), 384, V(tmp2)))
        a(valu('v_add_u32', V(row), V(row), V(tmp2))); a(valu('v_add_u32', V(37), 384, V(row)))
    a(valu('v_add_u32', V(v_pw), S(s_w6144), V(v_l16)))
    a(salu('s_mul_i32', S(s_ew), S(W), EXW)); a(salu('s_add_u32', S(s_ew), S(s_ew), XA))
    a(scmp('s_cmp_eq_u32', S(W), 3)); a(salu('s_cselect_b32', S(s_ew), 3 * SLOT, S(s_ew)))
    a(salu('s_mul_i32', S(s_er0), S(QH), EXW)); a(salu('s_add_u32', S(s_er0), S(s_er0), XA))
    a(salu('s_mov_b32', S(s_er1), XA + 2 * EXW)); a(scmp('s_cmp_eq_u32', S(QH), 1)); a(salu('s_cselect_b32', S(s_er1), 3 * SLOT, S(s_er1)))
    return P, [x for x in P2 if x is not None]

def make_seq(kind):
    seq = []
    def Q(r, accA=False): return [Slot('Q', j=j, rnd=r, accA=accA) for j in range(20)]
    def Aa(r):
        if not OPT['pipe']: return [Slot(t, i=i, rnd=r, first=(i == 0)) for i in range(16) for t in 'KV']
        o = [('K', 0)]
        for i in range(15): o += [('K', i + 1), ('V', i)]
        o.append(('V', 15))
        return [Slot(t, i=i, rnd=r, first=(i == 0)) for t, i in o]
    def Pp(r): return [Slot('P', j=j, rnd=r, nh=2, ch=j // 2, hh=j % 2) for j in range(20)]
    def P4(): return [Slot('P', j=j, rnd=1, nh=4, ch=j // 4, hh=j % 4) for j in range(40)]
    if kind == 'X': seq = Q(0) + Aa(0) + Pp(0) + Q(1) + Aa(1) + Pp(1)
    elif kind == 'W': seq = Q(0) + Q(1) + Aa(0) + Aa(1) + P4()
    elif kind == 'Y': seq = Q(0) + Q(1) + Aa(0) + Pp(0) + Aa(1) + Pp(1)
    elif kind == 'Z': seq = Q(0) + Aa(0) + Q(1) + Aa(1) + P4()
    elif kind[0] in 'FG':
        k = int(kind[1:]); assert k % 2 == 0 and 2 <= k <= 14
        a0 = Aa(0)
        seq = Q(0) + a0[:2 * k] + Q(1, True) + a0[2 * k:]
        seq += (Aa(1) + P4()) if kind[0] == 'F' else (Pp(0) + Aa(1) + Pp(1))
    for n, s in enumerate(seq): s.idx = n
    return seq

def flat(items):
    o = []
    for it in items: o += flat(it) if isinstance(it, list) else [it]
    return o

def build_main(kind, stamps, pro2):
    seq = make_seq(kind)
    N = len(seq)
    for s in seq: build_mfmas(s)
    pfplan = {}
    def plan_pf(first, count, regs, at):
        for k in range(count):
            seq[first + k].pfreg = regs[k]
            pfplan.setdefault(at + k * OPT['pfstep'], []).append(seq[first + k])
    if kind == 'X':
        plan_pf(20, OPT['pfx0'], [24 * k for k in range(6)], OPT['pfat'])
        plan_pf(92, OPT['pfx1'], [144, 168, 192, 120], 54 + OPT['pfat'])
    if kind == 'W': plan_pf(40, OPT['pfw0'], [72, 96, 120], 20 + OPT['pfat'])
    head = flat(x_items(seq[0])[:6]) + flat(dma_items(seq[0])) + flat(x_items(seq[0])[6:])
    for n in range(1, LEAD): head += flat(dma_items(seq[n]))
    head += pro2
    head.append(I('', 'split'))
    head.append(barrier(need=[('d', 0), ('xd', 0)]))
    head += x_reads(seq[0])
    for j in range(5): head += frag_reads(seq[0], j)
    nstamp = 0
    fine = stamps and OPT['sp0'] >= 0
    if stamps: head = ([] if OPT['st0'] else stamp(0)) + [raw("s_memtime s[96:97]", 'smem')] + head + stamp(1); nstamp = 2
    post = []
    if fine:
        stamps = False
        for k in range(5 if OPT['cyc'] == 2 else 11):
            if OPT['sp0'] + k * OPT['spd'] < N:
                if OPT['cyc'] == 2:
                    seq[OPT['sp0'] + k * OPT['spd']].put(0, [raw(f"s_memrealtime s[{s_stamp+2*nstamp}:{s_stamp+2*nstamp+1}]", 'smem'),
                                                             raw(f"s_memtime s[{s_stamp+2*nstamp+2}:{s_stamp+2*nstamp+3}]", 'smem')]); nstamp += 2
                else:
                    seq[OPT['sp0'] + k * OPT['spd']].put(0, stamp(nstamp)); nstamp += 1
    if OPT['pf']:
        for k, (vr, srd) in enumerate(((37, sWQ), (38, sWO), (39, sWO))):
            seq[OPT['pfs'] + k * OPT['pfd']].put(21, bload(V(111), V(vr), S(srd, 4), 0, 0, ('pf', k), '', op='buffer_load_dword'))
    wp = OPT['wper']
    for n, s in enumerate(seq):
        nx = seq[n + 1] if n + 1 < N else None
        pv = seq[n - 1] if n else None
        for j in range(wp, 9, wp): s.load[3 * j - 1] += 1
        s.load[35] += 1
        for j in range(5, 12):
            for k, r in enumerate(frag_reads(s, j)): s.put(3 * (j - 5) + k, r)
        if nx is not None:
            need = [('f', s.idx, 11), ('d', nx.idx)] + ([('xd', nx.idx)] if nx.typ == 'Q' and nx.j % 4 == 0 else [])
            s.put(26, barrier(need=need)); s.load[26] += 1
            if nx.typ == 'Q' and nx.j % 4 == 0 and nx.idx > 0:
                s.put(24, valu('v_xor_b32', V(v_x), XTOG, V(v_x))); s.put(25, valu('v_xor_b32', V(v_x + 1), XTOG, V(v_x + 1)))
            rr = [frag_reads(nx, j) for j in range(5)]
            xr = x_reads(nx) if nx.typ == 'Q' else []
            if s.typ == 'K' and xr: nx.pre += xr; xr = []
            spread([(s, g) for g in range(27, 32)], flat(rr[0] + xr[:1] + rr[1] + xr[1:] + rr[2]))
            spread([(s, g) for g in range(30, 34)], rr[3])
            spread([(s, g) for g in range(32, 36)], rr[4])
        its = dma_items(seq[n + LEAD]) if n + LEAD < N else []
        if n + 4 < N and seq[n + 4].typ == 'Q' and seq[n + 4].j % 4 == 0: its = its + x_items(seq[n + 4])[:6]
        if n + 3 < N and n >= 1 and seq[n + 3].typ == 'Q' and seq[n + 3].j % 4 == 0: its = its + x_items(seq[n + 3])[6:]
        for p in pfplan.get(n, []): its = its + prefill_loads(p)
        s.dma = its
        s.early = bool(s.typ == 'V' and OPT['early'] and its and not OPT['pipe'])
    for n, s in enumerate(seq):
        nx = seq[n + 1] if n + 1 < N else None
        pv = seq[n - 1] if n else None
        if OPT['edef'] and pv is not None and pv.typ == 'V' and pv.i == 15:
            spread([(s, g) for g in range(27, 36)], s.dma[:4]); nx.dma = s.dma[4:] + nx.dma
        elif not s.early: spread([(s, g) for g in range(0, OPT['dend'])], s.dma, even=True)
        if s.typ == 'K' and stamps and s.i == 8 and not (kind[0] in 'FG' and s.rnd == 0): s.pre = stamp(nstamp) + s.pre; nstamp += 1
        if OPT['pipe'] and s.typ in 'KV':
            if s.typ == 'K' and s.i == 0:
                SB[0] = 0
                nx.pre += softmax_init() + sm_fma(0) + sm_fma(1)
            elif s.typ == 'K':
                SB[0] = (s.i - 1) & 1
                ex, tail = sm_exp()
                spread([(s, g) for g in range(0, 35)], ex + tail)
            elif s.i < 15:
                SB[0] = (s.i + 1) & 1
                spread([(s, g) for g in range(3, 36)], sm_fmamax(0) + sm_fmamax(1), even=True)
                nx.pre += sm_check()
                if s.i == 14:
                    ex, tail = sm_exp()
                    nx.pre += ex
                    spread([(nx, g) for g in range(0, 6)], tail)
        elif s.typ == 'K':
            SB[0] = 0
            ex, tail = sm_exp()
            if s.first: rest = softmax_init() + sm_fma(0) + sm_fma(1) + ex
            else:
                spread([(s, g) for g in range(20, 36)], sm_fmamax(0))
                rest = sm_fmamax(1) + sm_check() + ex
            if nx.early:
                d = list(nx.dma); o = d[:2]; d = d[2:]
                step = max(1, len(rest) // (len(d) + 1))
                for k2, it in enumerate(rest):
                    o.append(it)
                    if k2 % step == step - 1 and d: o.append(d.pop(0))
                rest = o + d
            nx.pre += rest
            spread([(nx, g) for g in range(0, 6)], tail)
        if s.typ == 'Q' and s.accA and stamps and s.j in (0, 19):
            if s.j == 0: s.pre += stamp(nstamp)
            else: nx.pre = stamp(nstamp) + nx.pre
            nstamp += 1
        if s.typ == 'Q' and s.j == 19 and not s.accA:
            dest = aQN if (kind in 'WY' and s.rnd == 1) else aQ
            cv = [q_convert_u(u, dest) for u in range(6)]
            k0 = 0
            if OPT['ovl']:
                spread([(s, g) for g in range(9, 20)], cv[0]); spread([(s, g) for g in range(20, 36)], cv[1]); k0 = 2
            nx.pre = flat(cv[k0:]) + nx.pre
            if stamps: nx.pre = nx.pre + stamp(nstamp); nstamp += 1
        if s.typ == 'V' and s.i == 15:
            pre = []
            if stamps: pre += stamp(nstamp); nstamp += 1
            toA = (kind[0] in 'WZF' and s.rnd == 0)
            if kind in 'WY' and s.rnd == 0: pre += [valu('v_accvgpr_mov_b32', A(aQ + k), A(aQN + k)) for k in range(72)]
            k0 = 0
            if OPT['ovl']:
                spread([(s, g) for g in range(6, 14)], e_head())
                spread([(s, g) for g in range(14, 36)], [i for i in e_pack(0, s.rnd, False) if i.k != 'ds'], cap=2)
                pre += [i for i in e_pack(0, s.rnd, False) if i.k == 'ds']
                k0 = 1
            else: pre += e_head()
            if kind[0] in 'FG' and s.rnd == 0:
                for u in range(6): pre += q_convert_a(u)
            for u in range(k0, 6): pre += e_pack(u, s.rnd, True)
            pre.append(barrier(need=[('ew', s.rnd)]))
            er = e_reads(s.rnd, toA)
            if OPT['edef']:
                nfirst = 0 if toA else 6
                pre += er[:nfirst]
                spread([(nx, g) for g in range(0, 24)], er[nfirst:])
                for it in nx.gaps[26]:
                    if it[0].k == 'barrier': it[0].need.append(('er', s.rnd, 1, 17))
                if not toA:
                    for k2 in range(2):
                        ps = seq[n + 1 + (k2 if nx.nh == 2 else 2 + k2)]
                        for u in range(6): ps.mf[6 * u].need = list(ps.mf[6 * u].need) + [('er', s.rnd, k2, 3 * u + 2)]
            else:
                pre += er
                pre.append(barrier(need=[('er', s.rnd, 1, 17)]))
            if stamps: pre += stamp(nstamp); nstamp += 1
            nx.pre = pre + nx.pre
        if s.typ == 'P':
            if s.hh == 0 and s.rnd == 1 and s.nh == 2 and (s.ch < 2 or not OPT['vinit']): s.pre += chunk_init(s.ch)
            if s.hh == s.nh - 1:
                hold = OPT['hold'] if s.nh == 4 else 0
                ce = chunk_end(s.ch, s.rnd == 1, s.ch < hold)
                if s.nh == 4 and OPT['nost']: ce = [i for i in ce if not (isinstance(i, I) and i.k == 'vstore')]
                if s.ch >= hold > 0:
                    per = -(-hold // (10 - hold)); k0 = (s.ch - hold) * per
                    for c2 in range(k0, min(hold, k0 + per)): ce = ce + flush_held(c2)
                if s.ch == 9:
                    if stamps: ce = ce + stamp(nstamp); nstamp += 1
                    if nx is None: post += ce
                    else: nx.pre = ce + nx.pre
                else:
                    if s.rnd == 1 and s.nh == 2 and OPT['vinit'] and s.ch < 8:
                        ini = chunk_init_valu(s.ch + 2)
                        ce = ce[:15] + interleave(ce[15:], ini[:3]) + ini[3:]
                    spread([(seq[n + 1 + k], g) for k in range(s.nh) for g in range(36)][3:-3], ce, even=True)
    prog = list(head)
    for s in seq:
        prog.append(mark('m'))
        prog += flat(s.pre)
        for k in range(36):
            prog.append(s.mf[k]); prog += flat(s.gaps[k])
    prog.append(mark('m'))
    prog += flat(post)
    return prog, nstamp

def stamp_out(nstamp):
    o = ["s_waitcnt vmcnt(0) lgkmcnt(0)"]
    o.append(f"s_memrealtime s[{s_stamp+2*nstamp}:{s_stamp+2*nstamp+1}]")
    o.append(f"s_memtime s[98:99]")
    o.append("s_waitcnt lgkmcnt(0)")
    o.append(f"s_lshl_b32 s{s_tmp}, s2, 8")
    o.append(f"s_lshl_b32 s{s_cnt}, s{s_w}, 6")
    o.append(f"s_add_u32 s{s_tmp}, s{s_tmp}, s{s_cnt}")
    o.append(f"s_add_u32 s{s_tmp}, s{s_tmp}, {STAMP_OFF}")
    o.append("v_mov_b32 v1, 0")
    for n in range(nstamp + 1):
        o.append(f"v_mov_b32 v2, s{s_stamp+2*n}")
        o.append(f"buffer_store_dword v2, v1, s[{sWS}:{sWS+3}], s{s_tmp} offen offset:{4*n}")
    o.append(f"s_sub_u32 s{s_cnt}, s98, s96")
    o.append(f"v_mov_b32 v2, s{s_cnt}")
    o.append(f"buffer_store_dword v2, v1, s[{sWS}:{sWS+3}], s{s_tmp} offen offset:60")
    o.append(f"v_mov_b32 v2, {nstamp+1}")
    o.append(f"buffer_store_dword v2, v1, s[{sWS}:{sWS+3}], s{s_tmp} offen offset:56")
    return o

FLAG_OFF = STAMP_OFF + 65536
v_fl = 109; v_fa = 110
def red_loads(a, bases, hq, ldfl, vb):
    off = (((hq & 1) << 3) | (hq >> 1)) * PART_WG
    for k, bs in enumerate(bases):
        r = vb + (k * 8 + hq) * 4
        a(f"s_add_u32 s{s_t0+1}, s{bs}, {off}")
        a(f"buffer_load_dwordx4 v[{r}:{r+3}], v{v_l16}, s[{sWS}:{sWS+3}], s{s_t0+1} offen{ldfl}")
def red_outaddr(a, f, dst, br, b):
    t = s_t0
    a(f"s_mul_hi_u32 s{t}, s{f}, 0x15555556")
    a(f"s_mul_i32 s{t+1}, s{t}, 12"); a(f"s_sub_u32 s{t+1}, s{f}, s{t+1}")
    a(f"s_mul_hi_u32 s{t+2}, s{t+1}, 0x55555556")
    a(f"s_mul_i32 s{t+3}, s{t+2}, 3"); a(f"s_sub_u32 s{t+3}, s{t+1}, s{t+3}")
    a(f"s_and_b32 s{dst}, s{t+2}, 1"); a(f"s_mul_i32 s{dst}, s{dst}, 48"); a(f"s_lshl_b32 s{t+3}, s{t+3}, 4")
    a(f"s_add_u32 s{dst}, s{dst}, s{t+3}")
    a(f"s_mul_i32 s{t+3}, s{b}, 96"); a(f"s_add_u32 s{dst}, s{dst}, s{t+3}")
    a(f"s_mul_i32 s{dst}, s{dst}, 2560")
    a(f"s_mul_i32 s{t+3}, s{br}, 1280"); a(f"s_add_u32 s{dst}, s{dst}, s{t+3}")
    a(f"s_lshl_b32 s{t+3}, s{t}, 7"); a(f"s_add_u32 s{dst}, s{dst}, s{t+3}")
    a(f"s_lshr_b32 s{t+3}, s{t+2}, 1"); a(f"s_lshl_b32 s{t+3}, s{t+3}, 6"); a(f"s_add_u32 s{dst}, s{dst}, s{t+3}")
def red_sum(a, nf, outs, vb):
    for k in range(nf):
        ac = 64 + 8 * (k % 2)
        for hq in range(8):
            for q in range(4):
                r = vb + (k * 8 + hq) * 4 + q
                if hq == 0:
                    a(f"v_lshlrev_b32 v{ac+q}, 16, v{r}"); a(f"v_and_b32 v{ac+4+q}, 0xffff0000, v{r}")
                else:
                    a(f"v_lshlrev_b32 v4, 16, v{r}"); a(f"v_and_b32 v{r}, 0xffff0000, v{r}")
                    a(f"v_add_f32 v{ac+q}, v{ac+q}, v4"); a(f"v_add_f32 v{ac+4+q}, v{ac+4+q}, v{r}")
        o = 48 + 4 * k
        for q in range(4): a(f"v_cvt_pk_bf16_f32 v{o+q}, v{ac+q}, v{ac+4+q}")
        a("s_nop 1")
        a(f"v_permlane32_swap_b32 v{o}, v{o+2}"); a(f"v_permlane32_swap_b32 v{o+1}, v{o+3}")
        a("s_nop 1")
        a(f"v_permlane16_swap_b32 v{o}, v{o+2}"); a(f"v_permlane16_swap_b32 v{o+1}, v{o+3}")
        a("s_nop 1")
        a(f"buffer_store_dwordx4 v[{o}:{o+3}], v2, s[{sK}:{sK+3}], s{outs[k]} offen{OPT['outst']}")

def fused_reduce(stamps=False):
    L = []; a = L.append
    def st(n):
        if stamps: a(f"s_memrealtime s[{s_stamp+2*n}:{s_stamp+2*n+1}]")
    sD = sV
    br, b, pb, done, last, it, new, slc, vw, extra = 28, 29, 30, 31, 32, 33, 34, 35, 36, 37
    fs = [38, 39, 40, 41]; bases = [42, 43, 44, 45]; outs = [12, 13, 14, 15]
    a("L_red:")
    a("s_load_dwordx4 s[60:63], s[0:1], 80")
    a(f"s_bfe_u32 s{br}, s2, 0x10002"); a(f"s_lshr_b32 s{b}, s2, 4")
    a(f"s_lshl_b32 s{pb}, s{b}, 4"); a(f"s_lshl_b32 s{it}, s{br}, 2"); a(f"s_add_u32 s{pb}, s{pb}, s{it}")
    a(f"s_mul_i32 s{pb}, s{pb}, {PART_WG}")
    a(f"v_lshrrev_b32 v3, 4, v{v_l16}")
    a("v_and_b32 v2, 15, v3"); a("v_mul_u32_u24 v2, 2560, v2")
    a("v_lshrrev_b32 v3, 4, v3"); a("v_lshl_add_u32 v2, v3, 4, v2")
    a(f"s_lshl_b32 s{it}, s{br}, 4"); a(f"s_add_u32 s{it}, s{it}, s{b}"); a(f"s_lshl_b32 s{it}, s{it}, 2")
    a(f"v_mov_b32 v6, s{it}")
    a(f"s_mov_b32 s{slc}, s{s_hq}"); a(f"s_mov_b32 s{vw}, s{s_w}"); a(f"s_mov_b32 s{last}, 0"); a(f"s_mov_b32 s{extra}, 0")
    a(f"s_lshl_b32 s{new}, 1, s{s_hq}")
    a("L_red_setup:")
    a(f"s_mul_i32 s{it}, s{slc}, 15")
    for k in range(4):
        a(f"s_add_u32 s{fs[k]}, s{vw}, {4*k}")
        if k == 3: a(f"s_min_u32 s{fs[k]}, s{fs[k]}, 14")
        a(f"s_add_u32 s{fs[k]}, s{fs[k]}, s{it}")
        a(f"s_lshl_b32 s{bases[k]}, s{fs[k]}, 10"); a(f"s_add_u32 s{bases[k]}, s{bases[k]}, s{pb}")
        red_outaddr(a, fs[k], outs[k], br, b)
    a(f"s_mov_b32 s{done}, 0"); a(f"s_mov_b32 s{it}, 0")
    for r in range(64, 96): a(f"v_mov_b32 v{r}, 0")
    a(f"s_cmp_eq_u32 s{new}, 0xff"); a("s_cbranch_scc1 L_red_issue")
    a("s_waitcnt lgkmcnt(0)")
    a(f"s_mov_b32 s{sK}, s60"); a(f"s_mov_b32 s{sK+1}, s61"); a(f"s_mov_b32 s{sK+2}, 3932160"); a(f"s_mov_b32 s{sK+3}, 0x20000")
    a(f"s_mov_b32 s{sD}, s62"); a(f"s_mov_b32 s{sD+1}, s63"); a(f"s_mov_b32 s{sD+2}, 256"); a(f"s_mov_b32 s{sD+3}, 0x20000")
    a("s_waitcnt vmcnt(0)")
    a("s_barrier")
    st(8)
    a(f"s_cmp_lg_u32 s{s_w}, 0"); a("s_cbranch_scc1 L_red_issue")
    a(f"s_mov_b32 exec_lo, s{new}"); a("s_mov_b32 exec_hi, 0")
    a(f"v_add_u32 v8, 1, v{v_fl}")
    a(f"buffer_store_dword v8, v{v_fa}, s[{sWS}:{sWS+3}], 0 offen sc1")
    a("v_mov_b32 v7, 1")
    a(f"buffer_atomic_add v7, v6, s[{sD}:{sD+3}], 0 offen sc0")
    a("s_mov_b64 exec, -1")
    a("L_red_issue:")
    for hq in range(8):
        a(f"s_bitcmp1_b32 s{new}, {hq}"); a(f"s_cbranch_scc0 L_red_s{hq}")
        red_loads(a, bases, hq, OPT['rld'], 112)
        a(f"L_red_s{hq}:")
    a(f"s_or_b32 s{done}, s{done}, s{new}")
    a(f"s_cmp_eq_u32 s{done}, 0xff"); a("s_cbranch_scc1 L_red_wait")
    a("L_red_poll:")
    a(f"buffer_load_dword v8, v{v_fa}, s[{sWS}:{sWS+3}], 0 offen sc1")
    a(f"s_add_u32 s{it}, s{it}, 1")
    a("L_red_wait:")
    st(10)
    a("s_waitcnt vmcnt(0)")
    st(11)
    for hq in range(8):
        a(f"s_bitcmp1_b32 s{new}, {hq}"); a(f"s_cbranch_scc0 L_red_a{hq}")
        for k in range(4):
            for q in range(4):
                r = 112 + (k * 8 + hq) * 4 + q; ac = 64 + 8 * k
                a(f"v_lshlrev_b32 v{4+q%2}, 16, v{r}"); a(f"v_and_b32 v{r}, 0xffff0000, v{r}")
                a(f"v_add_f32 v{ac+q}, v{ac+q}, v{4+q%2}"); a(f"v_add_f32 v{ac+4+q}, v{ac+4+q}, v{r}")
        a(f"L_red_a{hq}:")
    a(f"s_cmp_eq_u32 s{done}, 0xff"); a("s_cbranch_scc1 L_red_sum")
    a(f"v_cmp_ne_u32 vcc, v8, v{v_fl}")
    a("s_nop 4")
    a(f"s_andn2_b32 s{new}, vcc_lo, s{done}"); a(f"s_and_b32 s{new}, s{new}, 0xff")
    a("s_cbranch_scc1 L_red_issue")
    a(f"s_sleep {OPT['sleep']}")
    a(f"s_cmp_lt_u32 s{it}, {OPT['polls']}"); a("s_cbranch_scc1 L_red_poll")
    a("s_mov_b64 exec, 1")
    a(f"s_lshl_b32 s{new}, 1, s{s_hq}")
    a(f"v_mov_b32 v8, s{new}")
    a(f"buffer_atomic_or v8, v6, s[{sD}:{sD+3}], 0 offen offset:128 sc0")
    a("s_waitcnt vmcnt(0)")
    a("v_mov_b32 v8, 0")
    a(f"buffer_atomic_add v8, v6, s[{sD}:{sD+3}], 0 offen sc0")
    a("s_waitcnt vmcnt(0)")
    a(f"v_readfirstlane_b32 s{s_t0}, v8")
    a("s_mov_b64 exec, -1")
    a(f"s_andn2_b32 s{new}, 0xff, s{done}")
    a("s_nop 2")
    a(f"s_cmp_eq_u32 s{s_t0}, 8"); a("s_cbranch_scc1 L_red_issue")
    a("s_branch L_red_next")
    a("L_red_sum:")
    for k in range(4):
        for q in range(4): a(f"v_cvt_pk_bf16_f32 v{48+4*k+q}, v{64+8*k+q}, v{68+8*k+q}")
    for op in ("v_permlane32_swap_b32", "v_permlane16_swap_b32"):
        for k in range(4):
            o = 48 + 4 * k
            a(f"{op} v{o}, v{o+2}"); a(f"{op} v{o+1}, v{o+3}")
    a("s_nop 1")
    for k in range(4):
        a(f"buffer_store_dwordx4 v[{48+4*k}:{51+4*k}], v2, s[{sK}:{sK+3}], s{outs[k]} offen{OPT['outst']}")
    a("L_red_next:")
    a(f"s_cmp_lg_u32 s{s_w}, 0"); a("s_cbranch_scc1 L_red_done")
    a(f"s_cmp_lg_u32 s{last}, 0"); a("s_cbranch_scc1 L_red_more")
    a(f"v_readlane_b32 s{last}, v7, s{s_hq}")
    a("s_nop 3")
    a(f"s_cmp_eq_u32 s{last}, 7"); a("s_cbranch_scc0 L_red_done")
    a("s_mov_b64 exec, 1")
    a("v_mov_b32 v8, 0")
    a(f"buffer_atomic_or v8, v6, s[{sD}:{sD+3}], 0 offen offset:128 sc0")
    a("s_waitcnt vmcnt(0)")
    a(f"v_readfirstlane_b32 s{extra}, v8")
    a("s_mov_b64 exec, -1")
    a(f"s_mov_b32 s{vw}, 3")
    a("L_red_more:")
    a(f"s_add_u32 s{vw}, s{vw}, 1"); a(f"s_and_b32 s{vw}, s{vw}, 3"); a("s_cbranch_scc1 L_red_go")
    a(f"s_cmp_eq_u32 s{extra}, 0"); a("s_cbranch_scc1 L_red_done")
    a(f"s_ff1_i32_b32 s{slc}, s{extra}"); a(f"s_bitset0_b32 s{extra}, s{slc}")
    a("L_red_go:")
    a(f"s_mov_b32 s{new}, 0xff")
    a("s_branch L_red_setup")
    a("L_red_done:")
    return L

def reduce_kernel():
    L = []; a = L.append
    a("s_cmp_ge_u32 s2, 960"); a("s_cbranch_scc1 R_end")
    a("s_load_dwordx2 s[12:13], s[0:1], 96"); a("s_load_dwordx2 s[14:15], s[0:1], 80")
    a("v_lshrrev_b32 v1, 6, v0"); a("s_nop 0"); a("v_readfirstlane_b32 s3, v1")
    a("v_and_b32 v3, 63, v0")
    a("s_nop 2")
    a("s_lshl_b32 s16, s2, 2"); a("s_add_u32 s16, s16, s3")
    a("s_mul_hi_u32 s17, s16, 0x2222223")
    a("s_mul_i32 s18, s17, 120"); a("s_sub_u32 s34, s16, s18")
    a("s_lshr_b32 s28, s17, 4"); a("s_and_b32 s29, s17, 15")
    a("s_lshl_b32 s30, s29, 4"); a("s_lshl_b32 s22, s28, 2"); a("s_add_u32 s30, s30, s22")
    a(f"s_mul_i32 s30, s30, {PART_WG}")
    a(f"v_lshlrev_b32 v{v_l16}, 4, v3")
    a("v_and_b32 v2, 15, v3"); a("v_mul_u32_u24 v2, 2560, v2")
    a("v_lshrrev_b32 v3, 4, v3"); a("v_lshl_add_u32 v2, v3, 4, v2")
    a("s_waitcnt lgkmcnt(0)")
    a(f"s_mov_b32 s{sWS}, s12"); a(f"s_mov_b32 s{sWS+1}, s13"); a(f"s_mov_b32 s{sWS+2}, 438042624"); a(f"s_mov_b32 s{sWS+3}, 0x20000")
    a(f"s_mov_b32 s{sK}, s14"); a(f"s_mov_b32 s{sK+1}, s15"); a(f"s_mov_b32 s{sK+2}, 3932160"); a(f"s_mov_b32 s{sK+3}, 0x20000")
    a("s_lshl_b32 s42, s34, 10"); a("s_add_u32 s42, s42, s30")
    for hq in range(8): red_loads(a, [42], hq, "", 8)
    red_outaddr(a, 34, 12, 28, 29)
    a("s_waitcnt vmcnt(0)")
    red_sum(a, 1, [12], 8)
    a("R_end:")
    a("s_endpgm")
    return L

DESC = """.section .rodata,"a"
.p2align 6
.amdhsa_kernel {name}
  .amdhsa_next_free_vgpr {nv}
  .amdhsa_next_free_sgpr {ns}
  .amdhsa_accum_offset {acc}
  .amdhsa_group_segment_fixed_size 0
  .amdhsa_kernarg_size 104
  .amdhsa_user_sgpr_count 2
  .amdhsa_user_sgpr_kernarg_segment_ptr 1
  .amdhsa_system_sgpr_workgroup_id_x 1
.end_amdhsa_kernel
"""
def far_jump(lbl, uid):
    return [f"s_getpc_b64 s[{s_ret}:{s_ret+1}]", f"{uid}:", f"s_add_u32 s{s_ret}, s{s_ret}, {lbl}-{uid}",
            f"s_addc_u32 s{s_ret+1}, s{s_ret+1}, 0", f"s_setpc_b64 s[{s_ret}:{s_ret+1}]"]

def main():
    ap = argparse.ArgumentParser()
    ap.add_argument('-o', default=f'cdna_kernels/{KN}.s')
    ap.add_argument('--kind', default='X+W')
    ap.add_argument('--stamps', action='store_true')
    ap.add_argument('-v', action='store_true')
    ap.add_argument('--drop', default='')
    ap.add_argument('--opt', default='')
    a = ap.parse_args()
    for kv in filter(None, a.opt.split(',')):
        k, v = kv.split('=')
        fl = '' if v == 'df' else ' ' + v.replace('+', ' ')
        if k == 'w':
            for kk in ('wq0', 'wq1', 'wo0', 'wo1', 'x0', 'x1'): OPT[kk] = fl
        elif isinstance(OPT[k], int): OPT[k] = int(v, 0)
        else: OPT[k] = fl
    if not OPT['fuse'] and OPT['st'] == ' sc1': OPT['st'] = ''
    p1, p2 = prologue()
    p1, _ = fix_hazards(p1)
    kinds = a.kind.split('+')
    lines = []; nn = 0
    if len(kinds) > 1:
        pat = OPT['pat'].strip()
        pat = (pat * 32)[:32]
        lo = sum(int(c) << (2 * i) for i, c in enumerate(pat[:16])); hi = sum(int(c) << (2 * i) for i, c in enumerate(pat[16:]))
        lines += [f"; classes {pat}", f"s_mov_b32 s{s_ret}, {hex(lo)}", f"s_mov_b32 s{s_ret+1}, {hex(hi)}", f"s_lshr_b32 s{s_cnt}, s2, 3", f"s_lshl_b32 s{s_cnt}, s{s_cnt}, 1",
                  f"s_lshr_b64 s[{s_ret}:{s_ret+1}], s[{s_ret}:{s_ret+1}], s{s_cnt}", f"s_and_b32 s{s_cnt}, s{s_ret}, 3"]
        for ci in range(1, len(kinds)):
            lines += [f"s_cmp_eq_u32 s{s_cnt}, {ci}", f"s_cbranch_scc0 L_nc{ci}"] + far_jump(f'L_cls{ci}', f'L_pc{ci}') + [f"L_nc{ci}:"]
    for ci, kind in enumerate(kinds):
        body, nstamp = build_main(kind, a.stamps, p2)
        body = insert_waits(body)
        if a.drop:
            dr = a.drop.split(',')
            body = [i for i in body if i.k not in dr]
        body, n1 = fix_hazards(body, a.v); nn += n1
        k = [i for i, x in enumerate(body) if x.k == 'split'][0]
        if ci == 0: common = [x.t for x in body[:k]]
        else: assert common == [x.t for x in body[:k]]
        body = body[k + 1:]
        l1, s1 = compress(body, S(s_cnt), uid=f'C{ci}_')
        s1 = [x.replace('L_rare', f'L_rare{ci}') for x in s1]
        lines += [f"L_cls{ci}:"]
        lines += l1
        if a.stamps: lines += [f"s_mov_b32 s3, {12 if OPT['rst'] else nstamp}"]
        if ci < len(kinds) - 1: lines += far_jump('L_fin', f'L_pf{ci}')
        else: lines += ["s_branch L_fin"]
        lines += s1 + rare_path(f'L_rare{ci}_0', 0) + rare_path(f'L_rare{ci}_1', 1)
    lines += ["L_fin:"]
    NS = 12
    if a.stamps: lines += [f"s_memrealtime s[{s_stamp+2*NS}:{s_stamp+2*NS+1}]"]
    if OPT['fuse']: lines += fused_reduce(a.stamps and OPT['rst'])
    if a.stamps:
        so = stamp_out(NS + 1)
        so = [x.replace(f"v_mov_b32 v2, {NS+2}", "v_mov_b32 v2, s3") for x in so]
        lines += ["s_mov_b64 exec, -1"] + so
    lines += ["s_endpgm"]
    hdr = open(f'cdna_kernels/{KN}.s.ref').read().split('\n')
    hdr = [l for l in hdr if l.startswith(';') and '@launch' not in l and 'Override launch' not in l and 'grid=ceil' not in l]
    if OPT['fuse']: out = hdr + [f"; @launch grid=(256,1,1) block=(256,1,1) lds={LDS_BYTES}"]
    else: out = hdr + [f"; @launch kernel={KN}_kernel grid=(256,1,1) block=(256,1,1) lds={LDS_BYTES}",
                       "; @launch kernel=reduce_kernel grid=(960,1,1) block=(256,1,1) lds=0"]
    out += ['.amdgcn_target "amdgcn-amd-amdhsa--gfx950"', '.text',
            f'.globl {KN}_kernel', '.p2align 8', f'.type {KN}_kernel,@function', f'{KN}_kernel:']
    out += ["s_cmp_lt_u32 s2, 256", "s_cbranch_scc1 L_go", "s_endpgm", "L_go:"]
    if a.stamps and OPT['st0']: out += [f"s_memrealtime s[{s_stamp}:{s_stamp+1}]"]
    if OPT['cpf'] == 2:
        out += [f"s_getpc_b64 s[{s_ret}:{s_ret+1}]", "L_cp:", f"s_lshr_b32 s{s_tmp}, s2, 3", f"s_lshl_b32 s{s_tmp}, s{s_tmp}, 13",
                "v_lshrrev_b32 v1, 2, v0", "v_lshlrev_b32 v1, 7, v1", f"v_add_u32 v1, s{s_tmp}, v1", "v_min_u32 v1, L_code_end-L_cp-4, v1",
                f"global_load_dword v{v_t+10}, v1, s[{s_ret}:{s_ret+1}]"]
    if OPT['half']: out += [f"s_and_b32 s3, s2, {OPT['half']}", "s_cbranch_scc0 L_go2", "s_endpgm", "L_go2:"]
    if OPT['cpf'] == 1: out += [f"s_getpc_b64 s[{s_ret}:{s_ret+1}]", "L_cp0:", f"s_sub_u32 s{s_ret}, s{s_ret}, L_cp0-L_go", f"s_subb_u32 s{s_ret+1}, s{s_ret+1}, 0"]
    out += [i.t for i in p1] + common + lines + ["L_code_end:"]
    if not OPT['fuse']:
        out += ['.globl reduce_kernel', '.p2align 8', '.type reduce_kernel,@function', 'reduce_kernel:'] + reduce_kernel()
    out.append(DESC.format(name=KN + '_kernel', nv=512, ns=102, acc=256))
    if not OPT['fuse']: out.append(DESC.format(name='reduce_kernel', nv=88, ns=72, acc=88))
    txt = "\n".join(out) + "\n"
    if OPT['mac']:
        txt = txt.replace("v_mfma_f32_16x16x32_bf16 ", "M ").replace("ds_read_b64_tr_b16 ", "T ").replace("v_cvt_pk_bf16_f32 ", "C ")
        txt = txt.replace("v_accvgpr_write_b32 ", "AW ").replace("buffer_load_dwordx4 ", "L ").replace(", ", ",")
        mac = [".macro M a:vararg", "v_mfma_f32_16x16x32_bf16 \\a", ".endm", ".macro T a:vararg", "ds_read_b64_tr_b16 \\a", ".endm",
               ".macro C a:vararg", "v_cvt_pk_bf16_f32 \\a", ".endm", ".macro AW a:vararg", "v_accvgpr_write_b32 \\a", ".endm",
               ".macro L a:vararg", "buffer_load_dwordx4 \\a", ".endm"]
        txt = txt.replace(".text\n", ".text\n" + "\n".join(mac) + "\n", 1)
        head = "\n".join(out[:len(hdr) + 2])
        txt = head + txt[txt.index("\n.text\n"):] if OPT['fuse'] else txt
    open(a.o, 'w').write(txt)
    print(f"wrote {a.o}: {len(out)} lines, {nn} hazard nops")

if __name__ == '__main__':
    main()
```

```python
import sys, math, argparse, struct
sys.path.insert(0, 'gen')
from asmlib import *

KN = 'concat_heads__mha_block_cached__gqa_block_cached__near_ridge'
SLOT = 24576; NBUF = 4; LEAD = 3; XT = 12288
XA = 0x18000; XB_ = 0x20000; XTOG = XA ^ XB_
LDS_BYTES = XB_ + 2 * XT
EXW = 18432
PART_WG = 122880
STAMP_OFF = 256 * PART_WG
H = 192 * 1280

OPT = {'wq0': '', 'wq1': '', 'wo0': '', 'wo1': '', 'x0': '', 'x1': '', 'kv': ' nt', 'st': ' sc1', 'rot': 1,
       'cmask': 0xAAAAAAAA, 'half': 0, 'early': 1, 'sp0': -1, 'spd': 2, 'fuse': 1, 'wper': 3, 'ovl': 1, 'outst': ' sc1', 'sleep': 2, 'polls': 3000, 'rld': ' sc1', 'rst': 0, 'cyc': 0, 'cpf': 1, 'pipe': 1, 'dend': 36, 'rot2': 1, 'pat': '01', 'mac': 1, 'hold': 6, 'nost': 0, 'pf': 0, 'pfs': 4, 'pfd': 4, 'ntp': 0, 'st0': 1, 'pfx0': 0, 'pfx1': 0, 'pfw0': 0, 'pfat': 3, 'pfstep': 2, 'rotq0': 1, 'snake': 1, 'jpat': ' 0000111122222222', 'pipes': ' X0X1W0W1F0F1G0G1I1J1', 'edef': 1, 'vinit': 0}

sK, sV, sWQ, sWO, sX, sWS = 4, 8, 12, 16, 20, 24
s_w6144, s_k, s_v, s_wq, s_wo, s_x, s_xwr, s_tmp, s_cnt, s_c = range(28, 38)
s_wqb, s_wql, s_xb, s_xl, s_wob, s_wol, s_pt, s_ptb, s_ptl = range(38, 47)
s_ew, s_er0, s_er1, s_w, s_hq = range(47, 52)
s_ret = 52
s_tmp2 = 63
s_rq = 100; s_rx = 101
s_t0 = 54
s_stamp = 64
v_l16 = 0; v_k = 1; v_v = 5; v_p = 13; v_x = 17
v_m, v_l = 19, 22
v_t = 25
vP = 40; vS = 52; vXF = 76; v_dkv, v_dwq, v_dwx = 100, 103, 106; vO = 112
vACC = (76, 52)
aQN = 0; aRES = 0; aQ = 144; aF = 216; aE1 = 240; aE0 = 242

def Oreg(dt, qt): return vO + (dt * 3 + qt) * 4
SB = [0]
def Sbase(): return (vS, vXF)[SB[0]]
def Sreg(t, qt): return Sbase() + (t * 3 + qt) * 4

class Slot:
    def __init__(self, typ, **kw):
        self.typ = typ; self.__dict__.update(kw)
        self.pre = []; self.gaps = [[] for _ in range(36)]; self.mf = []; self.load = [0] * 36
    def put(self, gap, item):
        if isinstance(item, I): item = [item]
        self.gaps[gap].append(item); self.load[gap] += sum(i.cost for i in item)

def spread(slots_gaps, items, cap=2, even=False):
    items = [[x] if isinstance(x, I) else x for x in items]
    if not items: return
    level = cap
    while True:
        plan = []; k = 0
        free = [max(0, level - s.load[g]) for s, g in slots_gaps]
        tot_free = sum(free); tot_it = sum(sum(i.cost for i in it) for it in items)
        used = 0; seen_free = 0
        for n, (s, g) in enumerate(slots_gaps):
            ld = s.load[g]; seen_free += free[n]
            while k < len(items):
                c = sum(i.cost for i in items[k])
                if ld + c > level and not (ld == 0 and c > level): break
                if even and tot_free > tot_it and (used + c) * tot_free > seen_free * tot_it + tot_free: break
                plan.append((s, g, items[k])); ld += c; k += 1; used += c
        if k == len(items): break
        if even: even = False
        else: level += 1
    for s, g, it in plan: s.put(g, it)

def frag_reads(sl, j):
    d = aF + (j % 6) * 4
    tag = ('f', sl.idx, j)
    buf = sl.idx % NBUF
    hi = buf >> 1; bo = (buf & 1) * SLOT
    if sl.typ == 'K':
        t, ks = divmod(j, 6)
        return [dsread('ds_read_b128', A(d, 4), V(v_k + hi * 2 + (ks & 1)), bo + t * 6144 + (ks >> 1) * 128, tag)]
    if sl.typ in ('V', 'Q'):
        off = bo + (j >> 2) * 128; a = V(v_v + hi * 4 + (j & 3))
        return [dsread('ds_read_b64_tr_b16', A(d, 2), a, off, tag), dsread('ds_read_b64_tr_b16', A(d + 2, 2), a, off + 6144, tag)]
    if sl.typ == 'P':
        u, nt = divmod(j, 2); a = V(v_p + hi * 2 + nt); off = bo + u * 4096
        return [dsread('ds_read_b64_tr_b16', A(d, 2), a, off, tag), dsread('ds_read_b64_tr_b16', A(d + 2, 2), a, off + 2048, tag)]

def x_reads(sl):
    return [dsread('ds_read_b128', V(vXF + (sl.j % 2) * 12 + qt * 4, 4), V(v_x + (sl.j & 1)),
                   ((sl.j >> 1) & 1) * XT + qt * 2048, ('x', sl.idx)) for qt in range(3)]

def wrapadd(reg, inc, lim, base):
    return [salu('s_add_u32', S(reg), S(reg), inc & 0xffffffff),
            [scmp('s_cmp_eq_u32', S(reg), S(lim)), salu('s_cselect_b32', S(reg), S(base), S(reg))]]
def bump(regs3, d): return [salu('s_add_u32', S(r), S(r), d & 0xffffffff) for r in regs3]

v_pw = 111
def prefill_loads(sl):
    srd, so = (sK, s_k) if sl.typ == 'K' else (sV, s_v)
    tag = ('pfl', sl.idx)
    it = [salu('s_add_u32', S(s_tmp2), S(so), 3072)]
    for j in range(6):
        it.append(bload(A(sl.pfreg + 4 * j, 4), V(v_dkv + j % 3), S(srd, 4), S(so if j < 3 else s_tmp2), 1024 * (j % 3), tag, OPT['kv']))
    it.append(salu('s_add_u32', S(so), S(so), 12288))
    return it
def prefill_writes(sl):
    buf = sl.idx % NBUF
    it = []
    a = v_pw
    if buf >= 2:
        a = v_t + 14; it.append(valu('v_add_u32', V(a), 2 * SLOT, V(v_pw)))
    for j in range(6):
        w = dswrite('ds_write_b128', V(a), A(sl.pfreg + 4 * j, 4), (buf & 1) * SLOT + 1024 * j, ('d', sl.idx))
        if j == 0: w.need = [('pfl', sl.idx)]
        it.append(w)
    return it
def dma_items(sl):
    if getattr(sl, 'pfreg', None) is not None: return prefill_writes(sl)
    tag = ('d', sl.idx)
    if sl.typ == 'K': srd, so, vo, dl = sK, s_k, v_dkv, 3072; upd = [salu('s_add_u32', S(s_k), S(s_k), 12288)]
    elif sl.typ == 'V': srd, so, vo, dl = sV, s_v, v_dkv, 3072; upd = [salu('s_add_u32', S(s_v), S(s_v), 12288)]
    elif sl.typ == 'Q':
        srd, so, vo, dl = sWQ, s_wq, v_dwq, 16 * 12288
        upd = wrapadd(s_wq, 32 * 12288, s_wql, s_wqb) if sl.j % 2 else [salu('s_add_u32', S(s_wq), S(s_wq), 32 * 12288)]
        if sl.j == 19: upd += bump((s_wq, s_wqb, s_wql), 384)
        if sl.j == 19 and sl.rnd == 0 and not OPT['rotq0']: upd.append(salu('s_add_u32', S(s_wq), S(s_wq), S(s_rq)))
    elif sl.typ == 'P':
        srd, so, vo, dl = sWO, s_wo, v_dwx, 24 * 1280
        incs = [2 * H, 128 - 2 * H] if sl.nh == 2 else [2 * H, -H, 2 * H, 128 - 3 * H]
        if sl.hh < sl.nh - 1: upd = [salu('s_add_u32', S(s_wo), S(s_wo), incs[sl.hh] & 0xffffffff)]
        else:
            upd = wrapadd(s_wo, incs[sl.hh], s_wol, s_wob)
            if sl.ch == 9 and sl.rnd == 0: upd += bump((s_wo, s_wob, s_wol), H)
    fl = OPT['kv'] if sl.typ in 'KV' else OPT[('wq' if sl.typ == 'Q' else 'wo') + str(sl.rnd)]
    if sl.typ == 'Q' and sl.j < 2 * OPT['ntp']: fl = ' nt'
    if sl.typ == 'P' and sl.ch < OPT['ntp']: fl = ' nt'
    srd = S(srd, 4); lb = (sl.idx % NBUF) * SLOT
    it = [salu('s_add_u32', 'm0', S(s_w6144), lb), salu('s_add_u32', S(s_tmp), S(so), dl)]
    it += [dma(V(vo + k), srd, S(so), 1024 * k, tag, fl) for k in range(3)]
    it += [salu('s_add_u32', 'm0', 'm0', 3072)] + upd[:1]
    it += [dma(V(vo + k), srd, S(s_tmp), 1024 * k, tag, fl) for k in range(3)]
    it += upd[1:]
    return it

def x_items(sl):
    fl = OPT['x' + str(sl.rnd)]
    xt = ('xd', sl.idx)
    it = []
    for h in range(2):
        it.append(salu('s_add_u32', 'm0', S(s_xwr), h * XT))
        if h == 1: it.append(salu('s_xor_b32', S(s_xwr), S(s_xwr), XTOG))
        it += [dma(V(v_dwx + k), S(sX, 4), S(s_x), 1024 * k, xt, fl) for k in range(3)]
        it += wrapadd(s_x, 128, s_xl, s_xb)
    if sl.j == 16 and sl.rnd == 0 and not OPT['rotq0']: it.append(salu('s_add_u32', S(s_x), S(s_x), S(s_rx)))
    return it

def build_mfmas(sl):
    mf = []
    wp = OPT['wper']
    for j in range(12):
        a = A(aF + (j % 6) * 4, 4)
        need = []
        if j % wp == 0: need = [('f', sl.idx, j + k) for k in range(wp)]
        if j == 0 and sl.typ == 'Q': need.append(('x', sl.idx))
        for qi in range(3):
            qt = 2 - qi if (OPT['snake'] and j % 2) else qi
            if sl.typ == 'K':
                t, ks = divmod(j, 6); SB[0] = (sl.i & 1) if sl.pipe else 0
                d = V(Sreg(t, qt), 4); b = A(aQ + (ks * 3 + qt) * 4, 4); c = 0 if ks == 0 else d
            elif sl.typ == 'V':
                d = V(Oreg(j, qt), 4); b = V(vP + qt * 4, 4); c = 0 if sl.first else d
            elif sl.typ == 'Q':
                d = A(aQN + (j * 3 + qt) * 4, 4) if sl.accA else V(Oreg(j, qt), 4)
                b = V(vXF + (sl.j % 2) * 12 + qt * 4, 4); c = 0 if sl.j == 0 else d
            elif sl.typ == 'P':
                u, nt = divmod(j, 2); hh = sl.hh; ch = sl.ch
                d = V(vACC[ch % 2] + (nt * 3 + qt) * 4, 4)
                if sl.nh == 4 and hh < 2: b = A(aQN + hh * 72 + (u * 3 + qt) * 4, 4)
                else: b = V(vO + (hh % 2) * 72 + (u * 3 + qt) * 4, 4)
                c = 0 if (hh == 0 and u == 0 and (sl.rnd == 0 or sl.nh == 4)) else d
            mf.append(mfma(d, a, b, c, need=need if qi == 0 else ()))
    sl.mf = mf

def xrow(v, tmp, op):
    return [valu('v_mov_b32', V(tmp), V(v)), perm('v_permlane32_swap_b32', V(v), V(tmp)), valu(op, V(v), V(v), V(tmp)),
            valu('v_mov_b32', V(tmp), V(v)), perm('v_permlane16_swap_b32', V(v), V(tmp)), valu(op, V(v), V(v), V(tmp))]

def interleave(*lists):
    out = []
    for k in range(max(len(l) for l in lists)):
        for l in lists:
            if k < len(l): out.append(l[k])
    return out

def max8(x, vals):
    return [valu('v_max3_f32', V(x), V(vals[0]), V(vals[1]), V(vals[2])), valu('v_max3_f32', V(x), V(x), V(vals[3]), V(vals[4])),
            valu('v_max3_f32', V(x), V(x), V(vals[5]), V(vals[6])), valu('v_max_f32', V(x), V(x), V(vals[7]))]

def softmax_init():
    ch = []
    for qt in range(3):
        x = v_m + qt
        c = max8(x, [Sreg(t, qt) + r for t in range(2) for r in range(4)]) + xrow(x, v_t + qt, 'v_max_f32')
        c += [valu('v_mul_f32', V(x), S(s_c), V(x)), valu('v_mov_b32', V(v_l + qt), 0)]
        ch.append(c)
    return interleave(*ch)

def sm_fma(t):
    return [valu('v_fma_f32', V(Sreg(t, qt) + r), V(Sreg(t, qt) + r), S(s_c), '-' + V(v_m + qt)) for qt in range(3) for r in range(4)]
def sm_max(t):
    vals = [Sbase() + t * 12 + i for i in range(12)]
    x = v_t + 3
    if t == 0:
        o = [valu('v_max3_f32', V(x), V(vals[0]), V(vals[1]), V(vals[2]))]
        for i in range(3, 11, 2): o.append(valu('v_max3_f32', V(x), V(x), V(vals[i]), V(vals[i + 1])))
        o.append(valu('v_max_f32', V(x), V(x), V(vals[11])))
        return o
    return [valu('v_max3_f32', V(x), V(x), V(vals[i]), V(vals[i + 1])) for i in range(0, 12, 2)]
def sm_fmamax(t):
    f = sm_fma(t); m = sm_max(t)
    o = f[:4]; k = 0
    for i in range(4, 12, 2): o += f[i:i + 2] + [m[k]]; k += 1
    return o + m[k:]
def sm_check():
    return [[vcmp('v_cmp_lt_f32', 0x41000000, V(v_t + 3)),
             raw('s_cbranch_vccnz {L}_r', 'branch', ['vcc']), raw('{L}_b:', 'label'),
             raw('{L}_r:\ns_call_b64 s[%d:%d], L_rare_%d\ns_branch {L}_b' % (s_ret, s_ret + 1, SB[0]), 'stub')]]
def sm_exp():
    o = []
    order = [(t, r) for t in range(2) for r in range(4)]
    for k, (t, r) in enumerate(order):
        for qt in range(3): o.append(valu('v_exp_f32', V(Sreg(t, qt) + r), V(Sreg(t, qt) + r)))
        if k >= 1:
            pt, pr = order[k - 1]
            for qt in range(3): o.append(valu('v_add_f32', V(v_l + qt), V(v_l + qt), V(Sreg(pt, qt) + pr)))
            if pr % 2 == 1:
                for qt in range(3):
                    o.append(valu('v_cvt_pk_bf16_f32', V(vP + qt * 4 + pt * 2 + pr // 2), V(Sreg(pt, qt) + pr - 1), V(Sreg(pt, qt) + pr)))
    for qt in range(3): o.append(valu('v_cvt_pk_bf16_f32', V(vP + qt * 4 + 3), V(Sreg(1, qt) + 2), V(Sreg(1, qt) + 3)))
    tail = [valu('v_add_f32', V(v_l + qt), V(v_l + qt), V(Sreg(1, qt) + 3)) for qt in range(3)]
    return o, tail

def rare_path(name, sb):
    SB[0] = sb
    ch = []
    for qt in range(3):
        vals = [Sreg(t, qt) + r for t in range(2) for r in range(4)]
        x = v_t + 4 + qt; f = v_t + 7 + qt
        c = max8(x, vals) + xrow(x, v_t + qt, 'v_max_f32')
        c += [valu('v_max_f32', V(x), 0, V(x)), valu('v_add_f32', V(v_m + qt), V(v_m + qt), V(x)),
              valu('v_sub_f32', V(f), 0, V(x)), valu('v_exp_f32', V(f), V(f))]
        c += [valu('v_sub_f32', V(s), V(s), V(x)) for s in vals]
        c += [valu('v_mul_f32', V(v_l + qt), V(v_l + qt), V(f))]
        c += [valu('v_mul_f32', V(Oreg(dt, qt) + r), V(Oreg(dt, qt) + r), V(f)) for dt in range(12) for r in range(4)]
        ch.append(c)
    p, _ = fix_hazards([nop(7)] + interleave(*ch) + [nop(3)])
    return [name + ":"] + [i.t for i in p] + [f"s_setpc_b64 s[{s_ret}:{s_ret+1}]"]

def q_convert_u(u, dest):
    T = [vS + (u % 2) * 12 + 4 * qt for qt in range(3)]
    out = []
    for qt in range(3):
        for h in range(2):
            for k in range(2):
                s0 = Oreg(2 * u + h, qt) + 2 * k
                out.append(valu('v_cvt_pk_bf16_f32', V(T[qt] + h * 2 + k), V(s0), V(s0 + 1)))
    for op in ('v_permlane32_swap_b32', 'v_permlane16_swap_b32'):
        for qt in range(3):
            for k in range(2): out.append(perm(op, V(T[qt] + k), V(T[qt] + 2 + k)))
    for qt in range(3):
        for k in range(4): out.append(valu('v_accvgpr_write_b32', A(dest + (u * 3 + qt) * 4 + k), V(T[qt] + k)))
    return out

def q_convert_a(u):
    T = [vS + 12 + 4 * qt for qt in range(3)]
    rd = []; out = []
    for qt in range(3):
        for h in range(2):
            for k in range(2):
                s0 = vXF + (qt * 4 + h * 2 + k) * 2; a0 = aQN + ((2 * u + h) * 3 + qt) * 4 + 2 * k
                rd += [valu('v_accvgpr_read_b32', V(s0), A(a0)), valu('v_accvgpr_read_b32', V(s0 + 1), A(a0 + 1))]
                out.append(valu('v_cvt_pk_bf16_f32', V(T[qt] + h * 2 + k), V(s0), V(s0 + 1)))
    for op in ('v_permlane32_swap_b32', 'v_permlane16_swap_b32'):
        for qt in range(3):
            for k in range(2): out.append(perm(op, V(T[qt] + k), V(T[qt] + 2 + k)))
    for qt in range(3):
        for k in range(4): out.append(valu('v_accvgpr_write_b32', A(aQ + (u * 3 + qt) * 4 + k), V(T[qt] + k)))
    return rd + out

RL = 30
def e_head():
    out = interleave(*[xrow(v_l + qt, v_t + qt, 'v_add_f32') + [valu('v_rcp_f32', V(RL + 2 * qt), V(v_l + qt)),
                       valu('v_mov_b32', V(RL + 1 + 2 * qt), V(RL + 2 * qt))] for qt in range(3)])
    out += [valu('v_add_u32', V(36), S(s_ew), V(v_l16)), valu('v_add_u32', V(37), S(s_er0), V(v_l16)),
            valu('v_add_u32', V(38), S(s_er1), V(v_l16))]
    return out
def e_pack(u, eid, packed):
    T = vS + (u % 2) * 12
    o = []
    for qt in range(3):
        for h in range(2):
            s = Oreg(2 * u + h, qt)
            if packed:
                o += [valu('v_pk_mul_f32', V(s + 2 * k, 2), V(s + 2 * k, 2), V(RL + 2 * qt, 2)) for k in range(2)]
            else:
                o += [valu('v_mul_f32', V(s + k), V(s + k), V(RL + 2 * qt)) for k in range(4)]
    for qt in range(3):
        for h in range(2):
            s = Oreg(2 * u + h, qt)
            for k in range(2):
                o.append(valu('v_cvt_pk_bf16_f32', V(T + qt * 4 + h * 2 + k), V(s + 2 * k), V(s + 2 * k + 1)))
        o.append(dswrite('ds_write_b128', V(36), V(T + qt * 4, 4), (u * 3 + qt) * 1024, ('ew', eid)))
    return o
def e_reads(eid, toA):
    out = []
    for hh in range(2):
        for f in range(18):
            dst = A(aQN + hh * 72 + f * 4, 4) if toA else V(vO + hh * 72 + f * 4, 4)
            out.append(dsread('ds_read_b128', dst, V(37 + hh), f * 1024, ('er', eid, hh, f)))
    return out

def flush_held(ch):
    o = [bstore(A(aQ + ch * 12 + qt * 4, 4), V(v_l16), S(sWS, 4), S(s_ew), qt * 1024, ('st', ch), OPT['st']) for qt in range(3)]
    return o + wrapadd(s_ew, 12288, s_ptl, s_ptb)
def chunk_end(ch, store, held=False):
    acc = vACC[ch % 2]
    if held:
        o = chunk_end(ch, False)
        o = o[:12] + [valu('v_accvgpr_write_b32', A(aQ + ch * 12 + i), V(vP + i)) for i in range(12)]
        if ch == 0: o.append(salu('s_mov_b32', S(s_ew), S(s_pt)))
        return o + wrapadd(s_pt, 12288, s_ptl, s_ptb)
    o = []
    for qt in range(3):
        for nt in range(2):
            for k in range(2):
                s = acc + (nt * 3 + qt) * 4 + 2 * k
                o.append(valu('v_cvt_pk_bf16_f32', V(vP + qt * 4 + nt * 2 + k), V(s), V(s + 1)))
        if store:
            o.append(bstore(V(vP + qt * 4, 4), V(v_l16), S(sWS, 4), S(s_pt), qt * 1024, ('st', ch), OPT['st']))
    if not store: o += [valu('v_accvgpr_write_b32', A(aRES + ch * 12 + i), V(vP + i)) for i in range(12)]
    else: o += wrapadd(s_pt, 12288, s_ptl, s_ptb)
    return o

def chunk_init_valu(ch):
    acc = vACC[ch % 2]
    o = []
    for qt in range(3):
        for nt in range(2):
            for k in range(2):
                d = acc + (nt * 3 + qt) * 4 + 2 * k
                o.append(valu('v_accvgpr_read_b32', V(d + 1), A(aRES + ch * 12 + qt * 4 + nt * 2 + k)))
                o.append(valu('v_lshlrev_b32', V(d), 16, V(d + 1)))
                o.append(valu('v_and_b32', V(d + 1), 0xffff0000, V(d + 1)))
    return o
def chunk_init(ch):
    acc = vACC[ch % 2]
    return [mfma(V(acc + (nt * 3 + qt) * 4, 4), A(aE1 if nt else aE0, 4), A(aRES + ch * 12 + qt * 4, 4), 0)
            for nt in range(2) for qt in range(3)]

def stamp(n): return [raw(f"{'s_memtime' if OPT['cyc'] == 1 else 's_memrealtime'} s[{s_stamp+2*n}:{s_stamp+2*n+1}]", 'smem')]

def prologue():
    P = []; a = P.append
    T = s_t0
    a(salu('s_and_b32', S(T), 's2', 7)); a(salu('s_lshr_b32', S(T + 1), 's2', 3))
    a(salu('s_lshr_b32', S(T + 2), S(T), 2))
    a(salu('s_mul_i32', S(T + 2), S(T + 2), 40))
    a(salu('s_add_u32', S(T + 4), 's0', S(T + 2))); a(salu('s_addc_u32', S(T + 5), 's1', 0))
    a(raw(f"s_load_dwordx8 s[68:75], s[{T+4}:{T+5}], 0", 'smem'))
    a(raw(f"s_load_dwordx2 s[76:77], s[{T+4}:{T+5}], 32", 'smem'))
    a(raw("s_load_dwordx2 s[78:79], s[0:1], 96", 'smem'))
    a(salu('s_and_b32', S(T), S(T), 3)); a(salu('s_lshl_b32', S(T), S(T), 1))
    a(salu('s_and_b32', S(T + 3), S(T + 1), 1)); a(salu('s_or_b32', S(s_hq), S(T), S(T + 3)))
    a(salu('s_lshr_b32', S(T + 1), S(T + 1), 1))
    a(valu('v_lshrrev_b32', V(v_t), 6, 'v0'))
    a(nop(0))
    a(raw(f"v_readfirstlane_b32 s{s_w}, v{v_t}", 'valu', [f'v{v_t}'], [f's{s_w}']))
    lane, n16, g, tmp, tmp2, row, sw = range(v_t, v_t + 7)
    a(valu('v_and_b32', V(lane), 63, 'v0'))
    a(valu('v_lshlrev_b32', V(v_l16), 4, V(lane)))
    W = s_w; Pp = T + 7; QH = T + 8; HQ = s_hq; B = T + 1; ROT = T + 2
    def swz(dst, r): a(valu('v_and_b32', V(dst), 6, V(r)))
    a(valu('v_lshrrev_b32', V(row), 3, V(lane)))
    swz(sw, row)
    a(valu('v_and_b32', V(tmp), 7, V(lane))); a(valu('v_xor_b32', V(tmp), V(tmp), V(sw)))
    a(valu('v_lshlrev_b32', V(tmp), 4, V(tmp)))
    a(valu('v_mul_u32_u24', V(row), 1280, V(row)))
    a(valu('v_add_u32', V(v_dwx), V(tmp), V(row)))
    a(valu('v_add_u32', V(v_dwx + 1), 8 * 1280 - 1024, V(v_dwx)))
    a(valu('v_add_u32', V(v_dwx + 2), 2 * (8 * 1280 - 1024), V(v_dwx)))
    a(salu('s_mov_b32', S(s_tmp), 0xAAAAAAB))
    for j in range(3):
        a(valu('v_add_u32', V(tmp), 64 * j, V(lane)))
        a(valu('v_mul_hi_u32', V(row), V(tmp), S(s_tmp)))
        swz(sw, row)
        a(valu('v_lshlrev_b32', V(sw), 4, V(sw)))
        a(valu('v_xor_b32', V(v_dkv + j), V(v_l16), V(sw)))
        a(valu('v_mul_u32_u24', V(tmp2), 24, V(row))); a(valu('v_sub_u32', V(tmp), V(tmp), V(tmp2)))
        a(valu('v_lshlrev_b32', V(tmp), 4, V(tmp))); a(valu('v_xor_b32', V(tmp), V(tmp), V(sw)))
        a(valu('v_lshrrev_b32', V(tmp2), 2, V(row))); a(valu('v_lshl_add_u32', V(row), V(tmp2), 2, V(row)))
        a(valu('v_mul_u32_u24', V(row), 12288, V(row)))
        a(valu('v_add_u32', V(tmp), V(tmp), V(row)))
        a(valu('v_subrev_u32', V(v_dwq + j), 1024 * j, V(tmp)))
    a(salu('s_lshr_b32', S(Pp), S(W), 1)); a(salu('s_and_b32', S(QH), S(W), 1))
    a(salu('s_mul_i32', S(s_w6144), S(W), 6144))
    a(salu('s_lshl_b32', S(T + 3), S(HQ), 2)); a(salu('s_lshl_b32', S(T + 9), S(Pp), 1))
    a(salu('s_add_u32', S(T + 9), S(T + 9), S(T + 3)))
    a(salu('s_mul_i32', S(ROT), S(B), 5 * OPT['rot'])); a(salu('s_lshr_b32', S(ROT), S(ROT), 3))
    if OPT['rot2']:
        a(salu('s_and_b32', S(s_tmp), S(HQ), 1)); a(salu('s_mul_i32', S(s_tmp), S(s_tmp), 5))
        a(salu('s_add_u32', S(ROT), S(ROT), S(s_tmp)))
        a(scmp('s_cmp_ge_u32', S(ROT), 10)); a(salu('s_cselect_b32', S(s_tmp), 10, 0)); a(salu('s_sub_u32', S(ROT), S(ROT), S(s_tmp)))
    a(salu('s_mul_i32', S(s_wqb), S(T + 9), 384)); a(salu('s_mul_i32', S(s_tmp), S(QH), 4 * 12288))
    a(salu('s_add_u32', S(s_wqb), S(s_wqb), S(s_tmp)))
    a(salu('s_add_u32', S(s_wql), S(s_wqb), 640 * 12288))
    a(salu('s_mul_i32', S(s_rq), S(ROT), 64 * 12288))
    if OPT['rotq0']: a(salu('s_add_u32', S(s_wq), S(s_wqb), S(s_rq)))
    else: a(salu('s_mov_b32', S(s_wq), S(s_wqb)))
    a(salu('s_mul_i32', S(s_xb), S(B), 96)); a(salu('s_mul_i32', S(s_tmp), S(W), 24))
    a(salu('s_add_u32', S(s_xb), S(s_xb), S(s_tmp))); a(salu('s_mul_i32', S(s_xb), S(s_xb), 1280))
    a(salu('s_add_u32', S(s_xl), S(s_xb), 1280))
    a(salu('s_lshl_b32', S(T + 6), S(ROT), 7)); a(salu('s_mov_b32', S(s_rx), S(T + 6)))
    if OPT['rotq0']: a(salu('s_add_u32', S(s_x), S(s_xb), S(T + 6)))
    else: a(salu('s_mov_b32', S(s_x), S(s_xb)))
    a(salu('s_mul_i32', S(s_tmp), S(W), 3072)); a(salu('s_add_u32', S(s_xwr), S(s_tmp), XA))
    a(raw("s_waitcnt lgkmcnt(0)", 'wait'))
    for srd, p, n in ((sX, 68, 1966080), (sWQ, 74, 7864320)):
        a(salu('s_mov_b32', S(srd), S(p))); a(salu('s_mov_b32', S(srd + 1), S(p + 1)))
        a(salu('s_mov_b32', S(srd + 2), n)); a(salu('s_mov_b32', S(srd + 3), 0x20000))
    P2 = []; a = P2.append
    if OPT['cpf'] == 1:
        a(salu('s_lshr_b32', S(T), 's2', 3)); a(salu('s_lshl_b32', S(T), S(T), 2)); a(salu('s_add_u32', S(T), S(T), S(W)))
        a(salu('s_lshl_b32', S(T), S(T), 4))
        a(valu('v_and_b32', V(tmp), 15, V(lane))); a(valu('v_add_u32', V(tmp), S(T), V(tmp)))
        a(valu('v_lshlrev_b32', V(tmp), 7, V(tmp)))
        a(raw(f"v_min_u32 v{tmp}, L_code_end-L_go-4, v{tmp}", 'valu', [f'v{tmp}'], [f'v{tmp}']))
        a(I(f"global_load_dword v{v_t+10}, v{tmp}, s[{s_ret}:{s_ret+1}]", 'vload', [f'v{tmp}', f's{s_ret}', f's{s_ret+1}'], [f'v{v_t+10}'], tag=('cpf',)))
    for srd, p, n in ((sK, 70, 100663296), (sV, 72, 100663296), (sWO, 76, 7864320), (sWS, 78, 438042624)):
        a(salu('s_mov_b32', S(srd), S(p))); a(salu('s_mov_b32', S(srd + 1), S(p + 1)))
        a(salu('s_mov_b32', S(srd + 2), n)); a(salu('s_mov_b32', S(srd + 3), 0x20000))
    a(valu('v_and_b32', V(n16), 15, V(lane))); a(valu('v_lshrrev_b32', V(g), 4, V(lane)))
    a(salu('s_bfe_u32', S(T), 's2', 0x10002)); a(salu('s_lshl_b32', S(T), S(T), 4)); a(salu('s_add_u32', S(T), S(T), S(B)))
    a(salu('s_lshl_b32', S(T), S(T), 7)); a(salu('s_add_u32', S(T), S(T), FLAG_OFF))
    a(valu('v_and_b32', V(v_fa), 7, V(lane))); a(valu('v_lshl_add_u32', V(v_fa), V(v_fa), 2, S(T)))
    a(bload(V(v_fl), V(v_fa), S(sWS, 4), 0, 0, ('fl',), ' sc1', op='buffer_load_dword'))
    a(salu('s_lshl_b32', S(s_k), S(B), 5)); a(salu('s_add_u32', S(s_k), S(s_k), S(T + 9)))
    a(salu('s_mul_i32', S(s_k), S(s_k), 196608))
    a(salu('s_mul_i32', S(s_cnt), S(QH), 6144)); a(salu('s_add_u32', S(s_k), S(s_k), S(s_cnt)))
    a(salu('s_mov_b32', S(s_v), S(s_k)))
    a(salu('s_mul_i32', S(s_wob), S(T + 3), 192)); a(salu('s_mul_i32', S(s_wol), S(W), 48))
    a(salu('s_add_u32', S(s_wob), S(s_wob), S(s_wol))); a(salu('s_mul_i32', S(s_wob), S(s_wob), 1280))
    a(salu('s_add_u32', S(s_wol), S(s_wob), 1280))
    a(salu('s_add_u32', S(s_wo), S(s_wob), S(T + 6)))
    a(salu('s_mul_i32', S(s_ptb), 's2', PART_WG)); a(salu('s_mul_i32', S(T), S(W), 3072))
    a(salu('s_add_u32', S(s_ptb), S(s_ptb), S(T))); a(salu('s_add_u32', S(s_ptl), S(s_ptb), PART_WG))
    a(salu('s_mul_i32', S(T), S(ROT), 12288)); a(salu('s_add_u32', S(s_pt), S(s_ptb), S(T)))
    c = (192 ** -0.5) * math.log2(math.e)
    a(salu('s_mov_b32', S(s_c), struct.unpack('<I', struct.pack('<f', c))[0]))
    a(salu('s_mul_i32', S(T), S(Pp), 12288))
    swz(sw, n16)
    a(valu('v_xor_b32', V(tmp), V(g), V(sw))); a(valu('v_lshlrev_b32', V(tmp), 4, V(tmp)))
    a(valu('v_mul_u32_u24', V(tmp2), 384, V(n16))); a(valu('v_add3_u32', V(v_k), V(tmp), V(tmp2), S(T)))
    a(valu('v_xor_b32', V(v_k + 1), 64, V(v_k)))
    a(valu('v_add_u32', V(v_k + 2), 2 * SLOT, V(v_k))); a(valu('v_add_u32', V(v_k + 3), 2 * SLOT, V(v_k + 1)))
    a(salu('s_add_u32', S(s_cnt), S(s_cnt), XA))
    a(valu('v_lshlrev_b32', V(tmp2), 7, V(n16))); a(valu('v_add3_u32', V(v_x), V(tmp), V(tmp2), S(s_cnt)))
    a(valu('v_xor_b32', V(v_x + 1), 64, V(v_x)))
    a(valu('v_lshrrev_b32', V(row), 2, V(lane)))
    swz(sw, row)
    a(valu('v_bfe_u32', V(tmp), V(lane), 1, 1))
    a(valu('v_xor_b32', V(tmp), V(tmp), V(sw))); a(valu('v_lshlrev_b32', V(tmp), 4, V(tmp)))
    a(valu('v_and_b32', V(tmp2), 1, V(lane))); a(valu('v_lshl_add_u32', V(tmp), V(tmp2), 3, V(tmp)))
    a(valu('v_mul_u32_u24', V(tmp2), 384, V(row))); a(valu('v_add3_u32', V(v_v), V(tmp), V(tmp2), S(T)))
    for j in (1, 2, 3): a(valu('v_xor_b32', V(v_v + j), j << 5, V(v_v)))
    for j in range(4): a(valu('v_add_u32', V(v_v + 4 + j), 2 * SLOT, V(v_v + j)))
    a(valu('v_lshl_add_u32', V(v_p), V(row), 7, V(tmp)))
    a(salu('s_lshl_b32', S(T), S(Pp), 6))
    a(valu('v_xor_b32', V(v_p), S(T), V(v_p))); a(valu('v_xor_b32', V(v_p + 1), 32, V(v_p)))
    for j in range(2): a(valu('v_add_u32', V(v_p + 2 + j), 2 * SLOT, V(v_p + j)))
    a(valu('v_lshrrev_b32', V(tmp), 2, V(n16)))
    a(vcmp('v_cmp_eq_u32', V(tmp), V(g)))
    a(valu('v_and_b32', V(tmp2), 1, V(n16))); a(valu('v_lshlrev_b32', V(tmp2), 4, V(tmp2)))
    a(salu('s_mov_b32', S(T), 0x3F80))
    a(valu('v_lshlrev_b32', V(tmp2), V(tmp2), S(T)))
    a(valu('v_cndmask_b32', V(tmp2), 0, V(tmp2)))
    a(valu('v_and_b32', V(tmp), 2, V(n16)))
    a(vcmp('v_cmp_eq_u32', 0, V(tmp)))
    a(valu('v_cndmask_b32', V(row), 0, V(tmp2)))
    a(valu('v_sub_u32', V(sw), V(tmp2), V(row)))
    for r in (240, 241, 244, 245): a(valu('v_accvgpr_write_b32', A(r), 0))
    a(valu('v_accvgpr_write_b32', A(242), V(row))); a(valu('v_accvgpr_write_b32', A(243), V(sw)))
    if OPT['pf']:
        a(salu('s_lshr_b32', S(T), 's2', 3)); a(salu('s_lshl_b32', S(T), S(T), 2))
        a(salu('s_and_b32', S(s_cnt), 's2', 3)); a(salu('s_add_u32', S(T), S(T), S(s_cnt)))
        a(salu('s_lshl_b32', S(T), S(T), 2)); a(salu('s_add_u32', S(T), S(T), S(W)))
        a(salu('s_mul_i32', S(s_cnt), S(T), 120))
        a(valu('v_add_u32', V(38), S(s_cnt), V(lane))); a(valu('v_lshlrev_b32', V(38), 7, V(38)))
        a(valu('v_add_u32', V(39), 8192, V(38)))
        a(salu('s_mul_i32', S(s_cnt), S(T), 60))
        a(valu('v_add_u32', V(tmp), S(s_cnt), V(lane)))
        a(salu('s_mov_b32', S(s_cnt), 0x5555556))
        a(valu('v_mul_hi_u32', V(row), V(tmp), S(s_cnt)))
        a(valu('v_mul_u32_u24', V(tmp2), 48, V(row))); a(valu('v_sub_u32', V(tmp), V(tmp), V(tmp2)))
        a(valu('v_mul_u32_u24', V(tmp2), 86, V(tmp))); a(valu('v_lshrrev_b32', V(tmp2), 8, V(tmp2)))
        a(valu('v_mul_u32_u24', V(row), 12288, V(row)))
        a(valu('v_lshl_add_u32', V(row), V(tmp), 7, V(row)))
        a(valu('v_mul_u32_u24', V(tmp2), 384, V(tmp2)))
        a(valu('v_add_u32', V(row), V(row), V(tmp2))); a(valu('v_add_u32', V(37), 384, V(row)))
    a(valu('v_add_u32', V(v_pw), S(s_w6144), V(v_l16)))
    a(salu('s_mul_i32', S(s_ew), S(W), EXW)); a(salu('s_add_u32', S(s_ew), S(s_ew), XA))
    a(scmp('s_cmp_eq_u32', S(W), 3)); a(salu('s_cselect_b32', S(s_ew), 3 * SLOT, S(s_ew)))
    a(salu('s_mul_i32', S(s_er0), S(QH), EXW)); a(salu('s_add_u32', S(s_er0), S(s_er0), XA))
    a(salu('s_mov_b32', S(s_er1), XA + 2 * EXW)); a(scmp('s_cmp_eq_u32', S(QH), 1)); a(salu('s_cselect_b32', S(s_er1), 3 * SLOT, S(s_er1)))
    return P, [x for x in P2 if x is not None]

def make_seq(kind):
    seq = []
    def Q(r, accA=False): return [Slot('Q', j=j, rnd=r, accA=accA) for j in range(20)]
    def Aa(r):
        if not (OPT['pipe'] and f'{kind[0]}{r}' in OPT['pipes']):
            return [Slot(t, i=i, rnd=r, first=(i == 0), pipe=False) for i in range(16) for t in 'KV']
        o = [('K', 0)]
        for i in range(15): o += [('K', i + 1), ('V', i)]
        o.append(('V', 15))
        return [Slot(t, i=i, rnd=r, first=(i == 0), pipe=True) for t, i in o]
    def Pp(r): return [Slot('P', j=j, rnd=r, nh=2, ch=j // 2, hh=j % 2) for j in range(20)]
    def P4(): return [Slot('P', j=j, rnd=1, nh=4, ch=j // 4, hh=j % 4) for j in range(40)]
    if kind == 'X': seq = Q(0) + Aa(0) + Pp(0) + Q(1) + Aa(1) + Pp(1)
    elif kind == 'W': seq = Q(0) + Q(1) + Aa(0) + Aa(1) + P4()
    elif kind == 'Y': seq = Q(0) + Q(1) + Aa(0) + Pp(0) + Aa(1) + Pp(1)
    elif kind == 'Z': seq = Q(0) + Aa(0) + Q(1) + Aa(1) + P4()
    elif kind in 'IJ':
        q1 = Q(1, True); seq = Q(0); k = 0
        for i in range(16):
            nq = int(OPT['jpat'].strip()[i])
            seq += [Slot('K', i=i, rnd=0, first=(i == 0), pipe=False)] + q1[k:k + nq] + [Slot('V', i=i, rnd=0, first=(i == 0), pipe=False)]
            k += nq
        assert k == 20
        seq += (Aa(1) + P4()) if kind == 'I' else (Pp(0) + Aa(1) + Pp(1))
    elif kind[0] in 'FG':
        k = int(kind[1:]); assert k % 2 == 0 and 2 <= k <= 14
        a0 = Aa(0)
        seq = Q(0) + a0[:2 * k] + Q(1, True) + a0[2 * k:]
        seq += (Aa(1) + P4()) if kind[0] == 'F' else (Pp(0) + Aa(1) + Pp(1))
    for n, s in enumerate(seq): s.idx = n
    return seq

def flat(items):
    o = []
    for it in items: o += flat(it) if isinstance(it, list) else [it]
    return o

def build_main(kind, stamps, pro2):
    seq = make_seq(kind)
    N = len(seq)
    for s in seq: build_mfmas(s)
    pfplan = {}
    def plan_pf(first, count, regs, at):
        for k in range(count):
            seq[first + k].pfreg = regs[k]
            pfplan.setdefault(at + k * OPT['pfstep'], []).append(seq[first + k])
    if kind == 'X':
        plan_pf(20, OPT['pfx0'], [24 * k for k in range(6)], OPT['pfat'])
        plan_pf(92, OPT['pfx1'], [144, 168, 192, 120], 54 + OPT['pfat'])
    if kind == 'W': plan_pf(40, OPT['pfw0'], [72, 96, 120], 20 + OPT['pfat'])
    head = flat(x_items(seq[0])[:6]) + flat(dma_items(seq[0])) + flat(x_items(seq[0])[6:])
    for n in range(1, LEAD): head += flat(dma_items(seq[n]))
    head += pro2
    head.append(I('', 'split'))
    head.append(barrier(need=[('d', 0), ('xd', 0)]))
    head += x_reads(seq[0])
    for j in range(5): head += frag_reads(seq[0], j)
    nstamp = 0
    fine = stamps and OPT['sp0'] >= 0
    if stamps: head = ([] if OPT['st0'] else stamp(0)) + [raw("s_memtime s[96:97]", 'smem')] + head + stamp(1); nstamp = 2
    post = []
    if fine:
        stamps = False
        for k in range(5 if OPT['cyc'] == 2 else 11):
            if OPT['sp0'] + k * OPT['spd'] < N:
                if OPT['cyc'] == 2:
                    seq[OPT['sp0'] + k * OPT['spd']].put(0, [raw(f"s_memrealtime s[{s_stamp+2*nstamp}:{s_stamp+2*nstamp+1}]", 'smem'),
                                                             raw(f"s_memtime s[{s_stamp+2*nstamp+2}:{s_stamp+2*nstamp+3}]", 'smem')]); nstamp += 2
                else:
                    seq[OPT['sp0'] + k * OPT['spd']].put(0, stamp(nstamp)); nstamp += 1
    if OPT['pf']:
        for k, (vr, srd) in enumerate(((37, sWQ), (38, sWO), (39, sWO))):
            seq[OPT['pfs'] + k * OPT['pfd']].put(21, bload(V(111), V(vr), S(srd, 4), 0, 0, ('pf', k), '', op='buffer_load_dword'))
    wp = OPT['wper']
    for n, s in enumerate(seq):
        nx = seq[n + 1] if n + 1 < N else None
        pv = seq[n - 1] if n else None
        for j in range(wp, 9, wp): s.load[3 * j - 1] += 1
        s.load[35] += 1
        for j in range(5, 12):
            for k, r in enumerate(frag_reads(s, j)): s.put(3 * (j - 5) + k, r)
        if nx is not None:
            need = [('f', s.idx, 11), ('d', nx.idx)] + ([('xd', nx.idx)] if nx.typ == 'Q' and nx.j % 4 == 0 else [])
            s.put(26, barrier(need=need)); s.load[26] += 1
            if nx.typ == 'Q' and nx.j % 4 == 0 and nx.idx > 0:
                s.put(24, valu('v_xor_b32', V(v_x), XTOG, V(v_x))); s.put(25, valu('v_xor_b32', V(v_x + 1), XTOG, V(v_x + 1)))
            rr = [frag_reads(nx, j) for j in range(5)]
            xr = x_reads(nx) if nx.typ == 'Q' else []
            if s.typ == 'K' and s.pipe and xr: nx.pre += xr; xr = []
            spread([(s, g) for g in range(27, 32)], flat(rr[0] + xr[:1] + rr[1] + xr[1:] + rr[2]))
            spread([(s, g) for g in range(30, 34)], rr[3])
            spread([(s, g) for g in range(32, 36)], rr[4])
        its = dma_items(seq[n + LEAD]) if n + LEAD < N else []
        if n + 4 < N and seq[n + 4].typ == 'Q' and seq[n + 4].j % 4 == 0: its = its + x_items(seq[n + 4])[:6]
        if n + 3 < N and n >= 1 and seq[n + 3].typ == 'Q' and seq[n + 3].j % 4 == 0: its = its + x_items(seq[n + 3])[6:]
        for p in pfplan.get(n, []): its = its + prefill_loads(p)
        s.dma = its
        s.early = bool(s.typ == 'V' and OPT['early'] and its and not s.pipe and pv.typ == 'K')
    for n, s in enumerate(seq):
        nx = seq[n + 1] if n + 1 < N else None
        pv = seq[n - 1] if n else None
        if OPT['edef'] and pv is not None and pv.typ == 'V' and pv.i == 15:
            spread([(s, g) for g in range(27, 36)], s.dma[:4]); nx.dma = s.dma[4:] + nx.dma
        elif not s.early: spread([(s, g) for g in range(0, OPT['dend'])], s.dma, even=True)
        if s.typ == 'K' and stamps and s.i == 8 and not (kind[0] in 'FG' and s.rnd == 0): s.pre = stamp(nstamp) + s.pre; nstamp += 1
        if s.typ in 'KV' and s.pipe:
            if s.typ == 'K' and s.i == 0:
                SB[0] = 0
                nx.pre += softmax_init() + sm_fma(0) + sm_fma(1)
            elif s.typ == 'K':
                SB[0] = (s.i - 1) & 1
                ex, tail = sm_exp()
                spread([(s, g) for g in range(0, 35)], ex + tail)
            elif s.i < 15:
                SB[0] = (s.i + 1) & 1
                spread([(s, g) for g in range(3, 36)], sm_fmamax(0) + sm_fmamax(1), even=True)
                nx.pre += sm_check()
                if s.i == 14:
                    ex, tail = sm_exp()
                    nx.pre += ex
                    spread([(nx, g) for g in range(0, 6)], tail)
        elif s.typ == 'K':
            SB[0] = 0
            ex, tail = sm_exp()
            if s.first: rest = softmax_init() + sm_fma(0) + sm_fma(1) + ex
            else:
                spread([(s, g) for g in range(20, 36)], sm_fmamax(0))
                rest = sm_fmamax(1) + sm_check() + ex
            if nx.typ == 'Q':
                ws = []; k2 = n + 1
                while seq[k2].typ == 'Q': ws.append(seq[k2]); k2 += 1
                for w_ in ws:
                    spread([(w_, g) for g in range(0, OPT['dend'])], w_.dma, even=True); w_.dma = []
                spread([(w_, g) for w_ in ws for g in range(36)][3:-2], rest + tail)
                continue
            if nx.early:
                d = list(nx.dma); o = d[:2]; d = d[2:]
                step = max(1, len(rest) // (len(d) + 1))
                for k2, it in enumerate(rest):
                    o.append(it)
                    if k2 % step == step - 1 and d: o.append(d.pop(0))
                rest = o + d
            nx.pre += rest
            spread([(nx, g) for g in range(0, 6)], tail)
        if s.typ == 'Q' and s.accA and stamps and s.j in (0, 19) and kind not in 'IJ':
            if s.j == 0: s.pre += stamp(nstamp)
            else: nx.pre = stamp(nstamp) + nx.pre
            nstamp += 1
        if s.typ == 'Q' and s.j == 19 and not s.accA:
            dest = aQN if (kind in 'WY' and s.rnd == 1) else aQ
            cv = [q_convert_u(u, dest) for u in range(6)]
            k0 = 0
            if OPT['ovl']:
                spread([(s, g) for g in range(9, 20)], cv[0]); spread([(s, g) for g in range(20, 36)], cv[1]); k0 = 2
            nx.pre = flat(cv[k0:]) + nx.pre
            if stamps: nx.pre = nx.pre + stamp(nstamp); nstamp += 1
        if s.typ == 'V' and s.i == 15:
            pre = []
            if stamps: pre += stamp(nstamp); nstamp += 1
            toA = (kind[0] in 'WZFI' and s.rnd == 0)
            if kind in 'WY' and s.rnd == 0: pre += [valu('v_accvgpr_mov_b32', A(aQ + k), A(aQN + k)) for k in range(72)]
            k0 = 0
            if OPT['ovl']:
                spread([(s, g) for g in range(6, 14)], e_head())
                spread([(s, g) for g in range(14, 36)], [i for i in e_pack(0, s.rnd, False) if i.k != 'ds'], cap=2)
                pre += [i for i in e_pack(0, s.rnd, False) if i.k == 'ds']
                k0 = 1
            else: pre += e_head()
            if kind[0] in 'FGIJ' and s.rnd == 0:
                for u in range(6): pre += q_convert_a(u)
            for u in range(k0, 6): pre += e_pack(u, s.rnd, True)
            pre.append(barrier(need=[('ew', s.rnd)]))
            er = e_reads(s.rnd, toA)
            if OPT['edef']:
                nfirst = 0 if toA else 6
                pre += er[:nfirst]
                spread([(nx, g) for g in range(0, 24)], er[nfirst:])
                for it in nx.gaps[26]:
                    if it[0].k == 'barrier': it[0].need.append(('er', s.rnd, 1, 17))
                if not toA:
                    for k2 in range(2):
                        ps = seq[n + 1 + (k2 if nx.nh == 2 else 2 + k2)]
                        for u in range(6): ps.mf[6 * u].need = list(ps.mf[6 * u].need) + [('er', s.rnd, k2, 3 * u + 2)]
            else:
                pre += er
                pre.append(barrier(need=[('er', s.rnd, 1, 17)]))
            if stamps: pre += stamp(nstamp); nstamp += 1
            nx.pre = pre + nx.pre
        if s.typ == 'P':
            if s.hh == 0 and s.rnd == 1 and s.nh == 2 and (s.ch < 2 or not OPT['vinit']): s.pre += chunk_init(s.ch)
            if s.hh == s.nh - 1:
                hold = OPT['hold'] if s.nh == 4 else 0
                ce = chunk_end(s.ch, s.rnd == 1, s.ch < hold)
                if s.nh == 4 and OPT['nost']: ce = [i for i in ce if not (isinstance(i, I) and i.k == 'vstore')]
                if s.ch >= hold > 0:
                    per = -(-hold // (10 - hold)); k0 = (s.ch - hold) * per
                    for c2 in range(k0, min(hold, k0 + per)): ce = ce + flush_held(c2)
                if s.ch == 9:
                    if stamps: ce = ce + stamp(nstamp); nstamp += 1
                    if nx is None: post += ce
                    else: nx.pre = ce + nx.pre
                else:
                    if s.rnd == 1 and s.nh == 2 and OPT['vinit'] and s.ch < 8:
                        ini = chunk_init_valu(s.ch + 2)
                        ce = ce[:15] + interleave(ce[15:], ini[:3]) + ini[3:]
                    spread([(seq[n + 1 + k], g) for k in range(s.nh) for g in range(36)][3:-3], ce, even=True)
    prog = list(head)
    for s in seq:
        prog.append(mark('m'))
        prog += flat(s.pre)
        for k in range(36):
            prog.append(s.mf[k]); prog += flat(s.gaps[k])
    prog.append(mark('m'))
    prog += flat(post)
    return prog, nstamp

def stamp_out(nstamp):
    o = ["s_waitcnt vmcnt(0) lgkmcnt(0)"]
    o.append(f"s_memrealtime s[{s_stamp+2*nstamp}:{s_stamp+2*nstamp+1}]")
    o.append(f"s_memtime s[98:99]")
    o.append("s_waitcnt lgkmcnt(0)")
    o.append(f"s_lshl_b32 s{s_tmp}, s2, 8")
    o.append(f"s_lshl_b32 s{s_cnt}, s{s_w}, 6")
    o.append(f"s_add_u32 s{s_tmp}, s{s_tmp}, s{s_cnt}")
    o.append(f"s_add_u32 s{s_tmp}, s{s_tmp}, {STAMP_OFF}")
    o.append("v_mov_b32 v1, 0")
    for n in range(nstamp + 1):
        o.append(f"v_mov_b32 v2, s{s_stamp+2*n}")
        o.append(f"buffer_store_dword v2, v1, s[{sWS}:{sWS+3}], s{s_tmp} offen offset:{4*n}")
    o.append(f"s_sub_u32 s{s_cnt}, s98, s96")
    o.append(f"v_mov_b32 v2, s{s_cnt}")
    o.append(f"buffer_store_dword v2, v1, s[{sWS}:{sWS+3}], s{s_tmp} offen offset:60")
    o.append(f"v_mov_b32 v2, {nstamp+1}")
    o.append(f"buffer_store_dword v2, v1, s[{sWS}:{sWS+3}], s{s_tmp} offen offset:56")
    return o

FLAG_OFF = STAMP_OFF + 65536
v_fl = 109; v_fa = 110
def red_loads(a, bases, hq, ldfl, vb):
    off = (((hq & 1) << 3) | (hq >> 1)) * PART_WG
    for k, bs in enumerate(bases):
        r = vb + (k * 8 + hq) * 4
        a(f"s_add_u32 s{s_t0+1}, s{bs}, {off}")
        a(f"buffer_load_dwordx4 v[{r}:{r+3}], v{v_l16}, s[{sWS}:{sWS+3}], s{s_t0+1} offen{ldfl}")
def red_outaddr(a, f, dst, br, b):
    t = s_t0
    a(f"s_mul_hi_u32 s{t}, s{f}, 0x15555556")
    a(f"s_mul_i32 s{t+1}, s{t}, 12"); a(f"s_sub_u32 s{t+1}, s{f}, s{t+1}")
    a(f"s_mul_hi_u32 s{t+2}, s{t+1}, 0x55555556")
    a(f"s_mul_i32 s{t+3}, s{t+2}, 3"); a(f"s_sub_u32 s{t+3}, s{t+1}, s{t+3}")
    a(f"s_and_b32 s{dst}, s{t+2}, 1"); a(f"s_mul_i32 s{dst}, s{dst}, 48"); a(f"s_lshl_b32 s{t+3}, s{t+3}, 4")
    a(f"s_add_u32 s{dst}, s{dst}, s{t+3}")
    a(f"s_mul_i32 s{t+3}, s{b}, 96"); a(f"s_add_u32 s{dst}, s{dst}, s{t+3}")
    a(f"s_mul_i32 s{dst}, s{dst}, 2560")
    a(f"s_mul_i32 s{t+3}, s{br}, 1280"); a(f"s_add_u32 s{dst}, s{dst}, s{t+3}")
    a(f"s_lshl_b32 s{t+3}, s{t}, 7"); a(f"s_add_u32 s{dst}, s{dst}, s{t+3}")
    a(f"s_lshr_b32 s{t+3}, s{t+2}, 1"); a(f"s_lshl_b32 s{t+3}, s{t+3}, 6"); a(f"s_add_u32 s{dst}, s{dst}, s{t+3}")
def red_sum(a, nf, outs, vb):
    for k in range(nf):
        ac = 64 + 8 * (k % 2)
        for hq in range(8):
            for q in range(4):
                r = vb + (k * 8 + hq) * 4 + q
                if hq == 0:
                    a(f"v_lshlrev_b32 v{ac+q}, 16, v{r}"); a(f"v_and_b32 v{ac+4+q}, 0xffff0000, v{r}")
                else:
                    a(f"v_lshlrev_b32 v4, 16, v{r}"); a(f"v_and_b32 v{r}, 0xffff0000, v{r}")
                    a(f"v_add_f32 v{ac+q}, v{ac+q}, v4"); a(f"v_add_f32 v{ac+4+q}, v{ac+4+q}, v{r}")
        o = 48 + 4 * k
        for q in range(4): a(f"v_cvt_pk_bf16_f32 v{o+q}, v{ac+q}, v{ac+4+q}")
        a("s_nop 1")
        a(f"v_permlane32_swap_b32 v{o}, v{o+2}"); a(f"v_permlane32_swap_b32 v{o+1}, v{o+3}")
        a("s_nop 1")
        a(f"v_permlane16_swap_b32 v{o}, v{o+2}"); a(f"v_permlane16_swap_b32 v{o+1}, v{o+3}")
        a("s_nop 1")
        a(f"buffer_store_dwordx4 v[{o}:{o+3}], v2, s[{sK}:{sK+3}], s{outs[k]} offen{OPT['outst']}")

def fused_reduce(stamps=False):
    L = []; a = L.append
    def st(n):
        if stamps: a(f"s_memrealtime s[{s_stamp+2*n}:{s_stamp+2*n+1}]")
    sD = sV
    br, b, pb, done, last, it, new, slc, vw, extra = 28, 29, 30, 31, 32, 33, 34, 35, 36, 37
    fs = [38, 39, 40, 41]; bases = [42, 43, 44, 45]; outs = [12, 13, 14, 15]
    a("L_red:")
    a("s_load_dwordx4 s[60:63], s[0:1], 80")
    a(f"s_bfe_u32 s{br}, s2, 0x10002"); a(f"s_lshr_b32 s{b}, s2, 4")
    a(f"s_lshl_b32 s{pb}, s{b}, 4"); a(f"s_lshl_b32 s{it}, s{br}, 2"); a(f"s_add_u32 s{pb}, s{pb}, s{it}")
    a(f"s_mul_i32 s{pb}, s{pb}, {PART_WG}")
    a(f"v_lshrrev_b32 v3, 4, v{v_l16}")
    a("v_and_b32 v2, 15, v3"); a("v_mul_u32_u24 v2, 2560, v2")
    a("v_lshrrev_b32 v3, 4, v3"); a("v_lshl_add_u32 v2, v3, 4, v2")
    a(f"s_lshl_b32 s{it}, s{br}, 4"); a(f"s_add_u32 s{it}, s{it}, s{b}"); a(f"s_lshl_b32 s{it}, s{it}, 2")
    a(f"v_mov_b32 v6, s{it}")
    a(f"s_mov_b32 s{slc}, s{s_hq}"); a(f"s_mov_b32 s{vw}, s{s_w}"); a(f"s_mov_b32 s{last}, 0"); a(f"s_mov_b32 s{extra}, 0")
    a(f"s_lshl_b32 s{new}, 1, s{s_hq}")
    a("L_red_setup:")
    a(f"s_mul_i32 s{it}, s{slc}, 15")
    for k in range(4):
        a(f"s_add_u32 s{fs[k]}, s{vw}, {4*k}")
        if k == 3: a(f"s_min_u32 s{fs[k]}, s{fs[k]}, 14")
        a(f"s_add_u32 s{fs[k]}, s{fs[k]}, s{it}")
        a(f"s_lshl_b32 s{bases[k]}, s{fs[k]}, 10"); a(f"s_add_u32 s{bases[k]}, s{bases[k]}, s{pb}")
        red_outaddr(a, fs[k], outs[k], br, b)
    a(f"s_mov_b32 s{done}, 0"); a(f"s_mov_b32 s{it}, 0")
    for r in range(64, 96): a(f"v_mov_b32 v{r}, 0")
    a(f"s_cmp_eq_u32 s{new}, 0xff"); a("s_cbranch_scc1 L_red_issue")
    a("s_waitcnt lgkmcnt(0)")
    a(f"s_mov_b32 s{sK}, s60"); a(f"s_mov_b32 s{sK+1}, s61"); a(f"s_mov_b32 s{sK+2}, 3932160"); a(f"s_mov_b32 s{sK+3}, 0x20000")
    a(f"s_mov_b32 s{sD}, s62"); a(f"s_mov_b32 s{sD+1}, s63"); a(f"s_mov_b32 s{sD+2}, 256"); a(f"s_mov_b32 s{sD+3}, 0x20000")
    a("s_waitcnt vmcnt(0)")
    a("s_barrier")
    st(8)
    a(f"s_cmp_lg_u32 s{s_w}, 0"); a("s_cbranch_scc1 L_red_issue")
    a(f"s_mov_b32 exec_lo, s{new}"); a("s_mov_b32 exec_hi, 0")
    a(f"v_add_u32 v8, 1, v{v_fl}")
    a(f"buffer_store_dword v8, v{v_fa}, s[{sWS}:{sWS+3}], 0 offen sc1")
    a("v_mov_b32 v7, 1")
    a(f"buffer_atomic_add v7, v6, s[{sD}:{sD+3}], 0 offen sc0")
    a("s_mov_b64 exec, -1")
    a("L_red_issue:")
    for hq in range(8):
        a(f"s_bitcmp1_b32 s{new}, {hq}"); a(f"s_cbranch_scc0 L_red_s{hq}")
        red_loads(a, bases, hq, OPT['rld'], 112)
        a(f"L_red_s{hq}:")
    a(f"s_or_b32 s{done}, s{done}, s{new}")
    a(f"s_cmp_eq_u32 s{done}, 0xff"); a("s_cbranch_scc1 L_red_wait")
    a("L_red_poll:")
    a(f"buffer_load_dword v8, v{v_fa}, s[{sWS}:{sWS+3}], 0 offen sc1")
    a(f"s_add_u32 s{it}, s{it}, 1")
    a("L_red_wait:")
    st(10)
    a("s_waitcnt vmcnt(0)")
    st(11)
    for hq in range(8):
        a(f"s_bitcmp1_b32 s{new}, {hq}"); a(f"s_cbranch_scc0 L_red_a{hq}")
        for k in range(4):
            for q in range(4):
                r = 112 + (k * 8 + hq) * 4 + q; ac = 64 + 8 * k
                a(f"v_lshlrev_b32 v{4+q%2}, 16, v{r}"); a(f"v_and_b32 v{r}, 0xffff0000, v{r}")
                a(f"v_add_f32 v{ac+q}, v{ac+q}, v{4+q%2}"); a(f"v_add_f32 v{ac+4+q}, v{ac+4+q}, v{r}")
        a(f"L_red_a{hq}:")
    a(f"s_cmp_eq_u32 s{done}, 0xff"); a("s_cbranch_scc1 L_red_sum")
    a(f"v_cmp_ne_u32 vcc, v8, v{v_fl}")
    a("s_nop 4")
    a(f"s_andn2_b32 s{new}, vcc_lo, s{done}"); a(f"s_and_b32 s{new}, s{new}, 0xff")
    a("s_cbranch_scc1 L_red_issue")
    a(f"s_sleep {OPT['sleep']}")
    a(f"s_cmp_lt_u32 s{it}, {OPT['polls']}"); a("s_cbranch_scc1 L_red_poll")
    a("s_mov_b64 exec, 1")
    a(f"s_lshl_b32 s{new}, 1, s{s_hq}")
    a(f"v_mov_b32 v8, s{new}")
    a(f"buffer_atomic_or v8, v6, s[{sD}:{sD+3}], 0 offen offset:128 sc0")
    a("s_waitcnt vmcnt(0)")
    a("v_mov_b32 v8, 0")
    a(f"buffer_atomic_add v8, v6, s[{sD}:{sD+3}], 0 offen sc0")
    a("s_waitcnt vmcnt(0)")
    a(f"v_readfirstlane_b32 s{s_t0}, v8")
    a("s_mov_b64 exec, -1")
    a(f"s_andn2_b32 s{new}, 0xff, s{done}")
    a("s_nop 2")
    a(f"s_cmp_eq_u32 s{s_t0}, 8"); a("s_cbranch_scc1 L_red_issue")
    a("s_branch L_red_next")
    a("L_red_sum:")
    for k in range(4):
        for q in range(4): a(f"v_cvt_pk_bf16_f32 v{48+4*k+q}, v{64+8*k+q}, v{68+8*k+q}")
    for op in ("v_permlane32_swap_b32", "v_permlane16_swap_b32"):
        for k in range(4):
            o = 48 + 4 * k
            a(f"{op} v{o}, v{o+2}"); a(f"{op} v{o+1}, v{o+3}")
    a("s_nop 1")
    for k in range(4):
        a(f"buffer_store_dwordx4 v[{48+4*k}:{51+4*k}], v2, s[{sK}:{sK+3}], s{outs[k]} offen{OPT['outst']}")
    a("L_red_next:")
    a(f"s_cmp_lg_u32 s{s_w}, 0"); a("s_cbranch_scc1 L_red_done")
    a(f"s_cmp_lg_u32 s{last}, 0"); a("s_cbranch_scc1 L_red_more")
    a(f"v_readlane_b32 s{last}, v7, s{s_hq}")
    a("s_nop 3")
    a(f"s_cmp_eq_u32 s{last}, 7"); a("s_cbranch_scc0 L_red_done")
    a("s_mov_b64 exec, 1")
    a("v_mov_b32 v8, 0")
    a(f"buffer_atomic_or v8, v6, s[{sD}:{sD+3}], 0 offen offset:128 sc0")
    a("s_waitcnt vmcnt(0)")
    a(f"v_readfirstlane_b32 s{extra}, v8")
    a("s_mov_b64 exec, -1")
    a(f"s_mov_b32 s{vw}, 3")
    a("L_red_more:")
    a(f"s_add_u32 s{vw}, s{vw}, 1"); a(f"s_and_b32 s{vw}, s{vw}, 3"); a("s_cbranch_scc1 L_red_go")
    a(f"s_cmp_eq_u32 s{extra}, 0"); a("s_cbranch_scc1 L_red_done")
    a(f"s_ff1_i32_b32 s{slc}, s{extra}"); a(f"s_bitset0_b32 s{extra}, s{slc}")
    a("L_red_go:")
    a(f"s_mov_b32 s{new}, 0xff")
    a("s_branch L_red_setup")
    a("L_red_done:")
    return L

def reduce_kernel():
    L = []; a = L.append
    a("s_cmp_ge_u32 s2, 960"); a("s_cbranch_scc1 R_end")
    a("s_load_dwordx2 s[12:13], s[0:1], 96"); a("s_load_dwordx2 s[14:15], s[0:1], 80")
    a("v_lshrrev_b32 v1, 6, v0"); a("s_nop 0"); a("v_readfirstlane_b32 s3, v1")
    a("v_and_b32 v3, 63, v0")
    a("s_nop 2")
    a("s_lshl_b32 s16, s2, 2"); a("s_add_u32 s16, s16, s3")
    a("s_mul_hi_u32 s17, s16, 0x2222223")
    a("s_mul_i32 s18, s17, 120"); a("s_sub_u32 s34, s16, s18")
    a("s_lshr_b32 s28, s17, 4"); a("s_and_b32 s29, s17, 15")
    a("s_lshl_b32 s30, s29, 4"); a("s_lshl_b32 s22, s28, 2"); a("s_add_u32 s30, s30, s22")
    a(f"s_mul_i32 s30, s30, {PART_WG}")
    a(f"v_lshlrev_b32 v{v_l16}, 4, v3")
    a("v_and_b32 v2, 15, v3"); a("v_mul_u32_u24 v2, 2560, v2")
    a("v_lshrrev_b32 v3, 4, v3"); a("v_lshl_add_u32 v2, v3, 4, v2")
    a("s_waitcnt lgkmcnt(0)")
    a(f"s_mov_b32 s{sWS}, s12"); a(f"s_mov_b32 s{sWS+1}, s13"); a(f"s_mov_b32 s{sWS+2}, 438042624"); a(f"s_mov_b32 s{sWS+3}, 0x20000")
    a(f"s_mov_b32 s{sK}, s14"); a(f"s_mov_b32 s{sK+1}, s15"); a(f"s_mov_b32 s{sK+2}, 3932160"); a(f"s_mov_b32 s{sK+3}, 0x20000")
    a("s_lshl_b32 s42, s34, 10"); a("s_add_u32 s42, s42, s30")
    for hq in range(8): red_loads(a, [42], hq, "", 8)
    red_outaddr(a, 34, 12, 28, 29)
    a("s_waitcnt vmcnt(0)")
    red_sum(a, 1, [12], 8)
    a("R_end:")
    a("s_endpgm")
    return L

DESC = """.section .rodata,"a"
.p2align 6
.amdhsa_kernel {name}
  .amdhsa_next_free_vgpr {nv}
  .amdhsa_next_free_sgpr {ns}
  .amdhsa_accum_offset {acc}
  .amdhsa_group_segment_fixed_size 0
  .amdhsa_kernarg_size 104
  .amdhsa_user_sgpr_count 2
  .amdhsa_user_sgpr_kernarg_segment_ptr 1
  .amdhsa_system_sgpr_workgroup_id_x 1
.end_amdhsa_kernel
"""
def far_jump(lbl, uid):
    return [f"s_getpc_b64 s[{s_ret}:{s_ret+1}]", f"{uid}:", f"s_add_u32 s{s_ret}, s{s_ret}, {lbl}-{uid}",
            f"s_addc_u32 s{s_ret+1}, s{s_ret+1}, 0", f"s_setpc_b64 s[{s_ret}:{s_ret+1}]"]

def main():
    ap = argparse.ArgumentParser()
    ap.add_argument('-o', default=f'cdna_kernels/{KN}.s')
    ap.add_argument('--kind', default='J+W')
    ap.add_argument('--stamps', action='store_true')
    ap.add_argument('-v', action='store_true')
    ap.add_argument('--drop', default='')
    ap.add_argument('--opt', default='')
    a = ap.parse_args()
    for kv in filter(None, a.opt.split(',')):
        k, v = kv.split('=')
        fl = '' if v == 'df' else ' ' + v.replace('+', ' ')
        if k == 'w':
            for kk in ('wq0', 'wq1', 'wo0', 'wo1', 'x0', 'x1'): OPT[kk] = fl
        elif isinstance(OPT[k], int): OPT[k] = int(v, 0)
        else: OPT[k] = fl
    if not OPT['fuse'] and OPT['st'] == ' sc1': OPT['st'] = ''
    p1, p2 = prologue()
    p1, _ = fix_hazards(p1)
    kinds = a.kind.split('+')
    lines = []; nn = 0
    if len(kinds) > 1:
        pat = OPT['pat'].strip()
        pat = (pat * 32)[:32]
        lo = sum(int(c) << (2 * i) for i, c in enumerate(pat[:16])); hi = sum(int(c) << (2 * i) for i, c in enumerate(pat[16:]))
        lines += [f"; classes {pat}", f"s_mov_b32 s{s_ret}, {hex(lo)}", f"s_mov_b32 s{s_ret+1}, {hex(hi)}", f"s_lshr_b32 s{s_cnt}, s2, 3", f"s_lshl_b32 s{s_cnt}, s{s_cnt}, 1",
                  f"s_lshr_b64 s[{s_ret}:{s_ret+1}], s[{s_ret}:{s_ret+1}], s{s_cnt}", f"s_and_b32 s{s_cnt}, s{s_ret}, 3"]
        for ci in range(1, len(kinds)):
            lines += [f"s_cmp_eq_u32 s{s_cnt}, {ci}", f"s_cbranch_scc0 L_nc{ci}"] + far_jump(f'L_cls{ci}', f'L_pc{ci}') + [f"L_nc{ci}:"]
    for ci, kind in enumerate(kinds):
        body, nstamp = build_main(kind, a.stamps, p2)
        body = insert_waits(body)
        if a.drop:
            dr = a.drop.split(',')
            body = [i for i in body if i.k not in dr]
        body, n1 = fix_hazards(body, a.v); nn += n1
        k = [i for i, x in enumerate(body) if x.k == 'split'][0]
        if ci == 0: common = [x.t for x in body[:k]]
        else: assert common == [x.t for x in body[:k]]
        body = body[k + 1:]
        l1, s1 = compress(body, S(s_cnt), uid=f'C{ci}_')
        s1 = [x.replace('L_rare', f'L_rare{ci}') for x in s1]
        lines += [f"L_cls{ci}:"]
        lines += l1
        if a.stamps: lines += [f"s_mov_b32 s3, {12 if OPT['rst'] else nstamp}"]
        if ci < len(kinds) - 1: lines += far_jump('L_fin', f'L_pf{ci}')
        else: lines += ["s_branch L_fin"]
        lines += s1 + rare_path(f'L_rare{ci}_0', 0) + rare_path(f'L_rare{ci}_1', 1)
    lines += ["L_fin:"]
    NS = 12
    if a.stamps: lines += [f"s_memrealtime s[{s_stamp+2*NS}:{s_stamp+2*NS+1}]"]
    if OPT['fuse']: lines += fused_reduce(a.stamps and OPT['rst'])
    if a.stamps:
        so = stamp_out(NS + 1)
        so = [x.replace(f"v_mov_b32 v2, {NS+2}", "v_mov_b32 v2, s3") for x in so]
        lines += ["s_mov_b64 exec, -1"] + so
    lines += ["s_endpgm"]
    hdr = open(f'cdna_kernels/{KN}.s.ref').read().split('\n')
    hdr = [l for l in hdr if l.startswith(';') and '@launch' not in l and 'Override launch' not in l and 'grid=ceil' not in l]
    if OPT['fuse']: out = hdr + [f"; @launch grid=(256,1,1) block=(256,1,1) lds={LDS_BYTES}"]
    else: out = hdr + [f"; @launch kernel={KN}_kernel grid=(256,1,1) block=(256,1,1) lds={LDS_BYTES}",
                       "; @launch kernel=reduce_kernel grid=(960,1,1) block=(256,1,1) lds=0"]
    out += ['.amdgcn_target "amdgcn-amd-amdhsa--gfx950"', '.text',
            f'.globl {KN}_kernel', '.p2align 8', f'.type {KN}_kernel,@function', f'{KN}_kernel:']
    out += ["s_cmp_lt_u32 s2, 256", "s_cbranch_scc1 L_go", "s_endpgm", "L_go:"]
    if a.stamps and OPT['st0']: out += [f"s_memrealtime s[{s_stamp}:{s_stamp+1}]"]
    if OPT['cpf'] == 2:
        out += [f"s_getpc_b64 s[{s_ret}:{s_ret+1}]", "L_cp:", f"s_lshr_b32 s{s_tmp}, s2, 3", f"s_lshl_b32 s{s_tmp}, s{s_tmp}, 13",
                "v_lshrrev_b32 v1, 2, v0", "v_lshlrev_b32 v1, 7, v1", f"v_add_u32 v1, s{s_tmp}, v1", "v_min_u32 v1, L_code_end-L_cp-4, v1",
                f"global_load_dword v{v_t+10}, v1, s[{s_ret}:{s_ret+1}]"]
    if OPT['half']: out += [f"s_and_b32 s3, s2, {OPT['half']}", "s_cbranch_scc0 L_go2", "s_endpgm", "L_go2:"]
    if OPT['cpf'] == 1: out += [f"s_getpc_b64 s[{s_ret}:{s_ret+1}]", "L_cp0:", f"s_sub_u32 s{s_ret}, s{s_ret}, L_cp0-L_go", f"s_subb_u32 s{s_ret+1}, s{s_ret+1}, 0"]
    out += [i.t for i in p1] + common + lines + ["L_code_end:"]
    if not OPT['fuse']:
        out += ['.globl reduce_kernel', '.p2align 8', '.type reduce_kernel,@function', 'reduce_kernel:'] + reduce_kernel()
    out.append(DESC.format(name=KN + '_kernel', nv=512, ns=102, acc=256))
    if not OPT['fuse']: out.append(DESC.format(name='reduce_kernel', nv=88, ns=72, acc=88))
    txt = "\n".join(out) + "\n"
    if OPT['mac']:
        txt = txt.replace("v_mfma_f32_16x16x32_bf16 ", "M ").replace("ds_read_b64_tr_b16 ", "T ").replace("v_cvt_pk_bf16_f32 ", "C ")
        txt = txt.replace("v_accvgpr_write_b32 ", "AW ").replace("buffer_load_dwordx4 ", "L ").replace(", ", ",")
        mac = [".macro M a:vararg", "v_mfma_f32_16x16x32_bf16 \\a", ".endm", ".macro T a:vararg", "ds_read_b64_tr_b16 \\a", ".endm",
               ".macro C a:vararg", "v_cvt_pk_bf16_f32 \\a", ".endm", ".macro AW a:vararg", "v_accvgpr_write_b32 \\a", ".endm",
               ".macro L a:vararg", "buffer_load_dwordx4 \\a", ".endm"]
        txt = txt.replace(".text\n", ".text\n" + "\n".join(mac) + "\n", 1)
        head = "\n".join(out[:len(hdr) + 2])
        txt = head + txt[txt.index("\n.text\n"):] if OPT['fuse'] else txt
    open(a.o, 'w').write(txt)
    print(f"wrote {a.o}: {len(out)} lines, {nn} hazard nops")

if __name__ == '__main__':
    main()
```

```python
import sys, math, argparse, struct
sys.path.insert(0, 'gen')
from asmlib import *

KN = 'concat_heads__mha_block_cached__gqa_block_cached__near_ridge'
SLOT = 24576; NBUF = 4; LEAD = 3; XT = 12288
XA = 0x18000; XB_ = 0x20000; XTOG = XA ^ XB_
LDS_BYTES = XB_ + 2 * XT
EXW = 18432
PART_WG = 122880
STAMP_OFF = 256 * PART_WG
H = 192 * 1280

OPT = {'wq0': '', 'wq1': '', 'wo0': '', 'wo1': '', 'x0': '', 'x1': '', 'kv': ' nt', 'st': ' sc1', 'rot': 1,
       'cmask': 0xAAAAAAAA, 'half': 0, 'early': 1, 'sp0': -1, 'spd': 2, 'fuse': 1, 'wper': 3, 'ovl': 1, 'outst': ' sc1', 'sleep': 1, 'polls': 3000, 'rld': ' sc1', 'rst': 0, 'cyc': 0, 'cpf': 1, 'pipe': 1, 'dend': 36, 'rot2': 0, 'pat': '01', 'mac': 1, 'hold': 6, 'nost': 0, 'pf': 0, 'pfs': 4, 'pfd': 4, 'ntp': 0, 'st0': 1, 'pfx0': 0, 'pfx1': 0, 'pfw0': 0, 'pfw1': 0, 'xtag': 1, 'pollgap': 8, 'pre': 1, 'pfat': 3, 'pfstep': 2, 'rotq0': 1, 'snake': 1, 'jpat': ' 0000111122222222', 'pipes': ' X0X1W0W1F0F1G0G1I1J1', 'edef': 1, 'vinit': 0}

sK, sV, sWQ, sWO, sX, sWS = 4, 8, 12, 16, 20, 24
s_w6144, s_k, s_v, s_wq, s_wo, s_x, s_xwr, s_tmp, s_cnt, s_c = range(28, 38)
s_wqb, s_wql, s_xb, s_xl, s_wob, s_wol, s_pt, s_ptb, s_ptl = range(38, 47)
s_ew, s_er0, s_er1, s_w, s_hq = range(47, 52)
s_ret = 52
s_tmp2 = 63
s_rq = 100; s_rx = 101
s_t0 = 54
s_stamp = 64
v_l16 = 0; v_k = 1; v_v = 5; v_p = 13; v_x = 17
v_m, v_l = 19, 22
v_t = 25
vP = 40; vS = 52; vXF = 76; v_dkv, v_dwq, v_dwx = 100, 103, 106; vO = 112
vACC = (76, 52)
aQN = 0; aRES = 0; aQ = 144; aF = 216; aE1 = 240; aE0 = 242

def Oreg(dt, qt): return vO + (dt * 3 + qt) * 4
SB = [0]
def Sbase(): return (vS, vXF)[SB[0]]
def Sreg(t, qt): return Sbase() + (t * 3 + qt) * 4

class Slot:
    def __init__(self, typ, **kw):
        self.typ = typ; self.__dict__.update(kw)
        self.pre = []; self.gaps = [[] for _ in range(36)]; self.mf = []; self.load = [0] * 36
    def put(self, gap, item):
        if isinstance(item, I): item = [item]
        self.gaps[gap].append(item); self.load[gap] += sum(i.cost for i in item)

def spread(slots_gaps, items, cap=2, even=False):
    items = [[x] if isinstance(x, I) else x for x in items]
    if not items: return
    level = cap
    while True:
        plan = []; k = 0
        free = [max(0, level - s.load[g]) for s, g in slots_gaps]
        tot_free = sum(free); tot_it = sum(sum(i.cost for i in it) for it in items)
        used = 0; seen_free = 0
        for n, (s, g) in enumerate(slots_gaps):
            ld = s.load[g]; seen_free += free[n]
            while k < len(items):
                c = sum(i.cost for i in items[k])
                if ld + c > level and not (ld == 0 and c > level): break
                if even and tot_free > tot_it and (used + c) * tot_free > seen_free * tot_it + tot_free: break
                plan.append((s, g, items[k])); ld += c; k += 1; used += c
        if k == len(items): break
        if even: even = False
        else: level += 1
    for s, g, it in plan: s.put(g, it)

def frag_reads(sl, j):
    d = aF + (j % 6) * 4
    tag = ('f', sl.idx, j)
    buf = sl.idx % NBUF
    hi = buf >> 1; bo = (buf & 1) * SLOT
    if sl.typ == 'K':
        t, ks = divmod(j, 6)
        return [dsread('ds_read_b128', A(d, 4), V(v_k + hi * 2 + (ks & 1)), bo + t * 6144 + (ks >> 1) * 128, tag)]
    if sl.typ in ('V', 'Q'):
        off = bo + (j >> 2) * 128; a = V(v_v + hi * 4 + (j & 3))
        return [dsread('ds_read_b64_tr_b16', A(d, 2), a, off, tag), dsread('ds_read_b64_tr_b16', A(d + 2, 2), a, off + 6144, tag)]
    if sl.typ == 'P':
        u, nt = divmod(j, 2); a = V(v_p + hi * 2 + nt); off = bo + u * 4096
        return [dsread('ds_read_b64_tr_b16', A(d, 2), a, off, tag), dsread('ds_read_b64_tr_b16', A(d + 2, 2), a, off + 2048, tag)]

def x_reads(sl):
    return [dsread('ds_read_b128', V(vXF + (sl.j % 2) * 12 + qt * 4, 4), V(v_x + (sl.j & 1)),
                   ((sl.j >> 1) & 1) * XT + qt * 2048, ('x', sl.idx)) for qt in range(3)]

def wrapadd(reg, inc, lim, base):
    return [salu('s_add_u32', S(reg), S(reg), inc & 0xffffffff),
            [scmp('s_cmp_eq_u32', S(reg), S(lim)), salu('s_cselect_b32', S(reg), S(base), S(reg))]]
def bump(regs3, d): return [salu('s_add_u32', S(r), S(r), d & 0xffffffff) for r in regs3]

v_pw = 111
def prefill_loads(sl):
    srd, so = (sK, s_k) if sl.typ == 'K' else (sV, s_v)
    tag = ('pfl', sl.idx)
    it = [salu('s_add_u32', S(s_tmp2), S(so), 3072)]
    for j in range(6):
        it.append(bload(A(sl.pfreg + 4 * j, 4), V(v_dkv + j % 3), S(srd, 4), S(so if j < 3 else s_tmp2), 1024 * (j % 3), tag, OPT['kv']))
    it.append(salu('s_add_u32', S(so), S(so), 12288))
    return it
def prefill_writes(sl):
    buf = sl.idx % NBUF
    it = []
    a = v_pw
    if buf >= 2:
        a = v_t + 14; it.append(valu('v_add_u32', V(a), 2 * SLOT, V(v_pw)))
    for j in range(6):
        w = dswrite('ds_write_b128', V(a), A(sl.pfreg + 4 * j, 4), (buf & 1) * SLOT + 1024 * j, ('d', sl.idx))
        if j == 0: w.need = [('pfl', sl.idx)]
        it.append(w)
    return it
def dma_items(sl):
    if getattr(sl, 'pfreg', None) is not None: return prefill_writes(sl)
    tag = ('d', sl.idx)
    if sl.typ == 'K': srd, so, vo, dl = sK, s_k, v_dkv, 3072; upd = [salu('s_add_u32', S(s_k), S(s_k), 12288)]
    elif sl.typ == 'V': srd, so, vo, dl = sV, s_v, v_dkv, 3072; upd = [salu('s_add_u32', S(s_v), S(s_v), 12288)]
    elif sl.typ == 'Q':
        srd, so, vo, dl = sWQ, s_wq, v_dwq, 16 * 12288
        upd = wrapadd(s_wq, 32 * 12288, s_wql, s_wqb) if sl.j % 2 else [salu('s_add_u32', S(s_wq), S(s_wq), 32 * 12288)]
        if sl.j == 19: upd += bump((s_wq, s_wqb, s_wql), 384)
        if sl.j == 19 and sl.rnd == 0 and not OPT['rotq0']: upd.append(salu('s_add_u32', S(s_wq), S(s_wq), S(s_rq)))
    elif sl.typ == 'P':
        srd, so, vo, dl = sWO, s_wo, v_dwx, 24 * 1280
        incs = [2 * H, 128 - 2 * H] if sl.nh == 2 else [2 * H, -H, 2 * H, 128 - 3 * H]
        if sl.hh < sl.nh - 1: upd = [salu('s_add_u32', S(s_wo), S(s_wo), incs[sl.hh] & 0xffffffff)]
        else:
            upd = wrapadd(s_wo, incs[sl.hh], s_wol, s_wob)
            if sl.ch == 9 and sl.rnd == 0: upd += bump((s_wo, s_wob, s_wol), H)
    fl = OPT['kv'] if sl.typ in 'KV' else OPT[('wq' if sl.typ == 'Q' else 'wo') + str(sl.rnd)]
    if sl.typ == 'Q' and sl.j < 2 * OPT['ntp']: fl = ' nt'
    if sl.typ == 'P' and sl.ch < OPT['ntp']: fl = ' nt'
    srd = S(srd, 4); lb = (sl.idx % NBUF) * SLOT
    it = [salu('s_add_u32', 'm0', S(s_w6144), lb), salu('s_add_u32', S(s_tmp), S(so), dl)]
    it += [dma(V(vo + k), srd, S(so), 1024 * k, tag, fl) for k in range(3)]
    it += [salu('s_add_u32', 'm0', 'm0', 3072)] + upd[:1]
    it += [dma(V(vo + k), srd, S(s_tmp), 1024 * k, tag, fl) for k in range(3)]
    it += upd[1:]
    return it

def x_items(sl):
    fl = OPT['x' + str(sl.rnd)]
    it = []
    for h in range(2):
        xt = ('xd', sl.xq, h if OPT['xtag'] else 1)
        it.append(salu('s_add_u32', 'm0', S(s_xwr), h * XT))
        if h == 1: it.append(salu('s_xor_b32', S(s_xwr), S(s_xwr), XTOG))
        it += [dma(V(v_dwx + k), S(sX, 4), S(s_x), 1024 * k, xt, fl) for k in range(3)]
        it += wrapadd(s_x, 128, s_xl, s_xb)
    if sl.j == 16 and sl.rnd == 0 and not OPT['rotq0']: it.append(salu('s_add_u32', S(s_x), S(s_x), S(s_rx)))
    return it

def build_mfmas(sl):
    mf = []
    wp = OPT['wper']
    for j in range(12):
        a = A(aF + (j % 6) * 4, 4)
        need = []
        if j % wp == 0: need = [('f', sl.idx, j + k) for k in range(wp)]
        if j == 0 and sl.typ == 'Q': need.append(('x', sl.idx))
        for qi in range(3):
            qt = 2 - qi if (OPT['snake'] and j % 2) else qi
            if sl.typ == 'K':
                t, ks = divmod(j, 6); SB[0] = (sl.i & 1) if sl.pipe else 0
                d = V(Sreg(t, qt), 4); b = A(aQ + (ks * 3 + qt) * 4, 4); c = 0 if ks == 0 else d
            elif sl.typ == 'V':
                d = V(Oreg(j, qt), 4); b = V(vP + qt * 4, 4); c = 0 if sl.first else d
            elif sl.typ == 'Q':
                d = A(aQN + (j * 3 + qt) * 4, 4) if sl.accA else V(Oreg(j, qt), 4)
                b = V(vXF + (sl.j % 2) * 12 + qt * 4, 4); c = 0 if sl.j == 0 else d
            elif sl.typ == 'P':
                u, nt = divmod(j, 2); hh = sl.hh; ch = sl.ch
                d = V(vACC[ch % 2] + (nt * 3 + qt) * 4, 4)
                if sl.nh == 4 and hh < 2: b = A(aQN + hh * 72 + (u * 3 + qt) * 4, 4)
                else: b = V(vO + (hh % 2) * 72 + (u * 3 + qt) * 4, 4)
                c = 0 if (hh == 0 and u == 0 and (sl.rnd == 0 or sl.nh == 4)) else d
            mf.append(mfma(d, a, b, c, need=need if qi == 0 else ()))
    sl.mf = mf

def xrow(v, tmp, op):
    return [valu('v_mov_b32', V(tmp), V(v)), perm('v_permlane32_swap_b32', V(v), V(tmp)), valu(op, V(v), V(v), V(tmp)),
            valu('v_mov_b32', V(tmp), V(v)), perm('v_permlane16_swap_b32', V(v), V(tmp)), valu(op, V(v), V(v), V(tmp))]

def interleave(*lists):
    out = []
    for k in range(max(len(l) for l in lists)):
        for l in lists:
            if k < len(l): out.append(l[k])
    return out

def max8(x, vals):
    return [valu('v_max3_f32', V(x), V(vals[0]), V(vals[1]), V(vals[2])), valu('v_max3_f32', V(x), V(x), V(vals[3]), V(vals[4])),
            valu('v_max3_f32', V(x), V(x), V(vals[5]), V(vals[6])), valu('v_max_f32', V(x), V(x), V(vals[7]))]

def softmax_init():
    ch = []
    for qt in range(3):
        x = v_m + qt
        c = max8(x, [Sreg(t, qt) + r for t in range(2) for r in range(4)]) + xrow(x, v_t + qt, 'v_max_f32')
        c += [valu('v_mul_f32', V(x), S(s_c), V(x)), valu('v_mov_b32', V(v_l + qt), 0)]
        ch.append(c)
    return interleave(*ch)

def sm_fma(t):
    return [valu('v_fma_f32', V(Sreg(t, qt) + r), V(Sreg(t, qt) + r), S(s_c), '-' + V(v_m + qt)) for qt in range(3) for r in range(4)]
def sm_max(t):
    vals = [Sbase() + t * 12 + i for i in range(12)]
    x = v_t + 3
    if t == 0:
        o = [valu('v_max3_f32', V(x), V(vals[0]), V(vals[1]), V(vals[2]))]
        for i in range(3, 11, 2): o.append(valu('v_max3_f32', V(x), V(x), V(vals[i]), V(vals[i + 1])))
        o.append(valu('v_max_f32', V(x), V(x), V(vals[11])))
        return o
    return [valu('v_max3_f32', V(x), V(x), V(vals[i]), V(vals[i + 1])) for i in range(0, 12, 2)]
def sm_fmamax(t):
    f = sm_fma(t); m = sm_max(t)
    o = f[:4]; k = 0
    for i in range(4, 12, 2): o += f[i:i + 2] + [m[k]]; k += 1
    return o + m[k:]
def sm_check():
    return [[vcmp('v_cmp_lt_f32', 0x41000000, V(v_t + 3)),
             raw('s_cbranch_vccnz {L}_r', 'branch', ['vcc']), raw('{L}_b:', 'label'),
             raw('{L}_r:\ns_call_b64 s[%d:%d], L_rare_%d\ns_branch {L}_b' % (s_ret, s_ret + 1, SB[0]), 'stub')]]
def sm_exp():
    o = []
    order = [(t, r) for t in range(2) for r in range(4)]
    for k, (t, r) in enumerate(order):
        for qt in range(3): o.append(valu('v_exp_f32', V(Sreg(t, qt) + r), V(Sreg(t, qt) + r)))
        if k >= 1:
            pt, pr = order[k - 1]
            for qt in range(3): o.append(valu('v_add_f32', V(v_l + qt), V(v_l + qt), V(Sreg(pt, qt) + pr)))
            if pr % 2 == 1:
                for qt in range(3):
                    o.append(valu('v_cvt_pk_bf16_f32', V(vP + qt * 4 + pt * 2 + pr // 2), V(Sreg(pt, qt) + pr - 1), V(Sreg(pt, qt) + pr)))
    for qt in range(3): o.append(valu('v_cvt_pk_bf16_f32', V(vP + qt * 4 + 3), V(Sreg(1, qt) + 2), V(Sreg(1, qt) + 3)))
    tail = [valu('v_add_f32', V(v_l + qt), V(v_l + qt), V(Sreg(1, qt) + 3)) for qt in range(3)]
    return o, tail

def rare_path(name, sb):
    SB[0] = sb
    ch = []
    for qt in range(3):
        vals = [Sreg(t, qt) + r for t in range(2) for r in range(4)]
        x = v_t + 4 + qt; f = v_t + 7 + qt
        c = max8(x, vals) + xrow(x, v_t + qt, 'v_max_f32')
        c += [valu('v_max_f32', V(x), 0, V(x)), valu('v_add_f32', V(v_m + qt), V(v_m + qt), V(x)),
              valu('v_sub_f32', V(f), 0, V(x)), valu('v_exp_f32', V(f), V(f))]
        c += [valu('v_sub_f32', V(s), V(s), V(x)) for s in vals]
        c += [valu('v_mul_f32', V(v_l + qt), V(v_l + qt), V(f))]
        c += [valu('v_mul_f32', V(Oreg(dt, qt) + r), V(Oreg(dt, qt) + r), V(f)) for dt in range(12) for r in range(4)]
        ch.append(c)
    p, _ = fix_hazards([nop(7)] + interleave(*ch) + [nop(3)])
    return [name + ":"] + [i.t for i in p] + [f"s_setpc_b64 s[{s_ret}:{s_ret+1}]"]

def q_convert_u(u, dest):
    T = [vS + (u % 2) * 12 + 4 * qt for qt in range(3)]
    out = []
    for qt in range(3):
        for h in range(2):
            for k in range(2):
                s0 = Oreg(2 * u + h, qt) + 2 * k
                out.append(valu('v_cvt_pk_bf16_f32', V(T[qt] + h * 2 + k), V(s0), V(s0 + 1)))
    for op in ('v_permlane32_swap_b32', 'v_permlane16_swap_b32'):
        for qt in range(3):
            for k in range(2): out.append(perm(op, V(T[qt] + k), V(T[qt] + 2 + k)))
    for qt in range(3):
        for k in range(4): out.append(valu('v_accvgpr_write_b32', A(dest + (u * 3 + qt) * 4 + k), V(T[qt] + k)))
    return out

def q_convert_a(u):
    T = [vS + 12 + 4 * qt for qt in range(3)]
    rd = []; out = []
    for qt in range(3):
        for h in range(2):
            for k in range(2):
                s0 = vXF + (qt * 4 + h * 2 + k) * 2; a0 = aQN + ((2 * u + h) * 3 + qt) * 4 + 2 * k
                rd += [valu('v_accvgpr_read_b32', V(s0), A(a0)), valu('v_accvgpr_read_b32', V(s0 + 1), A(a0 + 1))]
                out.append(valu('v_cvt_pk_bf16_f32', V(T[qt] + h * 2 + k), V(s0), V(s0 + 1)))
    for op in ('v_permlane32_swap_b32', 'v_permlane16_swap_b32'):
        for qt in range(3):
            for k in range(2): out.append(perm(op, V(T[qt] + k), V(T[qt] + 2 + k)))
    for qt in range(3):
        for k in range(4): out.append(valu('v_accvgpr_write_b32', A(aQ + (u * 3 + qt) * 4 + k), V(T[qt] + k)))
    return rd + out

RL = 30
def e_head():
    out = interleave(*[xrow(v_l + qt, v_t + qt, 'v_add_f32') + [valu('v_rcp_f32', V(RL + 2 * qt), V(v_l + qt)),
                       valu('v_mov_b32', V(RL + 1 + 2 * qt), V(RL + 2 * qt))] for qt in range(3)])
    out += [valu('v_add_u32', V(36), S(s_ew), V(v_l16)), valu('v_add_u32', V(37), S(s_er0), V(v_l16)),
            valu('v_add_u32', V(38), S(s_er1), V(v_l16))]
    return out
def e_pack(u, eid, packed):
    T = vS + (u % 2) * 12
    o = []
    for qt in range(3):
        for h in range(2):
            s = Oreg(2 * u + h, qt)
            if packed:
                o += [valu('v_pk_mul_f32', V(s + 2 * k, 2), V(s + 2 * k, 2), V(RL + 2 * qt, 2)) for k in range(2)]
            else:
                o += [valu('v_mul_f32', V(s + k), V(s + k), V(RL + 2 * qt)) for k in range(4)]
    for qt in range(3):
        for h in range(2):
            s = Oreg(2 * u + h, qt)
            for k in range(2):
                o.append(valu('v_cvt_pk_bf16_f32', V(T + qt * 4 + h * 2 + k), V(s + 2 * k), V(s + 2 * k + 1)))
        o.append(dswrite('ds_write_b128', V(36), V(T + qt * 4, 4), (u * 3 + qt) * 1024, ('ew', eid)))
    return o
def e_reads(eid, toA):
    out = []
    for hh in range(2):
        for f in range(18):
            dst = A(aQN + hh * 72 + f * 4, 4) if toA else V(vO + hh * 72 + f * 4, 4)
            out.append(dsread('ds_read_b128', dst, V(37 + hh), f * 1024, ('er', eid, hh, f)))
    return out

def flush_held(ch):
    o = [bstore(A(aQ + ch * 12 + qt * 4, 4), V(v_l16), S(sWS, 4), S(s_ew), qt * 1024, ('st', ch), OPT['st']) for qt in range(3)]
    return o + wrapadd(s_ew, 12288, s_ptl, s_ptb)
def chunk_end(ch, store, held=False):
    acc = vACC[ch % 2]
    if held:
        o = chunk_end(ch, False)
        o = o[:12] + [valu('v_accvgpr_write_b32', A(aQ + ch * 12 + i), V(vP + i)) for i in range(12)]
        if ch == 0: o.append(salu('s_mov_b32', S(s_ew), S(s_pt)))
        return o + wrapadd(s_pt, 12288, s_ptl, s_ptb)
    o = []
    for qt in range(3):
        for nt in range(2):
            for k in range(2):
                s = acc + (nt * 3 + qt) * 4 + 2 * k
                o.append(valu('v_cvt_pk_bf16_f32', V(vP + qt * 4 + nt * 2 + k), V(s), V(s + 1)))
        if store:
            o.append(bstore(V(vP + qt * 4, 4), V(v_l16), S(sWS, 4), S(s_pt), qt * 1024, ('st', ch), OPT['st']))
    if not store: o += [valu('v_accvgpr_write_b32', A(aRES + ch * 12 + i), V(vP + i)) for i in range(12)]
    else: o += wrapadd(s_pt, 12288, s_ptl, s_ptb)
    return o

def chunk_init_valu(ch):
    acc = vACC[ch % 2]
    o = []
    for qt in range(3):
        for nt in range(2):
            for k in range(2):
                d = acc + (nt * 3 + qt) * 4 + 2 * k
                o.append(valu('v_accvgpr_read_b32', V(d + 1), A(aRES + ch * 12 + qt * 4 + nt * 2 + k)))
                o.append(valu('v_lshlrev_b32', V(d), 16, V(d + 1)))
                o.append(valu('v_and_b32', V(d + 1), 0xffff0000, V(d + 1)))
    return o
def chunk_init(ch):
    acc = vACC[ch % 2]
    return [mfma(V(acc + (nt * 3 + qt) * 4, 4), A(aE1 if nt else aE0, 4), A(aRES + ch * 12 + qt * 4, 4), 0)
            for nt in range(2) for qt in range(3)]

def stamp(n): return [raw(f"{'s_memtime' if OPT['cyc'] == 1 else 's_memrealtime'} s[{s_stamp+2*n}:{s_stamp+2*n+1}]", 'smem')]

def prologue():
    P = []; a = P.append
    T = s_t0
    a(salu('s_and_b32', S(T), 's2', 7)); a(salu('s_lshr_b32', S(T + 1), 's2', 3))
    a(salu('s_lshr_b32', S(T + 2), S(T), 2))
    a(salu('s_mul_i32', S(T + 2), S(T + 2), 40))
    a(salu('s_add_u32', S(T + 4), 's0', S(T + 2))); a(salu('s_addc_u32', S(T + 5), 's1', 0))
    a(raw(f"s_load_dwordx8 s[68:75], s[{T+4}:{T+5}], 0", 'smem'))
    a(raw(f"s_load_dwordx2 s[76:77], s[{T+4}:{T+5}], 32", 'smem'))
    a(raw("s_load_dwordx2 s[78:79], s[0:1], 96", 'smem'))
    a(salu('s_and_b32', S(T), S(T), 3)); a(salu('s_lshl_b32', S(T), S(T), 1))
    a(salu('s_and_b32', S(T + 3), S(T + 1), 1)); a(salu('s_or_b32', S(s_hq), S(T), S(T + 3)))
    a(salu('s_lshr_b32', S(T + 1), S(T + 1), 1))
    a(valu('v_lshrrev_b32', V(v_t), 6, 'v0'))
    a(nop(0))
    a(raw(f"v_readfirstlane_b32 s{s_w}, v{v_t}", 'valu', [f'v{v_t}'], [f's{s_w}']))
    lane, n16, g, tmp, tmp2, row, sw = range(v_t, v_t + 7)
    a(valu('v_and_b32', V(lane), 63, 'v0'))
    a(valu('v_lshlrev_b32', V(v_l16), 4, V(lane)))
    W = s_w; Pp = T + 7; QH = T + 8; HQ = s_hq; B = T + 1; ROT = T + 2
    def swz(dst, r): a(valu('v_and_b32', V(dst), 6, V(r)))
    a(valu('v_lshrrev_b32', V(row), 3, V(lane)))
    swz(sw, row)
    a(valu('v_and_b32', V(tmp), 7, V(lane))); a(valu('v_xor_b32', V(tmp), V(tmp), V(sw)))
    a(valu('v_lshlrev_b32', V(tmp), 4, V(tmp)))
    a(valu('v_mul_u32_u24', V(row), 1280, V(row)))
    a(valu('v_add_u32', V(v_dwx), V(tmp), V(row)))
    a(valu('v_add_u32', V(v_dwx + 1), 8 * 1280 - 1024, V(v_dwx)))
    a(valu('v_add_u32', V(v_dwx + 2), 2 * (8 * 1280 - 1024), V(v_dwx)))
    a(salu('s_mov_b32', S(s_tmp), 0xAAAAAAB))
    for j in range(3):
        a(valu('v_add_u32', V(tmp), 64 * j, V(lane)))
        a(valu('v_mul_hi_u32', V(row), V(tmp), S(s_tmp)))
        swz(sw, row)
        a(valu('v_lshlrev_b32', V(sw), 4, V(sw)))
        a(valu('v_xor_b32', V(v_dkv + j), V(v_l16), V(sw)))
        a(valu('v_mul_u32_u24', V(tmp2), 24, V(row))); a(valu('v_sub_u32', V(tmp), V(tmp), V(tmp2)))
        a(valu('v_lshlrev_b32', V(tmp), 4, V(tmp))); a(valu('v_xor_b32', V(tmp), V(tmp), V(sw)))
        a(valu('v_lshrrev_b32', V(tmp2), 2, V(row))); a(valu('v_lshl_add_u32', V(row), V(tmp2), 2, V(row)))
        a(valu('v_mul_u32_u24', V(row), 12288, V(row)))
        a(valu('v_add_u32', V(tmp), V(tmp), V(row)))
        a(valu('v_subrev_u32', V(v_dwq + j), 1024 * j, V(tmp)))
    a(salu('s_lshr_b32', S(Pp), S(W), 1)); a(salu('s_and_b32', S(QH), S(W), 1))
    a(salu('s_mul_i32', S(s_w6144), S(W), 6144))
    a(salu('s_lshl_b32', S(T + 3), S(HQ), 2)); a(salu('s_lshl_b32', S(T + 9), S(Pp), 1))
    a(salu('s_add_u32', S(T + 9), S(T + 9), S(T + 3)))
    a(salu('s_mul_i32', S(ROT), S(B), 5 * OPT['rot'])); a(salu('s_lshr_b32', S(ROT), S(ROT), 3))
    if OPT['rot2']:
        a(salu('s_and_b32', S(s_tmp), S(HQ), 1)); a(salu('s_mul_i32', S(s_tmp), S(s_tmp), 5))
        a(salu('s_add_u32', S(ROT), S(ROT), S(s_tmp)))
        a(scmp('s_cmp_ge_u32', S(ROT), 10)); a(salu('s_cselect_b32', S(s_tmp), 10, 0)); a(salu('s_sub_u32', S(ROT), S(ROT), S(s_tmp)))
    a(salu('s_mul_i32', S(s_wqb), S(T + 9), 384)); a(salu('s_mul_i32', S(s_tmp), S(QH), 4 * 12288))
    a(salu('s_add_u32', S(s_wqb), S(s_wqb), S(s_tmp)))
    a(salu('s_add_u32', S(s_wql), S(s_wqb), 640 * 12288))
    a(salu('s_mul_i32', S(s_rq), S(ROT), 64 * 12288))
    if OPT['rotq0']: a(salu('s_add_u32', S(s_wq), S(s_wqb), S(s_rq)))
    else: a(salu('s_mov_b32', S(s_wq), S(s_wqb)))
    a(salu('s_mul_i32', S(s_xb), S(B), 96)); a(salu('s_mul_i32', S(s_tmp), S(W), 24))
    a(salu('s_add_u32', S(s_xb), S(s_xb), S(s_tmp))); a(salu('s_mul_i32', S(s_xb), S(s_xb), 1280))
    a(salu('s_add_u32', S(s_xl), S(s_xb), 1280))
    a(salu('s_lshl_b32', S(T + 6), S(ROT), 7)); a(salu('s_mov_b32', S(s_rx), S(T + 6)))
    if OPT['rotq0']: a(salu('s_add_u32', S(s_x), S(s_xb), S(T + 6)))
    else: a(salu('s_mov_b32', S(s_x), S(s_xb)))
    a(salu('s_mul_i32', S(s_tmp), S(W), 3072)); a(salu('s_add_u32', S(s_xwr), S(s_tmp), XA))
    a(raw("s_waitcnt lgkmcnt(0)", 'wait'))
    for srd, p, n in ((sX, 68, 1966080), (sWQ, 74, 7864320)):
        a(salu('s_mov_b32', S(srd), S(p))); a(salu('s_mov_b32', S(srd + 1), S(p + 1)))
        a(salu('s_mov_b32', S(srd + 2), n)); a(salu('s_mov_b32', S(srd + 3), 0x20000))
    P2 = []; a = P2.append
    if OPT['cpf'] == 1:
        a(salu('s_lshr_b32', S(T), 's2', 3)); a(salu('s_lshl_b32', S(T), S(T), 2)); a(salu('s_add_u32', S(T), S(T), S(W)))
        a(salu('s_lshl_b32', S(T), S(T), 4))
        a(valu('v_and_b32', V(tmp), 15, V(lane))); a(valu('v_add_u32', V(tmp), S(T), V(tmp)))
        a(valu('v_lshlrev_b32', V(tmp), 7, V(tmp)))
        a(raw(f"v_min_u32 v{tmp}, L_code_end-L_go-4, v{tmp}", 'valu', [f'v{tmp}'], [f'v{tmp}']))
        a(I(f"global_load_dword v{v_t+10}, v{tmp}, s[{s_ret}:{s_ret+1}]", 'vload', [f'v{tmp}', f's{s_ret}', f's{s_ret+1}'], [f'v{v_t+10}'], tag=('cpf',)))
    for srd, p, n in ((sK, 70, 100663296), (sV, 72, 100663296), (sWO, 76, 7864320), (sWS, 78, 438042624)):
        a(salu('s_mov_b32', S(srd), S(p))); a(salu('s_mov_b32', S(srd + 1), S(p + 1)))
        a(salu('s_mov_b32', S(srd + 2), n)); a(salu('s_mov_b32', S(srd + 3), 0x20000))
    a(valu('v_and_b32', V(n16), 15, V(lane))); a(valu('v_lshrrev_b32', V(g), 4, V(lane)))
    a(salu('s_bfe_u32', S(T), 's2', 0x10002)); a(salu('s_lshl_b32', S(T), S(T), 4)); a(salu('s_add_u32', S(T), S(T), S(B)))
    a(salu('s_lshl_b32', S(T), S(T), 7)); a(salu('s_add_u32', S(T), S(T), FLAG_OFF))
    a(valu('v_and_b32', V(v_fa), 7, V(lane))); a(valu('v_lshl_add_u32', V(v_fa), V(v_fa), 2, S(T)))
    a(bload(V(v_fl), V(v_fa), S(sWS, 4), 0, 0, ('fl',), ' sc1', op='buffer_load_dword'))
    a(salu('s_lshl_b32', S(s_k), S(B), 5)); a(salu('s_add_u32', S(s_k), S(s_k), S(T + 9)))
    a(salu('s_mul_i32', S(s_k), S(s_k), 196608))
    a(salu('s_mul_i32', S(s_cnt), S(QH), 6144)); a(salu('s_add_u32', S(s_k), S(s_k), S(s_cnt)))
    a(salu('s_mov_b32', S(s_v), S(s_k)))
    a(salu('s_mul_i32', S(s_wob), S(T + 3), 192)); a(salu('s_mul_i32', S(s_wol), S(W), 48))
    a(salu('s_add_u32', S(s_wob), S(s_wob), S(s_wol))); a(salu('s_mul_i32', S(s_wob), S(s_wob), 1280))
    a(salu('s_add_u32', S(s_wol), S(s_wob), 1280))
    a(salu('s_add_u32', S(s_wo), S(s_wob), S(T + 6)))
    a(salu('s_mul_i32', S(s_ptb), 's2', PART_WG)); a(salu('s_mul_i32', S(T), S(W), 3072))
    a(salu('s_add_u32', S(s_ptb), S(s_ptb), S(T))); a(salu('s_add_u32', S(s_ptl), S(s_ptb), PART_WG))
    a(salu('s_mul_i32', S(T), S(ROT), 12288)); a(salu('s_add_u32', S(s_pt), S(s_ptb), S(T)))
    c = (192 ** -0.5) * math.log2(math.e)
    a(salu('s_mov_b32', S(s_c), struct.unpack('<I', struct.pack('<f', c))[0]))
    a(salu('s_mul_i32', S(T), S(Pp), 12288))
    swz(sw, n16)
    a(valu('v_xor_b32', V(tmp), V(g), V(sw))); a(valu('v_lshlrev_b32', V(tmp), 4, V(tmp)))
    a(valu('v_mul_u32_u24', V(tmp2), 384, V(n16))); a(valu('v_add3_u32', V(v_k), V(tmp), V(tmp2), S(T)))
    a(valu('v_xor_b32', V(v_k + 1), 64, V(v_k)))
    a(valu('v_add_u32', V(v_k + 2), 2 * SLOT, V(v_k))); a(valu('v_add_u32', V(v_k + 3), 2 * SLOT, V(v_k + 1)))
    a(salu('s_add_u32', S(s_cnt), S(s_cnt), XA))
    a(valu('v_lshlrev_b32', V(tmp2), 7, V(n16))); a(valu('v_add3_u32', V(v_x), V(tmp), V(tmp2), S(s_cnt)))
    a(valu('v_xor_b32', V(v_x + 1), 64, V(v_x)))
    a(valu('v_lshrrev_b32', V(row), 2, V(lane)))
    swz(sw, row)
    a(valu('v_bfe_u32', V(tmp), V(lane), 1, 1))
    a(valu('v_xor_b32', V(tmp), V(tmp), V(sw))); a(valu('v_lshlrev_b32', V(tmp), 4, V(tmp)))
    a(valu('v_and_b32', V(tmp2), 1, V(lane))); a(valu('v_lshl_add_u32', V(tmp), V(tmp2), 3, V(tmp)))
    a(valu('v_mul_u32_u24', V(tmp2), 384, V(row))); a(valu('v_add3_u32', V(v_v), V(tmp), V(tmp2), S(T)))
    for j in (1, 2, 3): a(valu('v_xor_b32', V(v_v + j), j << 5, V(v_v)))
    for j in range(4): a(valu('v_add_u32', V(v_v + 4 + j), 2 * SLOT, V(v_v + j)))
    a(valu('v_lshl_add_u32', V(v_p), V(row), 7, V(tmp)))
    a(salu('s_lshl_b32', S(T), S(Pp), 6))
    a(valu('v_xor_b32', V(v_p), S(T), V(v_p))); a(valu('v_xor_b32', V(v_p + 1), 32, V(v_p)))
    for j in range(2): a(valu('v_add_u32', V(v_p + 2 + j), 2 * SLOT, V(v_p + j)))
    a(valu('v_lshrrev_b32', V(tmp), 2, V(n16)))
    a(vcmp('v_cmp_eq_u32', V(tmp), V(g)))
    a(valu('v_and_b32', V(tmp2), 1, V(n16))); a(valu('v_lshlrev_b32', V(tmp2), 4, V(tmp2)))
    a(salu('s_mov_b32', S(T), 0x3F80))
    a(valu('v_lshlrev_b32', V(tmp2), V(tmp2), S(T)))
    a(valu('v_cndmask_b32', V(tmp2), 0, V(tmp2)))
    a(valu('v_and_b32', V(tmp), 2, V(n16)))
    a(vcmp('v_cmp_eq_u32', 0, V(tmp)))
    a(valu('v_cndmask_b32', V(row), 0, V(tmp2)))
    a(valu('v_sub_u32', V(sw), V(tmp2), V(row)))
    for r in (240, 241, 244, 245): a(valu('v_accvgpr_write_b32', A(r), 0))
    a(valu('v_accvgpr_write_b32', A(242), V(row))); a(valu('v_accvgpr_write_b32', A(243), V(sw)))
    if OPT['pf']:
        a(salu('s_lshr_b32', S(T), 's2', 3)); a(salu('s_lshl_b32', S(T), S(T), 2))
        a(salu('s_and_b32', S(s_cnt), 's2', 3)); a(salu('s_add_u32', S(T), S(T), S(s_cnt)))
        a(salu('s_lshl_b32', S(T), S(T), 2)); a(salu('s_add_u32', S(T), S(T), S(W)))
        a(salu('s_mul_i32', S(s_cnt), S(T), 120))
        a(valu('v_add_u32', V(38), S(s_cnt), V(lane))); a(valu('v_lshlrev_b32', V(38), 7, V(38)))
        a(valu('v_add_u32', V(39), 8192, V(38)))
        a(salu('s_mul_i32', S(s_cnt), S(T), 60))
        a(valu('v_add_u32', V(tmp), S(s_cnt), V(lane)))
        a(salu('s_mov_b32', S(s_cnt), 0x5555556))
        a(valu('v_mul_hi_u32', V(row), V(tmp), S(s_cnt)))
        a(valu('v_mul_u32_u24', V(tmp2), 48, V(row))); a(valu('v_sub_u32', V(tmp), V(tmp), V(tmp2)))
        a(valu('v_mul_u32_u24', V(tmp2), 86, V(tmp))); a(valu('v_lshrrev_b32', V(tmp2), 8, V(tmp2)))
        a(valu('v_mul_u32_u24', V(row), 12288, V(row)))
        a(valu('v_lshl_add_u32', V(row), V(tmp), 7, V(row)))
        a(valu('v_mul_u32_u24', V(tmp2), 384, V(tmp2)))
        a(valu('v_add_u32', V(row), V(row), V(tmp2))); a(valu('v_add_u32', V(37), 384, V(row)))
    a(valu('v_add_u32', V(v_pw), S(s_w6144), V(v_l16)))
    a(salu('s_mul_i32', S(s_ew), S(W), EXW)); a(salu('s_add_u32', S(s_ew), S(s_ew), XA))
    a(scmp('s_cmp_eq_u32', S(W), 3)); a(salu('s_cselect_b32', S(s_ew), 3 * SLOT, S(s_ew)))
    a(salu('s_mul_i32', S(s_er0), S(QH), EXW)); a(salu('s_add_u32', S(s_er0), S(s_er0), XA))
    a(salu('s_mov_b32', S(s_er1), XA + 2 * EXW)); a(scmp('s_cmp_eq_u32', S(QH), 1)); a(salu('s_cselect_b32', S(s_er1), 3 * SLOT, S(s_er1)))
    return P, [x for x in P2 if x is not None]

def make_seq(kind):
    seq = []
    def Q(r, accA=False): return [Slot('Q', j=j, rnd=r, accA=accA) for j in range(20)]
    def Aa(r):
        if not (OPT['pipe'] and f'{kind[0]}{r}' in OPT['pipes']):
            return [Slot(t, i=i, rnd=r, first=(i == 0), pipe=False) for i in range(16) for t in 'KV']
        o = [('K', 0)]
        for i in range(15): o += [('K', i + 1), ('V', i)]
        o.append(('V', 15))
        return [Slot(t, i=i, rnd=r, first=(i == 0), pipe=True) for t, i in o]
    def Pp(r): return [Slot('P', j=j, rnd=r, nh=2, ch=j // 2, hh=j % 2) for j in range(20)]
    def P4(): return [Slot('P', j=j, rnd=1, nh=4, ch=j // 4, hh=j % 4) for j in range(40)]
    if kind == 'X': seq = Q(0) + Aa(0) + Pp(0) + Q(1) + Aa(1) + Pp(1)
    elif kind == 'W': seq = Q(0) + Q(1) + Aa(0) + Aa(1) + P4()
    elif kind == 'Y': seq = Q(0) + Q(1) + Aa(0) + Pp(0) + Aa(1) + Pp(1)
    elif kind == 'Z': seq = Q(0) + Aa(0) + Q(1) + Aa(1) + P4()
    elif kind in 'IJ':
        q1 = Q(1, True); seq = Q(0); k = 0
        for i in range(16):
            nq = int(OPT['jpat'].strip()[i])
            seq += [Slot('K', i=i, rnd=0, first=(i == 0), pipe=False)] + q1[k:k + nq] + [Slot('V', i=i, rnd=0, first=(i == 0), pipe=False)]
            k += nq
        assert k == 20
        seq += (Aa(1) + P4()) if kind == 'I' else (Pp(0) + Aa(1) + Pp(1))
    elif kind[0] in 'FG':
        k = int(kind[1:]); assert k % 2 == 0 and 2 <= k <= 14
        a0 = Aa(0)
        seq = Q(0) + a0[:2 * k] + Q(1, True) + a0[2 * k:]
        seq += (Aa(1) + P4()) if kind[0] == 'F' else (Pp(0) + Aa(1) + Pp(1))
    for n, s in enumerate(seq): s.idx = n
    q = -1
    for s in seq:
        if s.typ == 'Q':
            if s.j % 4 == 0: q += 1
            s.xq = q
    return seq

def flat(items):
    o = []
    for it in items: o += flat(it) if isinstance(it, list) else [it]
    return o

def build_main(kind, stamps, pro2):
    seq = make_seq(kind)
    N = len(seq)
    for s in seq: build_mfmas(s)
    pfplan = {}
    def plan_pf(first, count, regs, at):
        for k in range(count):
            seq[first + k].pfreg = regs[k]
            pfplan.setdefault(at + k * OPT['pfstep'], []).append(seq[first + k])
    if kind == 'J': plan_pf(20, OPT['pfx0'], [24 * k for k in range(6)], OPT['pfat'])
    if kind == 'W' and OPT['pfw1']: plan_pf(40, OPT['pfw1'], [72, 96, 120], OPT['pfat'])
    if kind == 'X':
        plan_pf(20, OPT['pfx0'], [24 * k for k in range(6)], OPT['pfat'])
        plan_pf(92, OPT['pfx1'], [144, 168, 192, 120], 54 + OPT['pfat'])
    if kind == 'W': plan_pf(40, OPT['pfw0'], [72, 96, 120], 20 + OPT['pfat'])
    head = flat(x_items(seq[0])[:6]) + flat(dma_items(seq[0]))
    head += pro2
    head.append(I('', 'split'))
    head += flat(dma_items(seq[1])) + flat(x_items(seq[0])[6:]) + flat(dma_items(seq[2]))
    head.append(barrier(need=[('d', 0), ('xd', 0, 0 if OPT['xtag'] else 1)]))
    head += x_reads(seq[0])
    for j in range(5): head += frag_reads(seq[0], j)
    nstamp = 0
    fine = stamps and OPT['sp0'] >= 0
    if stamps: head = ([] if OPT['st0'] else stamp(0)) + [raw("s_memtime s[96:97]", 'smem')] + head + stamp(1); nstamp = 2
    post = []
    if fine:
        stamps = False
        for k in range(5 if OPT['cyc'] == 2 else 11):
            if OPT['sp0'] + k * OPT['spd'] < N:
                if OPT['cyc'] == 2:
                    seq[OPT['sp0'] + k * OPT['spd']].put(0, [raw(f"s_memrealtime s[{s_stamp+2*nstamp}:{s_stamp+2*nstamp+1}]", 'smem'),
                                                             raw(f"s_memtime s[{s_stamp+2*nstamp+2}:{s_stamp+2*nstamp+3}]", 'smem')]); nstamp += 2
                else:
                    seq[OPT['sp0'] + k * OPT['spd']].put(0, stamp(nstamp)); nstamp += 1
    if OPT['pf']:
        for k, (vr, srd) in enumerate(((37, sWQ), (38, sWO), (39, sWO))):
            seq[OPT['pfs'] + k * OPT['pfd']].put(21, bload(V(111), V(vr), S(srd, 4), 0, 0, ('pf', k), '', op='buffer_load_dword'))
    wp = OPT['wper']
    for n, s in enumerate(seq):
        nx = seq[n + 1] if n + 1 < N else None
        pv = seq[n - 1] if n else None
        for j in range(wp, 9, wp): s.load[3 * j - 1] += 1
        s.load[35] += 1
        for j in range(5, 12):
            for k, r in enumerate(frag_reads(s, j)): s.put(3 * (j - 5) + k, r)
        if nx is not None:
            need = [('f', s.idx, 11), ('d', nx.idx)] + ([('xd', nx.xq, (nx.j % 4) // 2 if OPT['xtag'] else 1)] if nx.typ == 'Q' and nx.j % 2 == 0 else [])
            s.put(26, barrier(need=need)); s.load[26] += 1
            if nx.typ == 'Q' and nx.j % 4 == 0 and nx.idx > 0:
                s.put(24, valu('v_xor_b32', V(v_x), XTOG, V(v_x))); s.put(25, valu('v_xor_b32', V(v_x + 1), XTOG, V(v_x + 1)))
            rr = [frag_reads(nx, j) for j in range(5)]
            xr = x_reads(nx) if nx.typ == 'Q' else []
            if s.typ == 'K' and s.pipe and xr: nx.pre += xr; xr = []
            spread([(s, g) for g in range(27, 32)], flat(rr[0] + xr[:1] + rr[1] + xr[1:] + rr[2]))
            spread([(s, g) for g in range(30, 34)], rr[3])
            spread([(s, g) for g in range(32, 36)], rr[4])
        its = dma_items(seq[n + LEAD]) if n + LEAD < N else []
        if n + 4 < N and seq[n + 4].typ == 'Q' and seq[n + 4].j % 4 == 0: its = its + x_items(seq[n + 4])[:6]
        if n + 3 < N and n >= 1 and seq[n + 3].typ == 'Q' and seq[n + 3].j % 4 == 0: its = its + x_items(seq[n + 3])[6:]
        for p in pfplan.get(n, []): its = its + prefill_loads(p)
        s.dma = its
        s.early = bool(s.typ == 'V' and OPT['early'] and its and not s.pipe and pv.typ == 'K')
    for n, s in enumerate(seq):
        nx = seq[n + 1] if n + 1 < N else None
        pv = seq[n - 1] if n else None
        if OPT['edef'] and pv is not None and pv.typ == 'V' and pv.i == 15:
            spread([(s, g) for g in range(27, 36)], s.dma[:4]); nx.dma = s.dma[4:] + nx.dma
        elif not s.early: spread([(s, g) for g in range(0, OPT['dend'])], s.dma, even=True)
        if s.typ == 'K' and stamps and s.i == 8 and not (kind[0] in 'FG' and s.rnd == 0): s.pre = stamp(nstamp) + s.pre; nstamp += 1
        if s.typ in 'KV' and s.pipe:
            if s.typ == 'K' and s.i == 0:
                SB[0] = 0
                nx.pre += softmax_init() + sm_fma(0) + sm_fma(1)
            elif s.typ == 'K':
                SB[0] = (s.i - 1) & 1
                ex, tail = sm_exp()
                spread([(s, g) for g in range(0, 35)], ex + tail)
            elif s.i < 15:
                SB[0] = (s.i + 1) & 1
                spread([(s, g) for g in range(3, 36)], sm_fmamax(0) + sm_fmamax(1), even=True)
                nx.pre += sm_check()
                if s.i == 14:
                    ex, tail = sm_exp()
                    nx.pre += ex
                    spread([(nx, g) for g in range(0, 6)], tail)
        elif s.typ == 'K':
            SB[0] = 0
            ex, tail = sm_exp()
            if s.first: rest = softmax_init() + sm_fma(0) + sm_fma(1) + ex
            else:
                spread([(s, g) for g in range(20, 36)], sm_fmamax(0))
                rest = sm_fmamax(1) + sm_check() + ex
            if nx.typ == 'Q':
                ws = []; k2 = n + 1
                while seq[k2].typ == 'Q': ws.append(seq[k2]); k2 += 1
                for w_ in ws:
                    spread([(w_, g) for g in range(0, OPT['dend'])], w_.dma, even=True); w_.dma = []
                spread([(w_, g) for w_ in ws for g in range(36)][3:-2], rest + tail)
                continue
            if nx.early:
                d = list(nx.dma); o = d[:2]; d = d[2:]
                step = max(1, len(rest) // (len(d) + 1))
                for k2, it in enumerate(rest):
                    o.append(it)
                    if k2 % step == step - 1 and d: o.append(d.pop(0))
                rest = o + d
            nx.pre += rest
            spread([(nx, g) for g in range(0, 6)], tail)
        if s.typ == 'Q' and s.accA and stamps and s.j in (0, 19) and kind not in 'IJ':
            if s.j == 0: s.pre += stamp(nstamp)
            else: nx.pre = stamp(nstamp) + nx.pre
            nstamp += 1
        if s.typ == 'Q' and s.j == 19 and not s.accA:
            dest = aQN if (kind in 'WY' and s.rnd == 1) else aQ
            cv = [q_convert_u(u, dest) for u in range(6)]
            k0 = 0
            if OPT['ovl']:
                spread([(s, g) for g in range(9, 20)], cv[0]); spread([(s, g) for g in range(20, 36)], cv[1]); k0 = 2
            nx.pre = flat(cv[k0:]) + nx.pre
            if stamps: nx.pre = nx.pre + stamp(nstamp); nstamp += 1
        if s.typ == 'V' and s.i == 15:
            pre = []
            if stamps: pre += stamp(nstamp); nstamp += 1
            toA = (kind[0] in 'WZFI' and s.rnd == 0)
            if kind in 'WY' and s.rnd == 0: pre += [valu('v_accvgpr_mov_b32', A(aQ + k), A(aQN + k)) for k in range(72)]
            k0 = 0
            if OPT['ovl']:
                spread([(s, g) for g in range(6, 14)], e_head())
                spread([(s, g) for g in range(14, 36)], [i for i in e_pack(0, s.rnd, False) if i.k != 'ds'], cap=2)
                pre += [i for i in e_pack(0, s.rnd, False) if i.k == 'ds']
                k0 = 1
            else: pre += e_head()
            if kind[0] in 'FGIJ' and s.rnd == 0:
                for u in range(6): pre += q_convert_a(u)
            for u in range(k0, 6): pre += e_pack(u, s.rnd, True)
            pre.append(barrier(need=[('ew', s.rnd)]))
            er = e_reads(s.rnd, toA)
            if OPT['edef']:
                nfirst = 0 if toA else 6
                pre += er[:nfirst]
                spread([(nx, g) for g in range(0, 24)], er[nfirst:])
                for it in nx.gaps[26]:
                    if it[0].k == 'barrier': it[0].need.append(('er', s.rnd, 1, 17))
                if not toA:
                    for k2 in range(2):
                        ps = seq[n + 1 + (k2 if nx.nh == 2 else 2 + k2)]
                        for u in range(6): ps.mf[6 * u].need = list(ps.mf[6 * u].need) + [('er', s.rnd, k2, 3 * u + 2)]
            else:
                pre += er
                pre.append(barrier(need=[('er', s.rnd, 1, 17)]))
            if stamps: pre += stamp(nstamp); nstamp += 1
            nx.pre = pre + nx.pre
        if s.typ == 'P':
            if s.hh == 0 and s.rnd == 1 and s.nh == 2 and (s.ch < 2 or not OPT['vinit']): s.pre += chunk_init(s.ch)
            if s.hh == s.nh - 1:
                hold = OPT['hold'] if s.nh == 4 else 0
                ce = chunk_end(s.ch, s.rnd == 1, s.ch < hold)
                if s.nh == 4 and OPT['nost']: ce = [i for i in ce if not (isinstance(i, I) and i.k == 'vstore')]
                if s.ch >= hold > 0:
                    per = -(-hold // (10 - hold)); k0 = (s.ch - hold) * per
                    for c2 in range(k0, min(hold, k0 + per)): ce = ce + flush_held(c2)
                if s.ch == 9:
                    if stamps: ce = ce + stamp(nstamp); nstamp += 1
                    if nx is None: post += ce
                    else: nx.pre = ce + nx.pre
                else:
                    if s.rnd == 1 and s.nh == 2 and OPT['vinit'] and s.ch < 8:
                        ini = chunk_init_valu(s.ch + 2)
                        ce = ce[:15] + interleave(ce[15:], ini[:3]) + ini[3:]
                    spread([(seq[n + 1 + k], g) for k in range(s.nh) for g in range(36)][3:-3], ce, even=True)
    if OPT['fuse']:
        seq[-1].put(OPT['pollgap'], bload(V(v_poll), V(v_fa), S(sWS, 4), 0, 0, ('poll',), ' sc1', op='buffer_load_dword'))
        post.append(waitfor([('poll',)]))
    prog = list(head)
    for s in seq:
        prog.append(mark('m'))
        prog += flat(s.pre)
        for k in range(36):
            prog.append(s.mf[k]); prog += flat(s.gaps[k])
    prog.append(mark('m'))
    prog += flat(post)
    return prog, nstamp

def stamp_out(nstamp):
    o = ["s_waitcnt vmcnt(0) lgkmcnt(0)"]
    o.append(f"s_memrealtime s[{s_stamp+2*nstamp}:{s_stamp+2*nstamp+1}]")
    o.append(f"s_memtime s[98:99]")
    o.append("s_waitcnt lgkmcnt(0)")
    o.append(f"s_lshl_b32 s{s_tmp}, s2, 8")
    o.append(f"s_lshl_b32 s{s_cnt}, s{s_w}, 6")
    o.append(f"s_add_u32 s{s_tmp}, s{s_tmp}, s{s_cnt}")
    o.append(f"s_add_u32 s{s_tmp}, s{s_tmp}, {STAMP_OFF}")
    o.append("v_mov_b32 v1, 0")
    for n in range(nstamp + 1):
        o.append(f"v_mov_b32 v2, s{s_stamp+2*n}")
        o.append(f"buffer_store_dword v2, v1, s[{sWS}:{sWS+3}], s{s_tmp} offen offset:{4*n}")
    o.append(f"s_sub_u32 s{s_cnt}, s98, s96")
    o.append(f"v_mov_b32 v2, s{s_cnt}")
    o.append(f"buffer_store_dword v2, v1, s[{sWS}:{sWS+3}], s{s_tmp} offen offset:60")
    o.append(f"v_mov_b32 v2, {nstamp+1}")
    o.append(f"buffer_store_dword v2, v1, s[{sWS}:{sWS+3}], s{s_tmp} offen offset:56")
    return o

FLAG_OFF = STAMP_OFF + 65536
v_fl = 109; v_fa = 110
def red_loads(a, bases, hq, ldfl, vb):
    off = (((hq & 1) << 3) | (hq >> 1)) * PART_WG
    for k, bs in enumerate(bases):
        r = vb + (k * 8 + hq) * 4
        a(f"s_add_u32 s{s_t0+1}, s{bs}, {off}")
        a(f"buffer_load_dwordx4 v[{r}:{r+3}], v{v_l16}, s[{sWS}:{sWS+3}], s{s_t0+1} offen{ldfl}")
def red_outaddr(a, f, dst, br, b):
    t = s_t0
    a(f"s_mul_hi_u32 s{t}, s{f}, 0x15555556")
    a(f"s_mul_i32 s{t+1}, s{t}, 12"); a(f"s_sub_u32 s{t+1}, s{f}, s{t+1}")
    a(f"s_mul_hi_u32 s{t+2}, s{t+1}, 0x55555556")
    a(f"s_mul_i32 s{t+3}, s{t+2}, 3"); a(f"s_sub_u32 s{t+3}, s{t+1}, s{t+3}")
    a(f"s_and_b32 s{dst}, s{t+2}, 1"); a(f"s_mul_i32 s{dst}, s{dst}, 48"); a(f"s_lshl_b32 s{t+3}, s{t+3}, 4")
    a(f"s_add_u32 s{dst}, s{dst}, s{t+3}")
    a(f"s_mul_i32 s{t+3}, s{b}, 96"); a(f"s_add_u32 s{dst}, s{dst}, s{t+3}")
    a(f"s_mul_i32 s{dst}, s{dst}, 2560")
    a(f"s_mul_i32 s{t+3}, s{br}, 1280"); a(f"s_add_u32 s{dst}, s{dst}, s{t+3}")
    a(f"s_lshl_b32 s{t+3}, s{t}, 7"); a(f"s_add_u32 s{dst}, s{dst}, s{t+3}")
    a(f"s_lshr_b32 s{t+3}, s{t+2}, 1"); a(f"s_lshl_b32 s{t+3}, s{t+3}, 6"); a(f"s_add_u32 s{dst}, s{dst}, s{t+3}")
def red_sum(a, nf, outs, vb):
    for k in range(nf):
        ac = 64 + 8 * (k % 2)
        for hq in range(8):
            for q in range(4):
                r = vb + (k * 8 + hq) * 4 + q
                if hq == 0:
                    a(f"v_lshlrev_b32 v{ac+q}, 16, v{r}"); a(f"v_and_b32 v{ac+4+q}, 0xffff0000, v{r}")
                else:
                    a(f"v_lshlrev_b32 v4, 16, v{r}"); a(f"v_and_b32 v{r}, 0xffff0000, v{r}")
                    a(f"v_add_f32 v{ac+q}, v{ac+q}, v4"); a(f"v_add_f32 v{ac+4+q}, v{ac+4+q}, v{r}")
        o = 48 + 4 * k
        for q in range(4): a(f"v_cvt_pk_bf16_f32 v{o+q}, v{ac+q}, v{ac+4+q}")
        a("s_nop 1")
        a(f"v_permlane32_swap_b32 v{o}, v{o+2}"); a(f"v_permlane32_swap_b32 v{o+1}, v{o+3}")
        a("s_nop 1")
        a(f"v_permlane16_swap_b32 v{o}, v{o+2}"); a(f"v_permlane16_swap_b32 v{o+1}, v{o+3}")
        a("s_nop 1")
        a(f"buffer_store_dwordx4 v[{o}:{o+3}], v2, s[{sK}:{sK+3}], s{outs[k]} offen{OPT['outst']}")

v_poll = 39
def fused_reduce(stamps=False):
    L = []; a = L.append
    def st(n):
        if stamps: a(f"s_memrealtime s[{s_stamp+2*n}:{s_stamp+2*n+1}]")
    sD = sV
    br, b, pb, done, last, it, new, slc, vw, extra, pend, stage = 28, 29, 30, 31, 32, 33, 34, 35, 36, 37, 46, 47
    fs = [38, 39, 40, 41]; bases = [42, 43, 44, 45]; outs = [12, 13, 14, 15]
    a("L_red:")
    a("s_load_dwordx4 s[60:63], s[0:1], 80")
    a(f"v_cmp_ne_u32 vcc, v{v_poll}, v{v_fl}")
    a(f"s_bfe_u32 s{br}, s2, 0x10002"); a(f"s_lshr_b32 s{b}, s2, 4")
    a(f"s_lshl_b32 s{pb}, s{b}, 4"); a(f"s_lshl_b32 s{it}, s{br}, 2"); a(f"s_add_u32 s{pb}, s{pb}, s{it}")
    a(f"s_mul_i32 s{pb}, s{pb}, {PART_WG}")
    a(f"s_mov_b32 s{slc}, s{s_hq}"); a(f"s_mov_b32 s{vw}, s{s_w}"); a(f"s_mov_b32 s{last}, 0"); a(f"s_mov_b32 s{extra}, 0")
    a(f"s_lshl_b32 s{stage}, 1, s{s_hq}")
    a(f"s_andn2_b32 s{new}, vcc_lo, s{stage}"); a(f"s_and_b32 s48, s{new}, 0xff")
    a(f"s_mov_b32 s{new}, 0")
    for _ in range(OPT['pre']):
        a(f"s_sub_u32 s49, 0, s48"); a("s_and_b32 s49, s49, s48")
        a(f"s_or_b32 s{new}, s{new}, s49"); a("s_xor_b32 s48, s48, s49")
    a("L_red_setup:")
    a(f"s_mul_i32 s{it}, s{slc}, 15")
    for k in range(4):
        a(f"s_add_u32 s{fs[k]}, s{vw}, {4*k}")
        if k == 3: a(f"s_min_u32 s{fs[k]}, s{fs[k]}, 14")
        a(f"s_add_u32 s{fs[k]}, s{fs[k]}, s{it}")
        a(f"s_lshl_b32 s{bases[k]}, s{fs[k]}, 10"); a(f"s_add_u32 s{bases[k]}, s{bases[k]}, s{pb}")
    a(f"s_mov_b32 s{done}, 0"); a(f"s_mov_b32 s{it}, 0"); a(f"s_mov_b32 s{pend}, 0")
    a("L_red_issue:")
    for hq in range(8):
        a(f"s_bitcmp1_b32 s{new}, {hq}"); a(f"s_cbranch_scc0 L_red_s{hq}")
        red_loads(a, bases, hq, OPT['rld'], 112)
        a(f"L_red_s{hq}:")
    a(f"s_cmp_lg_u32 s{done}, 0"); a("s_cbranch_scc1 L_red_nset")
    a(f"s_cmp_lg_u32 s{it}, 0"); a("s_cbranch_scc1 L_red_nset")
    for k in range(4): red_outaddr(a, fs[k], outs[k], br, b)
    for r in range(64, 96): a(f"v_mov_b32 v{r}, 0")
    a(f"s_mov_b32 s{it}, 1")
    a("L_red_nset:")
    a(f"s_or_b32 s{done}, s{done}, s{new}"); a(f"s_or_b32 s{pend}, s{pend}, s{new}")
    a(f"s_cmp_eq_u32 s{stage}, 0"); a("s_cbranch_scc1 L_red_norm")
    a(f"v_lshrrev_b32 v3, 4, v{v_l16}")
    a("v_and_b32 v2, 15, v3"); a("v_mul_u32_u24 v2, 2560, v2")
    a("v_lshrrev_b32 v3, 4, v3"); a("v_lshl_add_u32 v2, v3, 4, v2")
    a(f"s_lshl_b32 s{s_t0}, s{br}, 4"); a(f"s_add_u32 s{s_t0}, s{s_t0}, s{b}"); a(f"s_lshl_b32 s{s_t0}, s{s_t0}, 2")
    a(f"v_mov_b32 v6, s{s_t0}")
    a("s_waitcnt lgkmcnt(0)")
    a(f"s_mov_b32 s{sK}, s60"); a(f"s_mov_b32 s{sK+1}, s61"); a(f"s_mov_b32 s{sK+2}, 3932160"); a(f"s_mov_b32 s{sK+3}, 0x20000")
    a(f"s_mov_b32 s{sD}, s62"); a(f"s_mov_b32 s{sD+1}, s63"); a(f"s_mov_b32 s{sD+2}, 256"); a(f"s_mov_b32 s{sD+3}, 0x20000")
    a(f"s_bcnt1_i32_b32 s{s_t0}, s{new}")
    for k in range(OPT['pre'], 0, -1):
        a(f"s_cmp_lt_u32 s{s_t0}, {k}"); a(f"s_cbranch_scc1 L_red_w{k-1}")
        a(f"s_waitcnt vmcnt({4*k})"); a("s_branch L_red_bar")
        a(f"L_red_w{k-1}:")
    a("s_waitcnt vmcnt(0)")
    a("L_red_bar:")
    a("s_barrier")
    st(8)
    a(f"s_or_b32 s{new}, s{stage}, s48"); a(f"s_mov_b32 s49, s{stage}"); a(f"s_mov_b32 s{stage}, 0")
    a(f"s_cmp_lg_u32 s{s_w}, 0"); a("s_cbranch_scc1 L_red_issue")
    a(f"s_mov_b32 exec_lo, s49"); a("s_mov_b32 exec_hi, 0")
    a(f"v_add_u32 v8, 1, v{v_fl}")
    a(f"buffer_store_dword v8, v{v_fa}, s[{sWS}:{sWS+3}], 0 offen sc1")
    a("v_mov_b32 v7, 1")
    a(f"buffer_atomic_add v7, v6, s[{sD}:{sD+3}], 0 offen sc0")
    a("s_mov_b64 exec, -1")
    a("s_branch L_red_issue")
    a("L_red_norm:")
    a(f"s_cmp_eq_u32 s{done}, 0xff"); a("s_cbranch_scc1 L_red_wait")
    a("L_red_poll:")
    a(f"buffer_load_dword v{v_poll}, v{v_fa}, s[{sWS}:{sWS+3}], 0 offen sc1")
    a(f"s_add_u32 s{it}, s{it}, 1")
    a("L_red_wait:")
    st(10)
    a("s_waitcnt vmcnt(0)")
    st(11)
    for hq in range(8):
        a(f"s_bitcmp1_b32 s{pend}, {hq}"); a(f"s_cbranch_scc0 L_red_a{hq}")
        for k in range(4):
            r = 112 + (k * 8 + hq) * 4; ac = 64 + 8 * k
            a(f"v_mfma_f32_16x16x32_bf16 v[{ac}:{ac+3}], a[{aE0}:{aE0+3}], v[{r}:{r+3}], v[{ac}:{ac+3}]")
            a(f"v_mfma_f32_16x16x32_bf16 v[{ac+4}:{ac+7}], a[{aE1}:{aE1+3}], v[{r}:{r+3}], v[{ac+4}:{ac+7}]")
        a(f"L_red_a{hq}:")
    a(f"s_mov_b32 s{pend}, 0")
    a(f"s_cmp_eq_u32 s{done}, 0xff"); a("s_cbranch_scc1 L_red_sum")
    a(f"v_cmp_ne_u32 vcc, v{v_poll}, v{v_fl}")
    a("s_nop 4")
    a(f"s_andn2_b32 s{new}, vcc_lo, s{done}"); a(f"s_and_b32 s{new}, s{new}, 0xff")
    a("s_cbranch_scc1 L_red_issue")
    a(f"s_sleep {OPT['sleep']}")
    a(f"s_cmp_lt_u32 s{it}, {OPT['polls']}"); a("s_cbranch_scc1 L_red_poll")
    a("s_mov_b64 exec, 1")
    a(f"s_lshl_b32 s{new}, 1, s{s_hq}")
    a(f"v_mov_b32 v8, s{new}")
    a(f"buffer_atomic_or v8, v6, s[{sD}:{sD+3}], 0 offen offset:128 sc0")
    a("s_waitcnt vmcnt(0)")
    a("v_mov_b32 v8, 0")
    a(f"buffer_atomic_add v8, v6, s[{sD}:{sD+3}], 0 offen sc0")
    a("s_waitcnt vmcnt(0)")
    a(f"v_readfirstlane_b32 s{s_t0}, v8")
    a("s_mov_b64 exec, -1")
    a(f"s_andn2_b32 s{new}, 0xff, s{done}")
    a("s_nop 2")
    a(f"s_cmp_eq_u32 s{s_t0}, 8"); a("s_cbranch_scc1 L_red_issue")
    a("s_branch L_red_next")
    a("L_red_sum:")
    a(f"s_or_b32 s{s_t0}, s{s_w}, s{last}"); a("s_cbranch_scc1 L_red_sum2")
    a("s_mov_b64 exec, 1")
    a("v_mov_b32 v9, 0")
    a(f"buffer_atomic_or v9, v6, s[{sD}:{sD+3}], 0 offen offset:128 sc0")
    a("s_mov_b64 exec, -1")
    a("L_red_sum2:")
    a("s_nop 7")
    for k in range(4):
        for q in range(4): a(f"v_cvt_pk_bf16_f32 v{48+4*k+q}, v{64+8*k+2*q}, v{65+8*k+2*q}")
    for op in ("v_permlane32_swap_b32", "v_permlane16_swap_b32"):
        for k in range(4):
            o = 48 + 4 * k
            a(f"{op} v{o}, v{o+2}"); a(f"{op} v{o+1}, v{o+3}")
    a("s_nop 1")
    for k in range(4):
        a(f"buffer_store_dwordx4 v[{48+4*k}:{51+4*k}], v2, s[{sK}:{sK+3}], s{outs[k]} offen{OPT['outst']}")
    a("L_red_next:")
    a(f"s_cmp_lg_u32 s{s_w}, 0"); a("s_cbranch_scc1 L_red_done")
    a(f"s_cmp_lg_u32 s{last}, 0"); a("s_cbranch_scc1 L_red_more")
    a("s_waitcnt vmcnt(0)")
    a(f"v_readlane_b32 s{last}, v7, s{s_hq}")
    a(f"v_readlane_b32 s{extra}, v9, 0")
    a("s_nop 3")
    a(f"s_cmp_eq_u32 s{last}, 7"); a("s_cbranch_scc0 L_red_done")
    a(f"s_mov_b32 s{vw}, 3")
    a("L_red_more:")
    a(f"s_add_u32 s{vw}, s{vw}, 1"); a(f"s_and_b32 s{vw}, s{vw}, 3"); a("s_cbranch_scc1 L_red_go")
    a(f"s_cmp_eq_u32 s{extra}, 0"); a("s_cbranch_scc1 L_red_done")
    a(f"s_ff1_i32_b32 s{slc}, s{extra}"); a(f"s_bitset0_b32 s{extra}, s{slc}")
    a("L_red_go:")
    a(f"s_mov_b32 s{new}, 0xff")
    a("s_nop 7")
    a("s_branch L_red_setup")
    a("L_red_done:")
    return L

def reduce_kernel():
    L = []; a = L.append
    a("s_cmp_ge_u32 s2, 960"); a("s_cbranch_scc1 R_end")
    a("s_load_dwordx2 s[12:13], s[0:1], 96"); a("s_load_dwordx2 s[14:15], s[0:1], 80")
    a("v_lshrrev_b32 v1, 6, v0"); a("s_nop 0"); a("v_readfirstlane_b32 s3, v1")
    a("v_and_b32 v3, 63, v0")
    a("s_nop 2")
    a("s_lshl_b32 s16, s2, 2"); a("s_add_u32 s16, s16, s3")
    a("s_mul_hi_u32 s17, s16, 0x2222223")
    a("s_mul_i32 s18, s17, 120"); a("s_sub_u32 s34, s16, s18")
    a("s_lshr_b32 s28, s17, 4"); a("s_and_b32 s29, s17, 15")
    a("s_lshl_b32 s30, s29, 4"); a("s_lshl_b32 s22, s28, 2"); a("s_add_u32 s30, s30, s22")
    a(f"s_mul_i32 s30, s30, {PART_WG}")
    a(f"v_lshlrev_b32 v{v_l16}, 4, v3")
    a("v_and_b32 v2, 15, v3"); a("v_mul_u32_u24 v2, 2560, v2")
    a("v_lshrrev_b32 v3, 4, v3"); a("v_lshl_add_u32 v2, v3, 4, v2")
    a("s_waitcnt lgkmcnt(0)")
    a(f"s_mov_b32 s{sWS}, s12"); a(f"s_mov_b32 s{sWS+1}, s13"); a(f"s_mov_b32 s{sWS+2}, 438042624"); a(f"s_mov_b32 s{sWS+3}, 0x20000")
    a(f"s_mov_b32 s{sK}, s14"); a(f"s_mov_b32 s{sK+1}, s15"); a(f"s_mov_b32 s{sK+2}, 3932160"); a(f"s_mov_b32 s{sK+3}, 0x20000")
    a("s_lshl_b32 s42, s34, 10"); a("s_add_u32 s42, s42, s30")
    for hq in range(8): red_loads(a, [42], hq, "", 8)
    red_outaddr(a, 34, 12, 28, 29)
    a("s_waitcnt vmcnt(0)")
    red_sum(a, 1, [12], 8)
    a("R_end:")
    a("s_endpgm")
    return L

DESC = """.section .rodata,"a"
.p2align 6
.amdhsa_kernel {name}
  .amdhsa_next_free_vgpr {nv}
  .amdhsa_next_free_sgpr {ns}
  .amdhsa_accum_offset {acc}
  .amdhsa_group_segment_fixed_size 0
  .amdhsa_kernarg_size 104
  .amdhsa_user_sgpr_count 2
  .amdhsa_user_sgpr_kernarg_segment_ptr 1
  .amdhsa_system_sgpr_workgroup_id_x 1
.end_amdhsa_kernel
"""
def far_jump(lbl, uid):
    return [f"s_getpc_b64 s[{s_ret}:{s_ret+1}]", f"{uid}:", f"s_add_u32 s{s_ret}, s{s_ret}, {lbl}-{uid}",
            f"s_addc_u32 s{s_ret+1}, s{s_ret+1}, 0", f"s_setpc_b64 s[{s_ret}:{s_ret+1}]"]

def main():
    ap = argparse.ArgumentParser()
    ap.add_argument('-o', default=f'cdna_kernels/{KN}.s')
    ap.add_argument('--kind', default='J+W')
    ap.add_argument('--stamps', action='store_true')
    ap.add_argument('-v', action='store_true')
    ap.add_argument('--drop', default='')
    ap.add_argument('--opt', default='')
    a = ap.parse_args()
    for kv in filter(None, a.opt.split(',')):
        k, v = kv.split('=')
        fl = '' if v == 'df' else ' ' + v.replace('+', ' ')
        if k == 'w':
            for kk in ('wq0', 'wq1', 'wo0', 'wo1', 'x0', 'x1'): OPT[kk] = fl
        elif isinstance(OPT[k], int): OPT[k] = int(v, 0)
        else: OPT[k] = fl
    if not OPT['fuse'] and OPT['st'] == ' sc1': OPT['st'] = ''
    p1, p2 = prologue()
    p1, _ = fix_hazards(p1)
    kinds = a.kind.split('+')
    lines = []; nn = 0
    if len(kinds) > 1:
        pat = OPT['pat'].strip()
        pat = (pat * 32)[:32]
        lo = sum(int(c) << (2 * i) for i, c in enumerate(pat[:16])); hi = sum(int(c) << (2 * i) for i, c in enumerate(pat[16:]))
        lines += [f"; classes {pat}", f"s_mov_b32 s{s_ret}, {hex(lo)}", f"s_mov_b32 s{s_ret+1}, {hex(hi)}", f"s_lshr_b32 s{s_cnt}, s2, 3", f"s_lshl_b32 s{s_cnt}, s{s_cnt}, 1",
                  f"s_lshr_b64 s[{s_ret}:{s_ret+1}], s[{s_ret}:{s_ret+1}], s{s_cnt}", f"s_and_b32 s{s_cnt}, s{s_ret}, 3"]
        for ci in range(1, len(kinds)):
            lines += [f"s_cmp_eq_u32 s{s_cnt}, {ci}", f"s_cbranch_scc0 L_nc{ci}"] + far_jump(f'L_cls{ci}', f'L_pc{ci}') + [f"L_nc{ci}:"]
    for ci, kind in enumerate(kinds):
        body, nstamp = build_main(kind, a.stamps, p2)
        body = insert_waits(body)
        if a.drop:
            dr = a.drop.split(',')
            body = [i for i in body if i.k not in dr]
        body, n1 = fix_hazards(body, a.v); nn += n1
        k = [i for i, x in enumerate(body) if x.k == 'split'][0]
        if ci == 0: common = [x.t for x in body[:k]]
        else: assert common == [x.t for x in body[:k]]
        body = body[k + 1:]
        l1, s1 = compress(body, S(s_cnt), uid=f'C{ci}_')
        s1 = [x.replace('L_rare', f'L_rare{ci}') for x in s1]
        lines += [f"L_cls{ci}:"]
        lines += l1
        if a.stamps: lines += [f"s_mov_b32 s3, {12 if OPT['rst'] else nstamp}"]
        if ci < len(kinds) - 1: lines += far_jump('L_fin', f'L_pf{ci}')
        else: lines += ["s_branch L_fin"]
        lines += s1 + rare_path(f'L_rare{ci}_0', 0) + rare_path(f'L_rare{ci}_1', 1)
    lines += ["L_fin:"]
    NS = 12
    if a.stamps: lines += [f"s_memrealtime s[{s_stamp+2*NS}:{s_stamp+2*NS+1}]"]
    if OPT['fuse']: lines += fused_reduce(a.stamps and OPT['rst'])
    if a.stamps:
        so = stamp_out(NS + 1)
        so = [x.replace(f"v_mov_b32 v2, {NS+2}", "v_mov_b32 v2, s3") for x in so]
        lines += ["s_mov_b64 exec, -1"] + so
    lines += ["s_endpgm"]
    hdr = open(f'cdna_kernels/{KN}.s.ref').read().split('\n')
    hdr = [l for l in hdr if l.startswith(';') and '@launch' not in l and 'Override launch' not in l and 'grid=ceil' not in l]
    if OPT['fuse']: out = hdr + [f"; @launch grid=(256,1,1) block=(256,1,1) lds={LDS_BYTES}"]
    else: out = hdr + [f"; @launch kernel={KN}_kernel grid=(256,1,1) block=(256,1,1) lds={LDS_BYTES}",
                       "; @launch kernel=reduce_kernel grid=(960,1,1) block=(256,1,1) lds=0"]
    out += ['.amdgcn_target "amdgcn-amd-amdhsa--gfx950"', '.text',
            f'.globl {KN}_kernel', '.p2align 8', f'.type {KN}_kernel,@function', f'{KN}_kernel:']
    out += ["s_cmp_lt_u32 s2, 256", "s_cbranch_scc1 L_go", "s_endpgm", "L_go:"]
    if a.stamps and OPT['st0']: out += [f"s_memrealtime s[{s_stamp}:{s_stamp+1}]"]
    if OPT['cpf'] == 2:
        out += [f"s_getpc_b64 s[{s_ret}:{s_ret+1}]", "L_cp:", f"s_lshr_b32 s{s_tmp}, s2, 3", f"s_lshl_b32 s{s_tmp}, s{s_tmp}, 13",
                "v_lshrrev_b32 v1, 2, v0", "v_lshlrev_b32 v1, 7, v1", f"v_add_u32 v1, s{s_tmp}, v1", "v_min_u32 v1, L_code_end-L_cp-4, v1",
                f"global_load_dword v{v_t+10}, v1, s[{s_ret}:{s_ret+1}]"]
    if OPT['half']: out += [f"s_and_b32 s3, s2, {OPT['half']}", "s_cbranch_scc0 L_go2", "s_endpgm", "L_go2:"]
    if OPT['cpf'] == 1: out += [f"s_getpc_b64 s[{s_ret}:{s_ret+1}]", "L_cp0:", f"s_sub_u32 s{s_ret}, s{s_ret}, L_cp0-L_go", f"s_subb_u32 s{s_ret+1}, s{s_ret+1}, 0"]
    out += [i.t for i in p1] + common + lines + ["L_code_end:"]
    if not OPT['fuse']:
        out += ['.globl reduce_kernel', '.p2align 8', '.type reduce_kernel,@function', 'reduce_kernel:'] + reduce_kernel()
    out.append(DESC.format(name=KN + '_kernel', nv=512, ns=102, acc=256))
    if not OPT['fuse']: out.append(DESC.format(name='reduce_kernel', nv=88, ns=72, acc=88))
    txt = "\n".join(out) + "\n"
    if OPT['mac']:
        txt = txt.replace("v_mfma_f32_16x16x32_bf16 ", "M ").replace("ds_read_b64_tr_b16 ", "T ").replace("v_cvt_pk_bf16_f32 ", "C ")
        txt = txt.replace("v_accvgpr_write_b32 ", "AW ").replace("buffer_load_dwordx4 ", "L ").replace(", ", ",")
        mac = [".macro M a:vararg", "v_mfma_f32_16x16x32_bf16 \\a", ".endm", ".macro T a:vararg", "ds_read_b64_tr_b16 \\a", ".endm",
               ".macro C a:vararg", "v_cvt_pk_bf16_f32 \\a", ".endm", ".macro AW a:vararg", "v_accvgpr_write_b32 \\a", ".endm",
               ".macro L a:vararg", "buffer_load_dwordx4 \\a", ".endm"]
        txt = txt.replace(".text\n", ".text\n" + "\n".join(mac) + "\n", 1)
        head = "\n".join(out[:len(hdr) + 2])
        txt = head + txt[txt.index("\n.text\n"):] if OPT['fuse'] else txt
    open(a.o, 'w').write(txt)
    print(f"wrote {a.o}: {len(out)} lines, {nn} hazard nops")

if __name__ == '__main__':
    main()
```

```python
import sys, math, argparse, struct
sys.path.insert(0, 'gen')
from asmlib import *

KN = 'concat_heads__mha_block_cached__gqa_block_cached__near_ridge'
SLOT = 24576; NBUF = 4; LEAD = 3; XT = 12288
XA = 0x18000; XB_ = 0x20000; XTOG = XA ^ XB_
LDS_BYTES = XB_ + 2 * XT
EXW = 18432
PART_WG = 122880
STAMP_OFF = 256 * PART_WG
H = 192 * 1280

OPT = {'wq0': '', 'wq1': '', 'wo0': '', 'wo1': '', 'x0': '', 'x1': '', 'kv': ' nt', 'st': ' sc1', 'rot': 1,
       'cmask': 0xAAAAAAAA, 'half': 0, 'early': 1, 'sp0': -1, 'spd': 2, 'fuse': 1, 'wper': 3, 'ovl': 1, 'outst': ' sc1', 'sleep': 1, 'polls': 3000, 'rld': ' sc1', 'rst': 0, 'cyc': 0, 'cpf': 1, 'pipe': 1, 'dend': 36, 'rot2': 0, 'pat': '01', 'mac': 1, 'hold': 6, 'nost': 0, 'pf': 0, 'pfs': 4, 'pfd': 4, 'ntp': 0, 'st0': 1, 'pfx0': 0, 'pfx1': 0, 'pfw0': 0, 'pfw1': 0, 'xtag': 1, 'pollgap': 8, 'pre': 1, 'cper': 32, 'la': 0, 'lb': 0, 'ld': 2, 'pfat': 3, 'pfstep': 2, 'rotq0': 1, 'snake': 1, 'jpat': ' 0000111122222222', 'pipes': ' X0X1W0W1F0F1G0G1I1J1', 'edef': 1, 'vinit': 0}

sK, sV, sWQ, sWO, sX, sWS = 4, 8, 12, 16, 20, 24
s_w6144, s_k, s_v, s_wq, s_wo, s_x, s_xwr, s_tmp, s_cnt, s_c = range(28, 38)
s_wqb, s_wql, s_xb, s_xl, s_wob, s_wol, s_pt, s_ptb, s_ptl = range(38, 47)
s_ew, s_er0, s_er1, s_w, s_hq = range(47, 52)
s_ret = 52
s_tmp2 = 63
s_rq = 100; s_rx = 101
s_t0 = 54
s_stamp = 64
v_l16 = 0; v_k = 1; v_v = 5; v_p = 13; v_x = 17
v_m, v_l = 19, 22
v_t = 25
vP = 40; vS = 52; vXF = 76; v_dkv, v_dwq, v_dwx = 100, 103, 106; vO = 112
vACC = (76, 52)
aQN = 0; aRES = 0; aQ = 144; aF = 216; aE1 = 240; aE0 = 242

def Oreg(dt, qt): return vO + (dt * 3 + qt) * 4
SB = [0]
def Sbase(): return (vS, vXF)[SB[0]]
def Sreg(t, qt): return Sbase() + (t * 3 + qt) * 4

class Slot:
    def __init__(self, typ, **kw):
        self.typ = typ; self.__dict__.update(kw)
        self.pre = []; self.gaps = [[] for _ in range(36)]; self.mf = []; self.load = [0] * 36
    def put(self, gap, item):
        if isinstance(item, I): item = [item]
        self.gaps[gap].append(item); self.load[gap] += sum(i.cost for i in item)

def spread(slots_gaps, items, cap=2, even=False):
    items = [[x] if isinstance(x, I) else x for x in items]
    if not items: return
    level = cap
    while True:
        plan = []; k = 0
        free = [max(0, level - s.load[g]) for s, g in slots_gaps]
        tot_free = sum(free); tot_it = sum(sum(i.cost for i in it) for it in items)
        used = 0; seen_free = 0
        for n, (s, g) in enumerate(slots_gaps):
            ld = s.load[g]; seen_free += free[n]
            while k < len(items):
                c = sum(i.cost for i in items[k])
                if ld + c > level and not (ld == 0 and c > level): break
                if even and tot_free > tot_it and (used + c) * tot_free > seen_free * tot_it + tot_free: break
                plan.append((s, g, items[k])); ld += c; k += 1; used += c
        if k == len(items): break
        if even: even = False
        else: level += 1
    for s, g, it in plan: s.put(g, it)

def frag_reads(sl, j):
    d = aF + (j % 6) * 4
    tag = ('f', sl.idx, j)
    buf = sl.idx % NBUF
    hi = buf >> 1; bo = (buf & 1) * SLOT
    if sl.typ == 'K':
        t, ks = divmod(j, 6)
        return [dsread('ds_read_b128', A(d, 4), V(v_k + hi * 2 + (ks & 1)), bo + t * 6144 + (ks >> 1) * 128, tag)]
    if sl.typ in ('V', 'Q'):
        off = bo + (j >> 2) * 128; a = V(v_v + hi * 4 + (j & 3))
        return [dsread('ds_read_b64_tr_b16', A(d, 2), a, off, tag), dsread('ds_read_b64_tr_b16', A(d + 2, 2), a, off + 6144, tag)]
    if sl.typ == 'P':
        u, nt = divmod(j, 2); a = V(v_p + hi * 2 + nt); off = bo + u * 4096
        return [dsread('ds_read_b64_tr_b16', A(d, 2), a, off, tag), dsread('ds_read_b64_tr_b16', A(d + 2, 2), a, off + 2048, tag)]

def x_reads(sl):
    return [dsread('ds_read_b128', V(vXF + (sl.j % 2) * 12 + qt * 4, 4), V(v_x + (sl.j & 1)),
                   ((sl.j >> 1) & 1) * XT + qt * 2048, ('x', sl.idx)) for qt in range(3)]

def wrapadd(reg, inc, lim, base):
    return [salu('s_add_u32', S(reg), S(reg), inc & 0xffffffff),
            [scmp('s_cmp_eq_u32', S(reg), S(lim)), salu('s_cselect_b32', S(reg), S(base), S(reg))]]
def bump(regs3, d): return [salu('s_add_u32', S(r), S(r), d & 0xffffffff) for r in regs3]

v_pw = 111
def prefill_loads(sl):
    srd, so = (sK, s_k) if sl.typ == 'K' else (sV, s_v)
    tag = ('pfl', sl.idx)
    it = [salu('s_add_u32', S(s_tmp2), S(so), 3072)]
    for j in range(6):
        it.append(bload(A(sl.pfreg + 4 * j, 4), V(v_dkv + j % 3), S(srd, 4), S(so if j < 3 else s_tmp2), 1024 * (j % 3), tag, OPT['kv']))
    it.append(salu('s_add_u32', S(so), S(so), 12288))
    return it
def prefill_writes(sl):
    buf = sl.idx % NBUF
    it = []
    a = v_pw
    if buf >= 2:
        a = v_t + 14; it.append(valu('v_add_u32', V(a), 2 * SLOT, V(v_pw)))
    for j in range(6):
        w = dswrite('ds_write_b128', V(a), A(sl.pfreg + 4 * j, 4), (buf & 1) * SLOT + 1024 * j, ('d', sl.idx))
        if j == 0: w.need = [('pfl', sl.idx)]
        it.append(w)
    return it
def dma_items(sl):
    if getattr(sl, 'pfreg', None) is not None: return prefill_writes(sl)
    tag = ('d', sl.idx)
    if sl.typ == 'K': srd, so, vo, dl = sK, s_k, v_dkv, 3072; upd = [salu('s_add_u32', S(s_k), S(s_k), 12288)]
    elif sl.typ == 'V': srd, so, vo, dl = sV, s_v, v_dkv, 3072; upd = [salu('s_add_u32', S(s_v), S(s_v), 12288)]
    elif sl.typ == 'Q':
        srd, so, vo, dl = sWQ, s_wq, v_dwq, 16 * 12288
        upd = wrapadd(s_wq, 32 * 12288, s_wql, s_wqb) if sl.j % 2 else [salu('s_add_u32', S(s_wq), S(s_wq), 32 * 12288)]
        if sl.j == 19: upd += bump((s_wq, s_wqb, s_wql), 384)
        if sl.j == 19 and sl.rnd == 0 and not OPT['rotq0']: upd.append(salu('s_add_u32', S(s_wq), S(s_wq), S(s_rq)))
    elif sl.typ == 'P':
        srd, so, vo, dl = sWO, s_wo, v_dwx, 24 * 1280
        incs = [2 * H, 128 - 2 * H] if sl.nh == 2 else [2 * H, -H, 2 * H, 128 - 3 * H]
        if sl.hh < sl.nh - 1: upd = [salu('s_add_u32', S(s_wo), S(s_wo), incs[sl.hh] & 0xffffffff)]
        else:
            upd = wrapadd(s_wo, incs[sl.hh], s_wol, s_wob)
            if sl.ch == 9 and sl.rnd == 0: upd += bump((s_wo, s_wob, s_wol), H)
    fl = OPT['kv'] if sl.typ in 'KV' else OPT[('wq' if sl.typ == 'Q' else 'wo') + str(sl.rnd)]
    if sl.typ == 'Q' and sl.j < 2 * OPT['ntp']: fl = ' nt'
    if sl.typ == 'P' and sl.ch < OPT['ntp']: fl = ' nt'
    srd = S(srd, 4); lb = (sl.idx % NBUF) * SLOT
    it = [salu('s_add_u32', 'm0', S(s_w6144), lb), salu('s_add_u32', S(s_tmp), S(so), dl)]
    it += [dma(V(vo + k), srd, S(so), 1024 * k, tag, fl) for k in range(3)]
    it += [salu('s_add_u32', 'm0', 'm0', 3072)] + upd[:1]
    it += [dma(V(vo + k), srd, S(s_tmp), 1024 * k, tag, fl) for k in range(3)]
    it += upd[1:]
    return it

def x_items(sl):
    fl = OPT['x' + str(sl.rnd)]
    it = []
    for h in range(2):
        xt = ('xd', sl.xq, h if OPT['xtag'] else 1)
        it.append(salu('s_add_u32', 'm0', S(s_xwr), h * XT))
        if h == 1: it.append(salu('s_xor_b32', S(s_xwr), S(s_xwr), XTOG))
        it += [dma(V(v_dwx + k), S(sX, 4), S(s_x), 1024 * k, xt, fl) for k in range(3)]
        it += wrapadd(s_x, 128, s_xl, s_xb)
    if sl.j == 16 and sl.rnd == 0 and not OPT['rotq0']: it.append(salu('s_add_u32', S(s_x), S(s_x), S(s_rx)))
    return it

def build_mfmas(sl):
    mf = []
    wp = OPT['wper']
    for j in range(12):
        a = A(aF + (j % 6) * 4, 4)
        need = []
        if j % wp == 0: need = [('f', sl.idx, j + k) for k in range(wp)]
        if j == 0 and sl.typ == 'Q': need.append(('x', sl.idx))
        for qi in range(3):
            qt = 2 - qi if (OPT['snake'] and j % 2) else qi
            if sl.typ == 'K':
                t, ks = divmod(j, 6); SB[0] = (sl.i & 1) if sl.pipe else 0
                d = V(Sreg(t, qt), 4); b = A(aQ + (ks * 3 + qt) * 4, 4); c = 0 if ks == 0 else d
            elif sl.typ == 'V':
                d = V(Oreg(j, qt), 4); b = V(vP + qt * 4, 4); c = 0 if sl.first else d
            elif sl.typ == 'Q':
                d = A(aQN + (j * 3 + qt) * 4, 4) if sl.accA else V(Oreg(j, qt), 4)
                b = V(vXF + (sl.j % 2) * 12 + qt * 4, 4); c = 0 if sl.j == 0 else d
            elif sl.typ == 'P':
                u, nt = divmod(j, 2); hh = sl.hh; ch = sl.ch
                d = V(vACC[ch % 2] + (nt * 3 + qt) * 4, 4)
                if sl.nh == 4 and hh < 2: b = A(aQN + hh * 72 + (u * 3 + qt) * 4, 4)
                else: b = V(vO + (hh % 2) * 72 + (u * 3 + qt) * 4, 4)
                c = 0 if (hh == 0 and u == 0 and (sl.rnd == 0 or sl.nh == 4)) else d
            mf.append(mfma(d, a, b, c, need=need if qi == 0 else ()))
    sl.mf = mf

def xrow(v, tmp, op):
    return [valu('v_mov_b32', V(tmp), V(v)), perm('v_permlane32_swap_b32', V(v), V(tmp)), valu(op, V(v), V(v), V(tmp)),
            valu('v_mov_b32', V(tmp), V(v)), perm('v_permlane16_swap_b32', V(v), V(tmp)), valu(op, V(v), V(v), V(tmp))]

def interleave(*lists):
    out = []
    for k in range(max(len(l) for l in lists)):
        for l in lists:
            if k < len(l): out.append(l[k])
    return out

def max8(x, vals):
    return [valu('v_max3_f32', V(x), V(vals[0]), V(vals[1]), V(vals[2])), valu('v_max3_f32', V(x), V(x), V(vals[3]), V(vals[4])),
            valu('v_max3_f32', V(x), V(x), V(vals[5]), V(vals[6])), valu('v_max_f32', V(x), V(x), V(vals[7]))]

def softmax_init():
    ch = []
    for qt in range(3):
        x = v_m + qt
        c = max8(x, [Sreg(t, qt) + r for t in range(2) for r in range(4)]) + xrow(x, v_t + qt, 'v_max_f32')
        c += [valu('v_mul_f32', V(x), S(s_c), V(x)), valu('v_mov_b32', V(v_l + qt), 0)]
        ch.append(c)
    return interleave(*ch)

def sm_fma(t):
    return [valu('v_fma_f32', V(Sreg(t, qt) + r), V(Sreg(t, qt) + r), S(s_c), '-' + V(v_m + qt)) for qt in range(3) for r in range(4)]
def sm_max(t):
    vals = [Sbase() + t * 12 + i for i in range(12)]
    x = v_t + 3
    if t == 0:
        o = [valu('v_max3_f32', V(x), V(vals[0]), V(vals[1]), V(vals[2]))]
        for i in range(3, 11, 2): o.append(valu('v_max3_f32', V(x), V(x), V(vals[i]), V(vals[i + 1])))
        o.append(valu('v_max_f32', V(x), V(x), V(vals[11])))
        return o
    return [valu('v_max3_f32', V(x), V(x), V(vals[i]), V(vals[i + 1])) for i in range(0, 12, 2)]
def sm_fmamax(t):
    f = sm_fma(t); m = sm_max(t)
    o = f[:4]; k = 0
    for i in range(4, 12, 2): o += f[i:i + 2] + [m[k]]; k += 1
    return o + m[k:]
def sm_check():
    return [[vcmp('v_cmp_lt_f32', 0x41000000, V(v_t + 3)),
             raw('s_cbranch_vccnz {L}_r', 'branch', ['vcc']), raw('{L}_b:', 'label'),
             raw('{L}_r:\ns_call_b64 s[%d:%d], L_rare_%d\ns_branch {L}_b' % (s_ret, s_ret + 1, SB[0]), 'stub')]]
def sm_exp():
    o = []
    order = [(t, r) for t in range(2) for r in range(4)]
    for k, (t, r) in enumerate(order):
        for qt in range(3): o.append(valu('v_exp_f32', V(Sreg(t, qt) + r), V(Sreg(t, qt) + r)))
        if k >= 1:
            pt, pr = order[k - 1]
            for qt in range(3): o.append(valu('v_add_f32', V(v_l + qt), V(v_l + qt), V(Sreg(pt, qt) + pr)))
            if pr % 2 == 1:
                for qt in range(3):
                    o.append(valu('v_cvt_pk_bf16_f32', V(vP + qt * 4 + pt * 2 + pr // 2), V(Sreg(pt, qt) + pr - 1), V(Sreg(pt, qt) + pr)))
    for qt in range(3): o.append(valu('v_cvt_pk_bf16_f32', V(vP + qt * 4 + 3), V(Sreg(1, qt) + 2), V(Sreg(1, qt) + 3)))
    tail = [valu('v_add_f32', V(v_l + qt), V(v_l + qt), V(Sreg(1, qt) + 3)) for qt in range(3)]
    return o, tail

def rare_path(name, sb):
    SB[0] = sb
    ch = []
    for qt in range(3):
        vals = [Sreg(t, qt) + r for t in range(2) for r in range(4)]
        x = v_t + 4 + qt; f = v_t + 7 + qt
        c = max8(x, vals) + xrow(x, v_t + qt, 'v_max_f32')
        c += [valu('v_max_f32', V(x), 0, V(x)), valu('v_add_f32', V(v_m + qt), V(v_m + qt), V(x)),
              valu('v_sub_f32', V(f), 0, V(x)), valu('v_exp_f32', V(f), V(f))]
        c += [valu('v_sub_f32', V(s), V(s), V(x)) for s in vals]
        c += [valu('v_mul_f32', V(v_l + qt), V(v_l + qt), V(f))]
        c += [valu('v_mul_f32', V(Oreg(dt, qt) + r), V(Oreg(dt, qt) + r), V(f)) for dt in range(12) for r in range(4)]
        ch.append(c)
    p, _ = fix_hazards([nop(7)] + interleave(*ch) + [nop(3)])
    return [name + ":"] + [i.t for i in p] + [f"s_setpc_b64 s[{s_ret}:{s_ret+1}]"]

def q_convert_u(u, dest):
    T = [vS + (u % 2) * 12 + 4 * qt for qt in range(3)]
    out = []
    for qt in range(3):
        for h in range(2):
            for k in range(2):
                s0 = Oreg(2 * u + h, qt) + 2 * k
                out.append(valu('v_cvt_pk_bf16_f32', V(T[qt] + h * 2 + k), V(s0), V(s0 + 1)))
    for op in ('v_permlane32_swap_b32', 'v_permlane16_swap_b32'):
        for qt in range(3):
            for k in range(2): out.append(perm(op, V(T[qt] + k), V(T[qt] + 2 + k)))
    for qt in range(3):
        for k in range(4): out.append(valu('v_accvgpr_write_b32', A(dest + (u * 3 + qt) * 4 + k), V(T[qt] + k)))
    return out

def q_convert_a(u):
    T = [vS + 12 + 4 * qt for qt in range(3)]
    rd = []; out = []
    for qt in range(3):
        for h in range(2):
            for k in range(2):
                s0 = vXF + (qt * 4 + h * 2 + k) * 2; a0 = aQN + ((2 * u + h) * 3 + qt) * 4 + 2 * k
                rd += [valu('v_accvgpr_read_b32', V(s0), A(a0)), valu('v_accvgpr_read_b32', V(s0 + 1), A(a0 + 1))]
                out.append(valu('v_cvt_pk_bf16_f32', V(T[qt] + h * 2 + k), V(s0), V(s0 + 1)))
    for op in ('v_permlane32_swap_b32', 'v_permlane16_swap_b32'):
        for qt in range(3):
            for k in range(2): out.append(perm(op, V(T[qt] + k), V(T[qt] + 2 + k)))
    for qt in range(3):
        for k in range(4): out.append(valu('v_accvgpr_write_b32', A(aQ + (u * 3 + qt) * 4 + k), V(T[qt] + k)))
    return rd + out

RL = 30
def e_head():
    out = interleave(*[xrow(v_l + qt, v_t + qt, 'v_add_f32') + [valu('v_rcp_f32', V(RL + 2 * qt), V(v_l + qt)),
                       valu('v_mov_b32', V(RL + 1 + 2 * qt), V(RL + 2 * qt))] for qt in range(3)])
    out += [valu('v_add_u32', V(36), S(s_ew), V(v_l16)), valu('v_add_u32', V(37), S(s_er0), V(v_l16)),
            valu('v_add_u32', V(38), S(s_er1), V(v_l16))]
    return out
def e_pack(u, eid, packed):
    T = vS + (u % 2) * 12
    o = []
    for qt in range(3):
        for h in range(2):
            s = Oreg(2 * u + h, qt)
            if packed:
                o += [valu('v_pk_mul_f32', V(s + 2 * k, 2), V(s + 2 * k, 2), V(RL + 2 * qt, 2)) for k in range(2)]
            else:
                o += [valu('v_mul_f32', V(s + k), V(s + k), V(RL + 2 * qt)) for k in range(4)]
    for qt in range(3):
        for h in range(2):
            s = Oreg(2 * u + h, qt)
            for k in range(2):
                o.append(valu('v_cvt_pk_bf16_f32', V(T + qt * 4 + h * 2 + k), V(s + 2 * k), V(s + 2 * k + 1)))
        o.append(dswrite('ds_write_b128', V(36), V(T + qt * 4, 4), (u * 3 + qt) * 1024, ('ew', eid)))
    return o
def e_reads(eid, toA):
    out = []
    for hh in range(2):
        for f in range(18):
            dst = A(aQN + hh * 72 + f * 4, 4) if toA else V(vO + hh * 72 + f * 4, 4)
            out.append(dsread('ds_read_b128', dst, V(37 + hh), f * 1024, ('er', eid, hh, f)))
    return out

def flush_held(ch):
    o = [bstore(A(aQ + ch * 12 + qt * 4, 4), V(v_l16), S(sWS, 4), S(s_ew), qt * 1024, ('st', ch), OPT['st']) for qt in range(3)]
    return o + wrapadd(s_ew, 12288, s_ptl, s_ptb)
def chunk_end(ch, store, held=False):
    acc = vACC[ch % 2]
    if held:
        o = chunk_end(ch, False)
        o = o[:12] + [valu('v_accvgpr_write_b32', A(aQ + ch * 12 + i), V(vP + i)) for i in range(12)]
        if ch == 0: o.append(salu('s_mov_b32', S(s_ew), S(s_pt)))
        return o + wrapadd(s_pt, 12288, s_ptl, s_ptb)
    o = []
    for qt in range(3):
        for nt in range(2):
            for k in range(2):
                s = acc + (nt * 3 + qt) * 4 + 2 * k
                o.append(valu('v_cvt_pk_bf16_f32', V(vP + qt * 4 + nt * 2 + k), V(s), V(s + 1)))
        if store:
            o.append(bstore(V(vP + qt * 4, 4), V(v_l16), S(sWS, 4), S(s_pt), qt * 1024, ('st', ch), OPT['st']))
    if not store: o += [valu('v_accvgpr_write_b32', A(aRES + ch * 12 + i), V(vP + i)) for i in range(12)]
    else: o += wrapadd(s_pt, 12288, s_ptl, s_ptb)
    return o

def chunk_init_valu(ch):
    acc = vACC[ch % 2]
    o = []
    for qt in range(3):
        for nt in range(2):
            for k in range(2):
                d = acc + (nt * 3 + qt) * 4 + 2 * k
                o.append(valu('v_accvgpr_read_b32', V(d + 1), A(aRES + ch * 12 + qt * 4 + nt * 2 + k)))
                o.append(valu('v_lshlrev_b32', V(d), 16, V(d + 1)))
                o.append(valu('v_and_b32', V(d + 1), 0xffff0000, V(d + 1)))
    return o
def chunk_init(ch):
    acc = vACC[ch % 2]
    return [mfma(V(acc + (nt * 3 + qt) * 4, 4), A(aE1 if nt else aE0, 4), A(aRES + ch * 12 + qt * 4, 4), 0)
            for nt in range(2) for qt in range(3)]

def stamp(n): return [raw(f"{'s_memtime' if OPT['cyc'] == 1 else 's_memrealtime'} s[{s_stamp+2*n}:{s_stamp+2*n+1}]", 'smem')]

def prologue():
    P = []; a = P.append
    T = s_t0
    a(salu('s_and_b32', S(T), 's2', 7)); a(salu('s_lshr_b32', S(T + 1), 's2', 3))
    a(salu('s_lshr_b32', S(T + 2), S(T), 2))
    a(salu('s_mul_i32', S(T + 2), S(T + 2), 40))
    a(salu('s_add_u32', S(T + 4), 's0', S(T + 2))); a(salu('s_addc_u32', S(T + 5), 's1', 0))
    a(raw(f"s_load_dwordx8 s[68:75], s[{T+4}:{T+5}], 0", 'smem'))
    a(raw(f"s_load_dwordx2 s[76:77], s[{T+4}:{T+5}], 32", 'smem'))
    a(raw("s_load_dwordx2 s[78:79], s[0:1], 96", 'smem'))
    a(salu('s_and_b32', S(T), S(T), 3)); a(salu('s_lshl_b32', S(T), S(T), 1))
    a(salu('s_and_b32', S(T + 3), S(T + 1), 1)); a(salu('s_or_b32', S(s_hq), S(T), S(T + 3)))
    a(salu('s_lshr_b32', S(T + 1), S(T + 1), 1))
    a(valu('v_lshrrev_b32', V(v_t), 6, 'v0'))
    a(nop(0))
    a(raw(f"v_readfirstlane_b32 s{s_w}, v{v_t}", 'valu', [f'v{v_t}'], [f's{s_w}']))
    lane, n16, g, tmp, tmp2, row, sw = range(v_t, v_t + 7)
    a(valu('v_and_b32', V(lane), 63, 'v0'))
    a(valu('v_lshlrev_b32', V(v_l16), 4, V(lane)))
    W = s_w; Pp = T + 7; QH = T + 8; HQ = s_hq; B = T + 1; ROT = T + 2
    def swz(dst, r): a(valu('v_and_b32', V(dst), 6, V(r)))
    a(valu('v_lshrrev_b32', V(row), 3, V(lane)))
    swz(sw, row)
    a(valu('v_and_b32', V(tmp), 7, V(lane))); a(valu('v_xor_b32', V(tmp), V(tmp), V(sw)))
    a(valu('v_lshlrev_b32', V(tmp), 4, V(tmp)))
    a(valu('v_mul_u32_u24', V(row), 1280, V(row)))
    a(valu('v_add_u32', V(v_dwx), V(tmp), V(row)))
    a(valu('v_add_u32', V(v_dwx + 1), 8 * 1280 - 1024, V(v_dwx)))
    a(valu('v_add_u32', V(v_dwx + 2), 2 * (8 * 1280 - 1024), V(v_dwx)))
    a(salu('s_mov_b32', S(s_tmp), 0xAAAAAAB))
    for j in range(3):
        a(valu('v_add_u32', V(tmp), 64 * j, V(lane)))
        a(valu('v_mul_hi_u32', V(row), V(tmp), S(s_tmp)))
        swz(sw, row)
        a(valu('v_lshlrev_b32', V(sw), 4, V(sw)))
        a(valu('v_xor_b32', V(v_dkv + j), V(v_l16), V(sw)))
        a(valu('v_mul_u32_u24', V(tmp2), 24, V(row))); a(valu('v_sub_u32', V(tmp), V(tmp), V(tmp2)))
        a(valu('v_lshlrev_b32', V(tmp), 4, V(tmp))); a(valu('v_xor_b32', V(tmp), V(tmp), V(sw)))
        a(valu('v_lshrrev_b32', V(tmp2), 2, V(row))); a(valu('v_lshl_add_u32', V(row), V(tmp2), 2, V(row)))
        a(valu('v_mul_u32_u24', V(row), 12288, V(row)))
        a(valu('v_add_u32', V(tmp), V(tmp), V(row)))
        a(valu('v_subrev_u32', V(v_dwq + j), 1024 * j, V(tmp)))
    a(salu('s_lshr_b32', S(Pp), S(W), 1)); a(salu('s_and_b32', S(QH), S(W), 1))
    a(salu('s_mul_i32', S(s_w6144), S(W), 6144))
    a(salu('s_lshl_b32', S(T + 3), S(HQ), 2)); a(salu('s_lshl_b32', S(T + 9), S(Pp), 1))
    a(salu('s_add_u32', S(T + 9), S(T + 9), S(T + 3)))
    a(salu('s_mul_i32', S(ROT), S(B), 5 * OPT['rot'])); a(salu('s_lshr_b32', S(ROT), S(ROT), 3))
    if OPT['rot2']:
        a(salu('s_and_b32', S(s_tmp), S(HQ), 1)); a(salu('s_mul_i32', S(s_tmp), S(s_tmp), 5))
        a(salu('s_add_u32', S(ROT), S(ROT), S(s_tmp)))
        a(scmp('s_cmp_ge_u32', S(ROT), 10)); a(salu('s_cselect_b32', S(s_tmp), 10, 0)); a(salu('s_sub_u32', S(ROT), S(ROT), S(s_tmp)))
    a(salu('s_mul_i32', S(s_wqb), S(T + 9), 384)); a(salu('s_mul_i32', S(s_tmp), S(QH), 4 * 12288))
    a(salu('s_add_u32', S(s_wqb), S(s_wqb), S(s_tmp)))
    a(salu('s_add_u32', S(s_wql), S(s_wqb), 640 * 12288))
    a(salu('s_mul_i32', S(s_rq), S(ROT), 64 * 12288))
    if OPT['rotq0']: a(salu('s_add_u32', S(s_wq), S(s_wqb), S(s_rq)))
    else: a(salu('s_mov_b32', S(s_wq), S(s_wqb)))
    a(salu('s_mul_i32', S(s_xb), S(B), 96)); a(salu('s_mul_i32', S(s_tmp), S(W), 24))
    a(salu('s_add_u32', S(s_xb), S(s_xb), S(s_tmp))); a(salu('s_mul_i32', S(s_xb), S(s_xb), 1280))
    a(salu('s_add_u32', S(s_xl), S(s_xb), 1280))
    a(salu('s_lshl_b32', S(T + 6), S(ROT), 7)); a(salu('s_mov_b32', S(s_rx), S(T + 6)))
    if OPT['rotq0']: a(salu('s_add_u32', S(s_x), S(s_xb), S(T + 6)))
    else: a(salu('s_mov_b32', S(s_x), S(s_xb)))
    a(salu('s_mul_i32', S(s_tmp), S(W), 3072)); a(salu('s_add_u32', S(s_xwr), S(s_tmp), XA))
    a(raw("s_waitcnt lgkmcnt(0)", 'wait'))
    for srd, p, n in ((sX, 68, 1966080), (sWQ, 74, 7864320)):
        a(salu('s_mov_b32', S(srd), S(p))); a(salu('s_mov_b32', S(srd + 1), S(p + 1)))
        a(salu('s_mov_b32', S(srd + 2), n)); a(salu('s_mov_b32', S(srd + 3), 0x20000))
    P2 = []; a = P2.append
    if OPT['cpf'] == 1:
        a(salu('s_lshr_b32', S(T), 's2', 3)); a(salu('s_lshl_b32', S(T), S(T), 2)); a(salu('s_add_u32', S(T), S(T), S(W)))
        a(salu('s_lshl_b32', S(T), S(T), 4))
        a(valu('v_and_b32', V(tmp), 15, V(lane))); a(valu('v_add_u32', V(tmp), S(T), V(tmp)))
        a(valu('v_lshlrev_b32', V(tmp), 7, V(tmp)))
        a(raw(f"v_min_u32 v{tmp}, L_code_end-L_go-4, v{tmp}", 'valu', [f'v{tmp}'], [f'v{tmp}']))
        a(I(f"global_load_dword v{v_t+10}, v{tmp}, s[{s_ret}:{s_ret+1}]", 'vload', [f'v{tmp}', f's{s_ret}', f's{s_ret+1}'], [f'v{v_t+10}'], tag=('cpf',)))
    for srd, p, n in ((sK, 70, 100663296), (sV, 72, 100663296), (sWO, 76, 7864320), (sWS, 78, 438042624)):
        a(salu('s_mov_b32', S(srd), S(p))); a(salu('s_mov_b32', S(srd + 1), S(p + 1)))
        a(salu('s_mov_b32', S(srd + 2), n)); a(salu('s_mov_b32', S(srd + 3), 0x20000))
    a(valu('v_and_b32', V(n16), 15, V(lane))); a(valu('v_lshrrev_b32', V(g), 4, V(lane)))
    a(salu('s_bfe_u32', S(T), 's2', 0x10002)); a(salu('s_lshl_b32', S(T), S(T), 4)); a(salu('s_add_u32', S(T), S(T), S(B)))
    a(salu('s_lshl_b32', S(T), S(T), 7)); a(salu('s_add_u32', S(T), S(T), FLAG_OFF))
    a(valu('v_and_b32', V(v_fa), 7, V(lane))); a(valu('v_lshl_add_u32', V(v_fa), V(v_fa), 2, S(T)))
    a(bload(V(v_fl), V(v_fa), S(sWS, 4), 0, 0, ('fl',), ' sc1', op='buffer_load_dword'))
    a(salu('s_lshl_b32', S(s_k), S(B), 5)); a(salu('s_add_u32', S(s_k), S(s_k), S(T + 9)))
    a(salu('s_mul_i32', S(s_k), S(s_k), 196608))
    a(salu('s_mul_i32', S(s_cnt), S(QH), 6144)); a(salu('s_add_u32', S(s_k), S(s_k), S(s_cnt)))
    a(salu('s_mov_b32', S(s_v), S(s_k)))
    a(salu('s_mul_i32', S(s_wob), S(T + 3), 192)); a(salu('s_mul_i32', S(s_wol), S(W), 48))
    a(salu('s_add_u32', S(s_wob), S(s_wob), S(s_wol))); a(salu('s_mul_i32', S(s_wob), S(s_wob), 1280))
    a(salu('s_add_u32', S(s_wol), S(s_wob), 1280))
    a(salu('s_add_u32', S(s_wo), S(s_wob), S(T + 6)))
    a(salu('s_mul_i32', S(s_ptb), 's2', PART_WG)); a(salu('s_mul_i32', S(T), S(W), 3072))
    a(salu('s_add_u32', S(s_ptb), S(s_ptb), S(T))); a(salu('s_add_u32', S(s_ptl), S(s_ptb), PART_WG))
    a(salu('s_mul_i32', S(T), S(ROT), 12288)); a(salu('s_add_u32', S(s_pt), S(s_ptb), S(T)))
    c = (192 ** -0.5) * math.log2(math.e)
    a(salu('s_mov_b32', S(s_c), struct.unpack('<I', struct.pack('<f', c))[0]))
    a(salu('s_mul_i32', S(T), S(Pp), 12288))
    swz(sw, n16)
    a(valu('v_xor_b32', V(tmp), V(g), V(sw))); a(valu('v_lshlrev_b32', V(tmp), 4, V(tmp)))
    a(valu('v_mul_u32_u24', V(tmp2), 384, V(n16))); a(valu('v_add3_u32', V(v_k), V(tmp), V(tmp2), S(T)))
    a(valu('v_xor_b32', V(v_k + 1), 64, V(v_k)))
    a(valu('v_add_u32', V(v_k + 2), 2 * SLOT, V(v_k))); a(valu('v_add_u32', V(v_k + 3), 2 * SLOT, V(v_k + 1)))
    a(salu('s_add_u32', S(s_cnt), S(s_cnt), XA))
    a(valu('v_lshlrev_b32', V(tmp2), 7, V(n16))); a(valu('v_add3_u32', V(v_x), V(tmp), V(tmp2), S(s_cnt)))
    a(valu('v_xor_b32', V(v_x + 1), 64, V(v_x)))
    a(valu('v_lshrrev_b32', V(row), 2, V(lane)))
    swz(sw, row)
    a(valu('v_bfe_u32', V(tmp), V(lane), 1, 1))
    a(valu('v_xor_b32', V(tmp), V(tmp), V(sw))); a(valu('v_lshlrev_b32', V(tmp), 4, V(tmp)))
    a(valu('v_and_b32', V(tmp2), 1, V(lane))); a(valu('v_lshl_add_u32', V(tmp), V(tmp2), 3, V(tmp)))
    a(valu('v_mul_u32_u24', V(tmp2), 384, V(row))); a(valu('v_add3_u32', V(v_v), V(tmp), V(tmp2), S(T)))
    for j in (1, 2, 3): a(valu('v_xor_b32', V(v_v + j), j << 5, V(v_v)))
    for j in range(4): a(valu('v_add_u32', V(v_v + 4 + j), 2 * SLOT, V(v_v + j)))
    a(valu('v_lshl_add_u32', V(v_p), V(row), 7, V(tmp)))
    a(salu('s_lshl_b32', S(T), S(Pp), 6))
    a(valu('v_xor_b32', V(v_p), S(T), V(v_p))); a(valu('v_xor_b32', V(v_p + 1), 32, V(v_p)))
    for j in range(2): a(valu('v_add_u32', V(v_p + 2 + j), 2 * SLOT, V(v_p + j)))
    a(valu('v_lshrrev_b32', V(tmp), 2, V(n16)))
    a(vcmp('v_cmp_eq_u32', V(tmp), V(g)))
    a(valu('v_and_b32', V(tmp2), 1, V(n16))); a(valu('v_lshlrev_b32', V(tmp2), 4, V(tmp2)))
    a(salu('s_mov_b32', S(T), 0x3F80))
    a(valu('v_lshlrev_b32', V(tmp2), V(tmp2), S(T)))
    a(valu('v_cndmask_b32', V(tmp2), 0, V(tmp2)))
    a(valu('v_and_b32', V(tmp), 2, V(n16)))
    a(vcmp('v_cmp_eq_u32', 0, V(tmp)))
    a(valu('v_cndmask_b32', V(row), 0, V(tmp2)))
    a(valu('v_sub_u32', V(sw), V(tmp2), V(row)))
    for r in (240, 241, 244, 245): a(valu('v_accvgpr_write_b32', A(r), 0))
    a(valu('v_accvgpr_write_b32', A(242), V(row))); a(valu('v_accvgpr_write_b32', A(243), V(sw)))
    if OPT['pf']:
        a(salu('s_lshr_b32', S(T), 's2', 3)); a(salu('s_lshl_b32', S(T), S(T), 2))
        a(salu('s_and_b32', S(s_cnt), 's2', 3)); a(salu('s_add_u32', S(T), S(T), S(s_cnt)))
        a(salu('s_lshl_b32', S(T), S(T), 2)); a(salu('s_add_u32', S(T), S(T), S(W)))
        a(salu('s_mul_i32', S(s_cnt), S(T), 120))
        a(valu('v_add_u32', V(38), S(s_cnt), V(lane))); a(valu('v_lshlrev_b32', V(38), 7, V(38)))
        a(valu('v_add_u32', V(39), 8192, V(38)))
        a(salu('s_mul_i32', S(s_cnt), S(T), 60))
        a(valu('v_add_u32', V(tmp), S(s_cnt), V(lane)))
        a(salu('s_mov_b32', S(s_cnt), 0x5555556))
        a(valu('v_mul_hi_u32', V(row), V(tmp), S(s_cnt)))
        a(valu('v_mul_u32_u24', V(tmp2), 48, V(row))); a(valu('v_sub_u32', V(tmp), V(tmp), V(tmp2)))
        a(valu('v_mul_u32_u24', V(tmp2), 86, V(tmp))); a(valu('v_lshrrev_b32', V(tmp2), 8, V(tmp2)))
        a(valu('v_mul_u32_u24', V(row), 12288, V(row)))
        a(valu('v_lshl_add_u32', V(row), V(tmp), 7, V(row)))
        a(valu('v_mul_u32_u24', V(tmp2), 384, V(tmp2)))
        a(valu('v_add_u32', V(row), V(row), V(tmp2))); a(valu('v_add_u32', V(37), 384, V(row)))
    a(valu('v_add_u32', V(v_pw), S(s_w6144), V(v_l16)))
    a(salu('s_mul_i32', S(s_ew), S(W), EXW)); a(salu('s_add_u32', S(s_ew), S(s_ew), XA))
    a(scmp('s_cmp_eq_u32', S(W), 3)); a(salu('s_cselect_b32', S(s_ew), 3 * SLOT, S(s_ew)))
    a(salu('s_mul_i32', S(s_er0), S(QH), EXW)); a(salu('s_add_u32', S(s_er0), S(s_er0), XA))
    a(salu('s_mov_b32', S(s_er1), XA + 2 * EXW)); a(scmp('s_cmp_eq_u32', S(QH), 1)); a(salu('s_cselect_b32', S(s_er1), 3 * SLOT, S(s_er1)))
    return P, [x for x in P2 if x is not None]

def make_seq(kind):
    seq = []
    def Q(r, accA=False): return [Slot('Q', j=j, rnd=r, accA=accA) for j in range(20)]
    def Aa(r):
        if not (OPT['pipe'] and f'{kind[0]}{r}' in OPT['pipes']):
            return [Slot(t, i=i, rnd=r, first=(i == 0), pipe=False) for i in range(16) for t in 'KV']
        o = [('K', 0)]
        for i in range(15): o += [('K', i + 1), ('V', i)]
        o.append(('V', 15))
        return [Slot(t, i=i, rnd=r, first=(i == 0), pipe=True) for t, i in o]
    def Pp(r): return [Slot('P', j=j, rnd=r, nh=2, ch=j // 2, hh=j % 2) for j in range(20)]
    def P4(): return [Slot('P', j=j, rnd=1, nh=4, ch=j // 4, hh=j % 4) for j in range(40)]
    if kind == 'X': seq = Q(0) + Aa(0) + Pp(0) + Q(1) + Aa(1) + Pp(1)
    elif kind == 'W': seq = Q(0) + Q(1) + Aa(0) + Aa(1) + P4()
    elif kind == 'Y': seq = Q(0) + Q(1) + Aa(0) + Pp(0) + Aa(1) + Pp(1)
    elif kind == 'Z': seq = Q(0) + Aa(0) + Q(1) + Aa(1) + P4()
    elif kind in 'IJ':
        q1 = Q(1, True); seq = Q(0); k = 0
        for i in range(16):
            nq = int(OPT['jpat'].strip()[i])
            seq += [Slot('K', i=i, rnd=0, first=(i == 0), pipe=False)] + q1[k:k + nq] + [Slot('V', i=i, rnd=0, first=(i == 0), pipe=False)]
            k += nq
        assert k == 20
        seq += (Aa(1) + P4()) if kind == 'I' else (Pp(0) + Aa(1) + Pp(1))
    elif kind[0] in 'FG':
        k = int(kind[1:]); assert k % 2 == 0 and 2 <= k <= 14
        a0 = Aa(0)
        seq = Q(0) + a0[:2 * k] + Q(1, True) + a0[2 * k:]
        seq += (Aa(1) + P4()) if kind[0] == 'F' else (Pp(0) + Aa(1) + Pp(1))
    for n, s in enumerate(seq): s.idx = n
    q = -1
    for s in seq:
        if s.typ == 'Q':
            if s.j % 4 == 0: q += 1
            s.xq = q
    return seq

def flat(items):
    o = []
    for it in items: o += flat(it) if isinstance(it, list) else [it]
    return o

def build_main(kind, stamps, pro2):
    seq = make_seq(kind)
    N = len(seq)
    for s in seq: build_mfmas(s)
    pfplan = {}
    def plan_pf(first, count, regs, at):
        for k in range(count):
            seq[first + k].pfreg = regs[k]
            pfplan.setdefault(at + k * OPT['pfstep'], []).append(seq[first + k])
    if kind == 'J': plan_pf(20, OPT['pfx0'], [24 * k for k in range(6)], OPT['pfat'])
    if kind == 'W' and OPT['pfw1']: plan_pf(40, OPT['pfw1'], [72, 96, 120], OPT['pfat'])
    if kind == 'X':
        plan_pf(20, OPT['pfx0'], [24 * k for k in range(6)], OPT['pfat'])
        plan_pf(92, OPT['pfx1'], [144, 168, 192, 120], 54 + OPT['pfat'])
    if kind == 'W': plan_pf(40, OPT['pfw0'], [72, 96, 120], 20 + OPT['pfat'])
    head = flat(x_items(seq[0])[:6]) + flat(dma_items(seq[0]))
    head += pro2
    head.append(I('', 'split'))
    head += flat(dma_items(seq[1])) + flat(x_items(seq[0])[6:]) + flat(dma_items(seq[2]))
    head.append(barrier(need=[('d', 0), ('xd', 0, 0 if OPT['xtag'] else 1)]))
    head += x_reads(seq[0])
    for j in range(5): head += frag_reads(seq[0], j)
    nstamp = 0
    fine = stamps and OPT['sp0'] >= 0
    if stamps: head = ([] if OPT['st0'] else stamp(0)) + [raw("s_memtime s[96:97]", 'smem')] + head + stamp(1); nstamp = 2
    post = []
    if fine:
        stamps = False
        for k in range(5 if OPT['cyc'] == 2 else 11):
            if OPT['sp0'] + k * OPT['spd'] < N:
                if OPT['cyc'] == 2:
                    seq[OPT['sp0'] + k * OPT['spd']].put(0, [raw(f"s_memrealtime s[{s_stamp+2*nstamp}:{s_stamp+2*nstamp+1}]", 'smem'),
                                                             raw(f"s_memtime s[{s_stamp+2*nstamp+2}:{s_stamp+2*nstamp+3}]", 'smem')]); nstamp += 2
                else:
                    seq[OPT['sp0'] + k * OPT['spd']].put(0, stamp(nstamp)); nstamp += 1
    if OPT['pf']:
        for k, (vr, srd) in enumerate(((37, sWQ), (38, sWO), (39, sWO))):
            seq[OPT['pfs'] + k * OPT['pfd']].put(21, bload(V(111), V(vr), S(srd, 4), 0, 0, ('pf', k), '', op='buffer_load_dword'))
    wp = OPT['wper']
    for n, s in enumerate(seq):
        nx = seq[n + 1] if n + 1 < N else None
        pv = seq[n - 1] if n else None
        for j in range(wp, 9, wp): s.load[3 * j - 1] += 1
        s.load[35] += 1
        for j in range(5, 12):
            for k, r in enumerate(frag_reads(s, j)): s.put(3 * (j - 5) + k, r)
        if nx is not None:
            need = [('f', s.idx, 11), ('d', nx.idx)] + ([('xd', nx.xq, (nx.j % 4) // 2 if OPT['xtag'] else 1)] if nx.typ == 'Q' and nx.j % 2 == 0 else [])
            s.put(26, barrier(need=need)); s.load[26] += 1
            if nx.typ == 'Q' and nx.j % 4 == 0 and nx.idx > 0:
                s.put(24, valu('v_xor_b32', V(v_x), XTOG, V(v_x))); s.put(25, valu('v_xor_b32', V(v_x + 1), XTOG, V(v_x + 1)))
            rr = [frag_reads(nx, j) for j in range(5)]
            xr = x_reads(nx) if nx.typ == 'Q' else []
            if s.typ == 'K' and s.pipe and xr: nx.pre += xr; xr = []
            spread([(s, g) for g in range(27, 32)], flat(rr[0] + xr[:1] + rr[1] + xr[1:] + rr[2]))
            spread([(s, g) for g in range(30, 34)], rr[3])
            spread([(s, g) for g in range(32, 36)], rr[4])
        def lead_of(t): return LEAD - OPT['ld'] if (kind == 'W' and OPT['la'] <= t < OPT['lb']) else LEAD
        its = []
        for t in range(n + 1, min(N, n + LEAD + 1)):
            if t >= LEAD and t - lead_of(t) == n: its = its + dma_items(seq[t])
        if n + 4 < N and seq[n + 4].typ == 'Q' and seq[n + 4].j % 4 == 0: its = its + x_items(seq[n + 4])[:6]
        if n + 3 < N and n >= 1 and seq[n + 3].typ == 'Q' and seq[n + 3].j % 4 == 0: its = its + x_items(seq[n + 3])[6:]
        for p in pfplan.get(n, []): its = its + prefill_loads(p)
        s.dma = its
        s.early = bool(s.typ == 'V' and OPT['early'] and its and not s.pipe and pv.typ == 'K')
    for n, s in enumerate(seq):
        nx = seq[n + 1] if n + 1 < N else None
        pv = seq[n - 1] if n else None
        if OPT['edef'] and pv is not None and pv.typ == 'V' and pv.i == 15:
            spread([(s, g) for g in range(27, 36)], s.dma[:4]); nx.dma = s.dma[4:] + nx.dma
        elif not s.early: spread([(s, g) for g in range(0, OPT['dend'])], s.dma, even=True)
        if s.typ == 'K' and stamps and s.i == 8 and not (kind[0] in 'FG' and s.rnd == 0): s.pre = stamp(nstamp) + s.pre; nstamp += 1
        if s.typ in 'KV' and s.pipe:
            if s.typ == 'K' and s.i == 0:
                SB[0] = 0
                nx.pre += softmax_init() + sm_fma(0) + sm_fma(1)
            elif s.typ == 'K':
                SB[0] = (s.i - 1) & 1
                ex, tail = sm_exp()
                spread([(s, g) for g in range(0, 35)], ex + tail)
            elif s.i < 15:
                SB[0] = (s.i + 1) & 1
                spread([(s, g) for g in range(3, 36)], sm_fmamax(0) + sm_fmamax(1), even=True)
                nx.pre += sm_check()
                if s.i == 14:
                    ex, tail = sm_exp()
                    nx.pre += ex
                    spread([(nx, g) for g in range(0, 6)], tail)
        elif s.typ == 'K':
            SB[0] = 0
            ex, tail = sm_exp()
            if s.first: rest = softmax_init() + sm_fma(0) + sm_fma(1) + ex
            else:
                spread([(s, g) for g in range(20, 36)], sm_fmamax(0))
                rest = sm_fmamax(1) + sm_check() + ex
            if nx.typ == 'Q':
                ws = []; k2 = n + 1
                while seq[k2].typ == 'Q': ws.append(seq[k2]); k2 += 1
                for w_ in ws:
                    spread([(w_, g) for g in range(0, OPT['dend'])], w_.dma, even=True); w_.dma = []
                spread([(w_, g) for w_ in ws for g in range(36)][3:-2], rest + tail)
                continue
            if nx.early:
                d = list(nx.dma); o = d[:2]; d = d[2:]
                step = max(1, len(rest) // (len(d) + 1))
                for k2, it in enumerate(rest):
                    o.append(it)
                    if k2 % step == step - 1 and d: o.append(d.pop(0))
                rest = o + d
            nx.pre += rest
            spread([(nx, g) for g in range(0, 6)], tail)
        if s.typ == 'Q' and s.accA and stamps and s.j in (0, 19) and kind not in 'IJ':
            if s.j == 0: s.pre += stamp(nstamp)
            else: nx.pre = stamp(nstamp) + nx.pre
            nstamp += 1
        if s.typ == 'Q' and s.j == 19 and not s.accA:
            dest = aQN if (kind in 'WY' and s.rnd == 1) else aQ
            cv = [q_convert_u(u, dest) for u in range(6)]
            k0 = 0
            if OPT['ovl']:
                spread([(s, g) for g in range(9, 20)], cv[0]); spread([(s, g) for g in range(20, 36)], cv[1]); k0 = 2
            nx.pre = flat(cv[k0:]) + nx.pre
            if stamps: nx.pre = nx.pre + stamp(nstamp); nstamp += 1
        if s.typ == 'V' and s.i == 15:
            pre = []
            if stamps: pre += stamp(nstamp); nstamp += 1
            toA = (kind[0] in 'WZFI' and s.rnd == 0)
            if kind in 'WY' and s.rnd == 0: pre += [valu('v_accvgpr_mov_b32', A(aQ + k), A(aQN + k)) for k in range(72)]
            k0 = 0
            if OPT['ovl']:
                spread([(s, g) for g in range(6, 14)], e_head())
                spread([(s, g) for g in range(14, 36)], [i for i in e_pack(0, s.rnd, False) if i.k != 'ds'], cap=2)
                pre += [i for i in e_pack(0, s.rnd, False) if i.k == 'ds']
                k0 = 1
            else: pre += e_head()
            if kind[0] in 'FGIJ' and s.rnd == 0:
                for u in range(6): pre += q_convert_a(u)
            for u in range(k0, 6): pre += e_pack(u, s.rnd, True)
            pre.append(barrier(need=[('ew', s.rnd)]))
            er = e_reads(s.rnd, toA)
            if OPT['edef']:
                nfirst = 0 if toA else 6
                pre += er[:nfirst]
                spread([(nx, g) for g in range(0, 24)], er[nfirst:])
                for it in nx.gaps[26]:
                    if it[0].k == 'barrier': it[0].need.append(('er', s.rnd, 1, 17))
                if not toA:
                    for k2 in range(2):
                        ps = seq[n + 1 + (k2 if nx.nh == 2 else 2 + k2)]
                        for u in range(6): ps.mf[6 * u].need = list(ps.mf[6 * u].need) + [('er', s.rnd, k2, 3 * u + 2)]
            else:
                pre += er
                pre.append(barrier(need=[('er', s.rnd, 1, 17)]))
            if stamps: pre += stamp(nstamp); nstamp += 1
            nx.pre = pre + nx.pre
        if s.typ == 'P':
            if s.hh == 0 and s.rnd == 1 and s.nh == 2 and (s.ch < 2 or not OPT['vinit']): s.pre += chunk_init(s.ch)
            if s.hh == s.nh - 1:
                hold = OPT['hold'] if s.nh == 4 else 0
                ce = chunk_end(s.ch, s.rnd == 1, s.ch < hold)
                if s.nh == 4 and OPT['nost']: ce = [i for i in ce if not (isinstance(i, I) and i.k == 'vstore')]
                if s.ch >= hold > 0:
                    per = -(-hold // (10 - hold)); k0 = (s.ch - hold) * per
                    for c2 in range(k0, min(hold, k0 + per)): ce = ce + flush_held(c2)
                if s.ch == 9:
                    if stamps: ce = ce + stamp(nstamp); nstamp += 1
                    if nx is None: post += ce
                    else: nx.pre = ce + nx.pre
                else:
                    if s.rnd == 1 and s.nh == 2 and OPT['vinit'] and s.ch < 8:
                        ini = chunk_init_valu(s.ch + 2)
                        ce = ce[:15] + interleave(ce[15:], ini[:3]) + ini[3:]
                    spread([(seq[n + 1 + k], g) for k in range(s.nh) for g in range(36)][3:-3], ce, even=True)
    if OPT['fuse']:
        seq[-1].put(OPT['pollgap'], bload(V(v_poll), V(v_fa), S(sWS, 4), 0, 0, ('poll',), ' sc1', op='buffer_load_dword'))
        seq[-1].put(30, raw("s_load_dwordx4 s[60:63], s[0:1], 80", 'smem'))
        post.append(waitfor([('poll',)]))
    prog = list(head)
    for s in seq:
        prog.append(mark('m'))
        prog += flat(s.pre)
        for k in range(36):
            prog.append(s.mf[k]); prog += flat(s.gaps[k])
    prog.append(mark('m'))
    prog += flat(post)
    return prog, nstamp

def stamp_out(nstamp):
    o = ["s_waitcnt vmcnt(0) lgkmcnt(0)"]
    o.append(f"s_memrealtime s[{s_stamp+2*nstamp}:{s_stamp+2*nstamp+1}]")
    o.append(f"s_memtime s[98:99]")
    o.append("s_waitcnt lgkmcnt(0)")
    o.append(f"s_lshl_b32 s{s_tmp}, s2, 8")
    o.append(f"s_lshl_b32 s{s_cnt}, s{s_w}, 6")
    o.append(f"s_add_u32 s{s_tmp}, s{s_tmp}, s{s_cnt}")
    o.append(f"s_add_u32 s{s_tmp}, s{s_tmp}, {STAMP_OFF}")
    o.append("v_mov_b32 v1, 0")
    for n in range(nstamp + 1):
        o.append(f"v_mov_b32 v2, s{s_stamp+2*n}")
        o.append(f"buffer_store_dword v2, v1, s[{sWS}:{sWS+3}], s{s_tmp} offen offset:{4*n}")
    o.append(f"s_sub_u32 s{s_cnt}, s98, s96")
    o.append(f"v_mov_b32 v2, s{s_cnt}")
    o.append(f"buffer_store_dword v2, v1, s[{sWS}:{sWS+3}], s{s_tmp} offen offset:60")
    o.append(f"v_mov_b32 v2, {nstamp+1}")
    o.append(f"buffer_store_dword v2, v1, s[{sWS}:{sWS+3}], s{s_tmp} offen offset:56")
    return o

FLAG_OFF = STAMP_OFF + 65536
v_fl = 109; v_fa = 110
def red_loads(a, bases, hq, ldfl, vb):
    off = (((hq & 1) << 3) | (hq >> 1)) * PART_WG
    for k, bs in enumerate(bases):
        r = vb + (k * 8 + hq) * 4
        a(f"s_add_u32 s{s_t0+1}, s{bs}, {off}")
        a(f"buffer_load_dwordx4 v[{r}:{r+3}], v{v_l16}, s[{sWS}:{sWS+3}], s{s_t0+1} offen{ldfl}")
def red_outaddr(a, f, dst, br, b):
    t = s_t0
    a(f"s_mul_hi_u32 s{t}, s{f}, 0x15555556")
    a(f"s_mul_i32 s{t+1}, s{t}, 12"); a(f"s_sub_u32 s{t+1}, s{f}, s{t+1}")
    a(f"s_mul_hi_u32 s{t+2}, s{t+1}, 0x55555556")
    a(f"s_mul_i32 s{t+3}, s{t+2}, 3"); a(f"s_sub_u32 s{t+3}, s{t+1}, s{t+3}")
    a(f"s_and_b32 s{dst}, s{t+2}, 1"); a(f"s_mul_i32 s{dst}, s{dst}, 48"); a(f"s_lshl_b32 s{t+3}, s{t+3}, 4")
    a(f"s_add_u32 s{dst}, s{dst}, s{t+3}")
    a(f"s_mul_i32 s{t+3}, s{b}, 96"); a(f"s_add_u32 s{dst}, s{dst}, s{t+3}")
    a(f"s_mul_i32 s{dst}, s{dst}, 2560")
    a(f"s_mul_i32 s{t+3}, s{br}, 1280"); a(f"s_add_u32 s{dst}, s{dst}, s{t+3}")
    a(f"s_lshl_b32 s{t+3}, s{t}, 7"); a(f"s_add_u32 s{dst}, s{dst}, s{t+3}")
    a(f"s_lshr_b32 s{t+3}, s{t+2}, 1"); a(f"s_lshl_b32 s{t+3}, s{t+3}, 6"); a(f"s_add_u32 s{dst}, s{dst}, s{t+3}")
def red_sum(a, nf, outs, vb):
    for k in range(nf):
        ac = 64 + 8 * (k % 2)
        for hq in range(8):
            for q in range(4):
                r = vb + (k * 8 + hq) * 4 + q
                if hq == 0:
                    a(f"v_lshlrev_b32 v{ac+q}, 16, v{r}"); a(f"v_and_b32 v{ac+4+q}, 0xffff0000, v{r}")
                else:
                    a(f"v_lshlrev_b32 v4, 16, v{r}"); a(f"v_and_b32 v{r}, 0xffff0000, v{r}")
                    a(f"v_add_f32 v{ac+q}, v{ac+q}, v4"); a(f"v_add_f32 v{ac+4+q}, v{ac+4+q}, v{r}")
        o = 48 + 4 * k
        for q in range(4): a(f"v_cvt_pk_bf16_f32 v{o+q}, v{ac+q}, v{ac+4+q}")
        a("s_nop 1")
        a(f"v_permlane32_swap_b32 v{o}, v{o+2}"); a(f"v_permlane32_swap_b32 v{o+1}, v{o+3}")
        a("s_nop 1")
        a(f"v_permlane16_swap_b32 v{o}, v{o+2}"); a(f"v_permlane16_swap_b32 v{o+1}, v{o+3}")
        a("s_nop 1")
        a(f"buffer_store_dwordx4 v[{o}:{o+3}], v2, s[{sK}:{sK+3}], s{outs[k]} offen{OPT['outst']}")

v_poll = 39
def fused_reduce(stamps=False):
    L = []; a = L.append
    def st(n):
        if stamps: a(f"s_memrealtime s[{s_stamp+2*n}:{s_stamp+2*n+1}]")
    sD = sV
    br, b, pb, done, last, it, new, slc, vw, extra, pend, stage = 28, 29, 30, 31, 32, 33, 34, 35, 36, 37, 46, 47
    fs = [38, 39, 40, 41]; bases = [42, 43, 44, 45]; outs = [12, 13, 14, 15]
    a("L_red:")
    a(f"v_cmp_ne_u32 vcc, v{v_poll}, v{v_fl}")
    a(f"s_bfe_u32 s{br}, s2, 0x10002"); a(f"s_lshr_b32 s{b}, s2, 4")
    a(f"s_lshl_b32 s{pb}, s{b}, 4"); a(f"s_lshl_b32 s{it}, s{br}, 2"); a(f"s_add_u32 s{pb}, s{pb}, s{it}")
    a(f"s_mul_i32 s{pb}, s{pb}, {PART_WG}")
    a(f"s_mov_b32 s{slc}, s{s_hq}"); a(f"s_mov_b32 s{vw}, s{s_w}"); a(f"s_mov_b32 s{last}, 0"); a(f"s_mov_b32 s{extra}, 0")
    a(f"s_lshl_b32 s{stage}, 1, s{s_hq}")
    a(f"s_andn2_b32 s{new}, vcc_lo, s{stage}"); a(f"s_and_b32 s48, s{new}, 0xff")
    a(f"s_mov_b32 s{new}, 0")
    for _ in range(OPT['pre']):
        a(f"s_sub_u32 s49, 0, s48"); a("s_and_b32 s49, s49, s48")
        a(f"s_or_b32 s{new}, s{new}, s49"); a("s_xor_b32 s48, s48, s49")
    a("L_red_setup:")
    a(f"s_mul_i32 s{it}, s{slc}, 15")
    for k in range(4):
        a(f"s_add_u32 s{fs[k]}, s{vw}, {4*k}")
        if k == 3: a(f"s_min_u32 s{fs[k]}, s{fs[k]}, 14")
        a(f"s_add_u32 s{fs[k]}, s{fs[k]}, s{it}")
        a(f"s_lshl_b32 s{bases[k]}, s{fs[k]}, 10"); a(f"s_add_u32 s{bases[k]}, s{bases[k]}, s{pb}")
    a(f"s_mov_b32 s{done}, 0"); a(f"s_mov_b32 s{it}, 0"); a(f"s_mov_b32 s{pend}, 0")
    a("L_red_issue:")
    for hq in range(8):
        a(f"s_bitcmp1_b32 s{new}, {hq}"); a(f"s_cbranch_scc0 L_red_s{hq}")
        red_loads(a, bases, hq, OPT['rld'], 112)
        a(f"L_red_s{hq}:")
    a(f"s_or_b32 s{s_t0}, s{stage}, s{it}"); a("s_cbranch_scc1 L_red_nset")
    a(f"v_lshrrev_b32 v3, 4, v{v_l16}")
    a("v_and_b32 v2, 15, v3"); a("v_mul_u32_u24 v2, 2560, v2")
    a("v_lshrrev_b32 v3, 4, v3"); a("v_lshl_add_u32 v2, v3, 4, v2")
    for k in range(4): red_outaddr(a, fs[k], outs[k], br, b)
    for r in range(64, 96): a(f"v_mov_b32 v{r}, 0")
    a(f"s_mov_b32 s{it}, 1")
    a("L_red_nset:")
    a(f"s_or_b32 s{done}, s{done}, s{new}"); a(f"s_or_b32 s{pend}, s{pend}, s{new}")
    a(f"s_cmp_eq_u32 s{stage}, 0"); a("s_cbranch_scc1 L_red_norm")
    a(f"s_lshl_b32 s{s_t0}, s{br}, 4"); a(f"s_add_u32 s{s_t0}, s{s_t0}, s{b}"); a(f"s_lshl_b32 s{s_t0}, s{s_t0}, 2")
    a(f"v_mov_b32 v6, s{s_t0}")
    a("s_waitcnt lgkmcnt(0)")
    a(f"s_mov_b32 s{sK}, s60"); a(f"s_mov_b32 s{sK+1}, s61"); a(f"s_mov_b32 s{sK+2}, 3932160"); a(f"s_mov_b32 s{sK+3}, 0x20000")
    a(f"s_mov_b32 s{sD}, s62"); a(f"s_mov_b32 s{sD+1}, s63"); a(f"s_mov_b32 s{sD+2}, 256"); a(f"s_mov_b32 s{sD+3}, 0x20000")
    a(f"s_bcnt1_i32_b32 s{s_t0}, s{new}")
    for k in range(OPT['pre'], 0, -1):
        a(f"s_cmp_lt_u32 s{s_t0}, {k}"); a(f"s_cbranch_scc1 L_red_w{k-1}")
        a(f"s_waitcnt vmcnt({4*k})"); a("s_branch L_red_bar")
        a(f"L_red_w{k-1}:")
    a("s_waitcnt vmcnt(0)")
    a("L_red_bar:")
    a("s_barrier")
    st(8)
    a(f"s_or_b32 s{new}, s{stage}, s48"); a(f"s_mov_b32 s49, s{stage}"); a(f"s_mov_b32 s{stage}, 0")
    a(f"s_cmp_lg_u32 s{s_w}, 0"); a("s_cbranch_scc1 L_red_issue")
    a(f"s_mov_b32 exec_lo, s49"); a("s_mov_b32 exec_hi, 0")
    a(f"v_add_u32 v8, 1, v{v_fl}")
    a(f"buffer_store_dword v8, v{v_fa}, s[{sWS}:{sWS+3}], 0 offen sc1")
    a("v_mov_b32 v7, 1")
    a(f"buffer_atomic_add v7, v6, s[{sD}:{sD+3}], 0 offen sc0")
    a("s_mov_b64 exec, -1")
    a("s_branch L_red_issue")
    a("L_red_norm:")
    a(f"s_cmp_eq_u32 s{done}, 0xff"); a("s_cbranch_scc1 L_red_wait")
    a("L_red_poll:")
    a(f"buffer_load_dword v{v_poll}, v{v_fa}, s[{sWS}:{sWS+3}], 0 offen sc1")
    a(f"s_add_u32 s{it}, s{it}, 1")
    a("L_red_wait:")
    st(10)
    a("s_waitcnt vmcnt(0)")
    st(11)
    for hq in range(8):
        a(f"s_bitcmp1_b32 s{pend}, {hq}"); a(f"s_cbranch_scc0 L_red_a{hq}")
        for k in range(4):
            r = 112 + (k * 8 + hq) * 4; ac = 64 + 8 * k
            a(f"v_mfma_f32_16x16x32_bf16 v[{ac}:{ac+3}], a[{aE0}:{aE0+3}], v[{r}:{r+3}], v[{ac}:{ac+3}]")
            a(f"v_mfma_f32_16x16x32_bf16 v[{ac+4}:{ac+7}], a[{aE1}:{aE1+3}], v[{r}:{r+3}], v[{ac+4}:{ac+7}]")
        a(f"L_red_a{hq}:")
    a(f"s_mov_b32 s{pend}, 0")
    a(f"s_cmp_eq_u32 s{done}, 0xff"); a("s_cbranch_scc1 L_red_sum")
    a(f"v_cmp_ne_u32 vcc, v{v_poll}, v{v_fl}")
    a("s_nop 4")
    a(f"s_andn2_b32 s{new}, vcc_lo, s{done}"); a(f"s_and_b32 s{new}, s{new}, 0xff")
    a("s_cbranch_scc1 L_red_issue")
    a(f"s_sleep {OPT['sleep']}")
    a(f"s_and_b32 s{s_t0}, s{it}, {OPT['cper'] - 1}"); a("s_cbranch_scc1 L_red_poll")
    a("s_mov_b64 exec, 1")
    a(f"s_cmp_lt_u32 s{it}, {OPT['polls']}"); a("s_cbranch_scc1 L_red_cnt")
    a(f"s_lshl_b32 s{new}, 1, s{s_hq}")
    a(f"v_mov_b32 v8, s{new}")
    a(f"buffer_atomic_or v8, v6, s[{sD}:{sD+3}], 0 offen offset:128 sc0")
    a("s_waitcnt vmcnt(0)")
    a("L_red_cnt:")
    a("v_mov_b32 v8, 0")
    a(f"buffer_atomic_add v8, v6, s[{sD}:{sD+3}], 0 offen sc0")
    a("s_waitcnt vmcnt(0)")
    a(f"v_readfirstlane_b32 s{s_t0}, v8")
    a("s_mov_b64 exec, -1")
    a(f"s_andn2_b32 s{new}, 0xff, s{done}")
    a("s_nop 2")
    a(f"s_cmp_eq_u32 s{s_t0}, 8"); a("s_cbranch_scc1 L_red_issue")
    a(f"s_cmp_lt_u32 s{it}, {OPT['polls']}"); a("s_cbranch_scc1 L_red_poll")
    a("s_branch L_red_next")
    a("L_red_sum:")
    a(f"s_or_b32 s{s_t0}, s{s_w}, s{last}"); a("s_cbranch_scc1 L_red_sum2")
    a("s_mov_b64 exec, 1")
    a("v_mov_b32 v9, 0")
    a(f"buffer_atomic_or v9, v6, s[{sD}:{sD+3}], 0 offen offset:128 sc0")
    a("s_mov_b64 exec, -1")
    a("L_red_sum2:")
    a("s_nop 7")
    for k in range(4):
        for q in range(4): a(f"v_cvt_pk_bf16_f32 v{48+4*k+q}, v{64+8*k+2*q}, v{65+8*k+2*q}")
    for op in ("v_permlane32_swap_b32", "v_permlane16_swap_b32"):
        for k in range(4):
            o = 48 + 4 * k
            a(f"{op} v{o}, v{o+2}"); a(f"{op} v{o+1}, v{o+3}")
    a("s_nop 1")
    for k in range(4):
        a(f"buffer_store_dwordx4 v[{48+4*k}:{51+4*k}], v2, s[{sK}:{sK+3}], s{outs[k]} offen{OPT['outst']}")
    a("L_red_next:")
    a(f"s_cmp_lg_u32 s{s_w}, 0"); a("s_cbranch_scc1 L_red_done")
    a(f"s_cmp_lg_u32 s{last}, 0"); a("s_cbranch_scc1 L_red_more")
    a("s_waitcnt vmcnt(0)")
    a(f"v_readlane_b32 s{last}, v7, s{s_hq}")
    a(f"v_readlane_b32 s{extra}, v9, 0")
    a("s_nop 3")
    a(f"s_cmp_eq_u32 s{last}, 7"); a("s_cbranch_scc0 L_red_done")
    a(f"s_mov_b32 s{vw}, 3")
    a("L_red_more:")
    a(f"s_add_u32 s{vw}, s{vw}, 1"); a(f"s_and_b32 s{vw}, s{vw}, 3"); a("s_cbranch_scc1 L_red_go")
    a(f"s_cmp_eq_u32 s{extra}, 0"); a("s_cbranch_scc1 L_red_done")
    a(f"s_ff1_i32_b32 s{slc}, s{extra}"); a(f"s_bitset0_b32 s{extra}, s{slc}")
    a("L_red_go:")
    a(f"s_mov_b32 s{new}, 0xff")
    a("s_nop 7")
    a("s_branch L_red_setup")
    a("L_red_done:")
    return L

def reduce_kernel():
    L = []; a = L.append
    a("s_cmp_ge_u32 s2, 960"); a("s_cbranch_scc1 R_end")
    a("s_load_dwordx2 s[12:13], s[0:1], 96"); a("s_load_dwordx2 s[14:15], s[0:1], 80")
    a("v_lshrrev_b32 v1, 6, v0"); a("s_nop 0"); a("v_readfirstlane_b32 s3, v1")
    a("v_and_b32 v3, 63, v0")
    a("s_nop 2")
    a("s_lshl_b32 s16, s2, 2"); a("s_add_u32 s16, s16, s3")
    a("s_mul_hi_u32 s17, s16, 0x2222223")
    a("s_mul_i32 s18, s17, 120"); a("s_sub_u32 s34, s16, s18")
    a("s_lshr_b32 s28, s17, 4"); a("s_and_b32 s29, s17, 15")
    a("s_lshl_b32 s30, s29, 4"); a("s_lshl_b32 s22, s28, 2"); a("s_add_u32 s30, s30, s22")
    a(f"s_mul_i32 s30, s30, {PART_WG}")
    a(f"v_lshlrev_b32 v{v_l16}, 4, v3")
    a("v_and_b32 v2, 15, v3"); a("v_mul_u32_u24 v2, 2560, v2")
    a("v_lshrrev_b32 v3, 4, v3"); a("v_lshl_add_u32 v2, v3, 4, v2")
    a("s_waitcnt lgkmcnt(0)")
    a(f"s_mov_b32 s{sWS}, s12"); a(f"s_mov_b32 s{sWS+1}, s13"); a(f"s_mov_b32 s{sWS+2}, 438042624"); a(f"s_mov_b32 s{sWS+3}, 0x20000")
    a(f"s_mov_b32 s{sK}, s14"); a(f"s_mov_b32 s{sK+1}, s15"); a(f"s_mov_b32 s{sK+2}, 3932160"); a(f"s_mov_b32 s{sK+3}, 0x20000")
    a("s_lshl_b32 s42, s34, 10"); a("s_add_u32 s42, s42, s30")
    for hq in range(8): red_loads(a, [42], hq, "", 8)
    red_outaddr(a, 34, 12, 28, 29)
    a("s_waitcnt vmcnt(0)")
    red_sum(a, 1, [12], 8)
    a("R_end:")
    a("s_endpgm")
    return L

DESC = """.section .rodata,"a"
.p2align 6
.amdhsa_kernel {name}
  .amdhsa_next_free_vgpr {nv}
  .amdhsa_next_free_sgpr {ns}
  .amdhsa_accum_offset {acc}
  .amdhsa_group_segment_fixed_size 0
  .amdhsa_kernarg_size 104
  .amdhsa_user_sgpr_count 2
  .amdhsa_user_sgpr_kernarg_segment_ptr 1
  .amdhsa_system_sgpr_workgroup_id_x 1
.end_amdhsa_kernel
"""
def far_jump(lbl, uid):
    return [f"s_getpc_b64 s[{s_ret}:{s_ret+1}]", f"{uid}:", f"s_add_u32 s{s_ret}, s{s_ret}, {lbl}-{uid}",
            f"s_addc_u32 s{s_ret+1}, s{s_ret+1}, 0", f"s_setpc_b64 s[{s_ret}:{s_ret+1}]"]

def main():
    ap = argparse.ArgumentParser()
    ap.add_argument('-o', default=f'cdna_kernels/{KN}.s')
    ap.add_argument('--kind', default='J+W')
    ap.add_argument('--stamps', action='store_true')
    ap.add_argument('-v', action='store_true')
    ap.add_argument('--drop', default='')
    ap.add_argument('--opt', default='')
    a = ap.parse_args()
    for kv in filter(None, a.opt.split(',')):
        k, v = kv.split('=')
        fl = '' if v == 'df' else ' ' + v.replace('+', ' ')
        if k == 'w':
            for kk in ('wq0', 'wq1', 'wo0', 'wo1', 'x0', 'x1'): OPT[kk] = fl
        elif isinstance(OPT[k], int): OPT[k] = int(v, 0)
        else: OPT[k] = fl
    if not OPT['fuse'] and OPT['st'] == ' sc1': OPT['st'] = ''
    p1, p2 = prologue()
    p1, _ = fix_hazards(p1)
    kinds = a.kind.split('+')
    lines = []; nn = 0
    if len(kinds) > 1:
        pat = OPT['pat'].strip()
        pat = (pat * 32)[:32]
        lo = sum(int(c) << (2 * i) for i, c in enumerate(pat[:16])); hi = sum(int(c) << (2 * i) for i, c in enumerate(pat[16:]))
        lines += [f"; classes {pat}", f"s_mov_b32 s{s_ret}, {hex(lo)}", f"s_mov_b32 s{s_ret+1}, {hex(hi)}", f"s_lshr_b32 s{s_cnt}, s2, 3", f"s_lshl_b32 s{s_cnt}, s{s_cnt}, 1",
                  f"s_lshr_b64 s[{s_ret}:{s_ret+1}], s[{s_ret}:{s_ret+1}], s{s_cnt}", f"s_and_b32 s{s_cnt}, s{s_ret}, 3"]
        for ci in range(1, len(kinds)):
            lines += [f"s_cmp_eq_u32 s{s_cnt}, {ci}", f"s_cbranch_scc0 L_nc{ci}"] + far_jump(f'L_cls{ci}', f'L_pc{ci}') + [f"L_nc{ci}:"]
    for ci, kind in enumerate(kinds):
        body, nstamp = build_main(kind, a.stamps, p2)
        body = insert_waits(body)
        if a.drop:
            dr = a.drop.split(',')
            body = [i for i in body if i.k not in dr]
        body, n1 = fix_hazards(body, a.v); nn += n1
        k = [i for i, x in enumerate(body) if x.k == 'split'][0]
        if ci == 0: common = [x.t for x in body[:k]]
        else: assert common == [x.t for x in body[:k]]
        body = body[k + 1:]
        l1, s1 = compress(body, S(s_cnt), uid=f'C{ci}_')
        s1 = [x.replace('L_rare', f'L_rare{ci}') for x in s1]
        lines += [f"L_cls{ci}:"]
        lines += l1
        if a.stamps: lines += [f"s_mov_b32 s3, {12 if OPT['rst'] else nstamp}"]
        NS = 12
        if a.stamps: lines += [f"s_memrealtime s[{s_stamp+2*NS}:{s_stamp+2*NS+1}]"]
        if OPT['fuse']: lines += [x.replace('L_red', f'L_r{ci}') for x in fused_reduce(a.stamps and OPT['rst'])]
        if a.stamps:
            so = stamp_out(NS + 1)
            so = [x.replace(f"v_mov_b32 v2, {NS+2}", "v_mov_b32 v2, s3") for x in so]
            lines += ["s_mov_b64 exec, -1"] + so
        lines += ["s_endpgm"]
        lines += s1 + rare_path(f'L_rare{ci}_0', 0) + rare_path(f'L_rare{ci}_1', 1)
    hdr = open(f'cdna_kernels/{KN}.s.ref').read().split('\n')
    hdr = [l for l in hdr if l.startswith(';') and '@launch' not in l and 'Override launch' not in l and 'grid=ceil' not in l]
    if OPT['fuse']: out = hdr + [f"; @launch grid=(256,1,1) block=(256,1,1) lds={LDS_BYTES}"]
    else: out = hdr + [f"; @launch kernel={KN}_kernel grid=(256,1,1) block=(256,1,1) lds={LDS_BYTES}",
                       "; @launch kernel=reduce_kernel grid=(960,1,1) block=(256,1,1) lds=0"]
    out += ['.amdgcn_target "amdgcn-amd-amdhsa--gfx950"', '.text',
            f'.globl {KN}_kernel', '.p2align 8', f'.type {KN}_kernel,@function', f'{KN}_kernel:']
    out += ["s_cmp_lt_u32 s2, 256", "s_cbranch_scc1 L_go", "s_endpgm", "L_go:"]
    if a.stamps and OPT['st0']: out += [f"s_memrealtime s[{s_stamp}:{s_stamp+1}]"]
    if OPT['cpf'] == 2:
        out += [f"s_getpc_b64 s[{s_ret}:{s_ret+1}]", "L_cp:", f"s_lshr_b32 s{s_tmp}, s2, 3", f"s_lshl_b32 s{s_tmp}, s{s_tmp}, 13",
                "v_lshrrev_b32 v1, 2, v0", "v_lshlrev_b32 v1, 7, v1", f"v_add_u32 v1, s{s_tmp}, v1", "v_min_u32 v1, L_code_end-L_cp-4, v1",
                f"global_load_dword v{v_t+10}, v1, s[{s_ret}:{s_ret+1}]"]
    if OPT['half']: out += [f"s_and_b32 s3, s2, {OPT['half']}", "s_cbranch_scc0 L_go2", "s_endpgm", "L_go2:"]
    if OPT['cpf'] == 1: out += [f"s_getpc_b64 s[{s_ret}:{s_ret+1}]", "L_cp0:", f"s_sub_u32 s{s_ret}, s{s_ret}, L_cp0-L_go", f"s_subb_u32 s{s_ret+1}, s{s_ret+1}, 0"]
    out += [i.t for i in p1] + common + lines + ["L_code_end:"]
    if not OPT['fuse']:
        out += ['.globl reduce_kernel', '.p2align 8', '.type reduce_kernel,@function', 'reduce_kernel:'] + reduce_kernel()
    out.append(DESC.format(name=KN + '_kernel', nv=512, ns=102, acc=256))
    if not OPT['fuse']: out.append(DESC.format(name='reduce_kernel', nv=88, ns=72, acc=88))
    txt = "\n".join(out) + "\n"
    if OPT['mac']:
        txt = txt.replace("v_mfma_f32_16x16x32_bf16 ", "M ").replace("ds_read_b64_tr_b16 ", "T ").replace("v_cvt_pk_bf16_f32 ", "C ")
        txt = txt.replace("v_accvgpr_write_b32 ", "AW ").replace("buffer_load_dwordx4 ", "L ").replace(", ", ",")
        mac = [".macro M a:vararg", "v_mfma_f32_16x16x32_bf16 \\a", ".endm", ".macro T a:vararg", "ds_read_b64_tr_b16 \\a", ".endm",
               ".macro C a:vararg", "v_cvt_pk_bf16_f32 \\a", ".endm", ".macro AW a:vararg", "v_accvgpr_write_b32 \\a", ".endm",
               ".macro L a:vararg", "buffer_load_dwordx4 \\a", ".endm"]
        txt = txt.replace(".text\n", ".text\n" + "\n".join(mac) + "\n", 1)
        head = "\n".join(out[:len(hdr) + 2])
        txt = head + txt[txt.index("\n.text\n"):] if OPT['fuse'] else txt
    open(a.o, 'w').write(txt)
    print(f"wrote {a.o}: {len(out)} lines, {nn} hazard nops")

if __name__ == '__main__':
    main()
```

```python
import re

class I:
    __slots__ = ('t', 'k', 'r', 'w', 'tag', 'need', 'cost')
    def __init__(self, t, k, r=(), w=(), tag=None, need=(), cost=1):
        self.t = t; self.k = k; self.r = set(r); self.w = set(w)
        self.tag = tag; self.need = list(need); self.cost = cost
    def __repr__(self): return self.t

def regs(x):
    if isinstance(x, (int, float)): return []
    x = x.strip()
    if x.startswith('-'): x = x[1:]
    m = re.fullmatch(r'([vas])\[(\d+):(\d+)\]', x)
    if m: return [f'{m.group(1)}{i}' for i in range(int(m.group(2)), int(m.group(3)) + 1)]
    if re.fullmatch(r'[vas]\d+', x): return [x]
    if x in ('vcc', 'm0', 'exec', 'scc'): return [x]
    return []

def R(kind, base, n=1):
    return f'{kind}{base}' if n == 1 else f'{kind}[{base}:{base+n-1}]'
def V(b, n=1): return R('v', b, n)
def A(b, n=1): return R('a', b, n)
def S(b, n=1): return R('s', b, n)

def fmt(x):
    if isinstance(x, int):
        return str(x) if -16 <= x <= 64 else hex(x & 0xffffffff)
    return str(x)

def _rw(dsts, srcs):
    w = []; r = []
    for d in dsts: w += regs(d)
    for s in srcs: r += regs(s)
    return r, w

TRANS = ('v_exp_f32', 'v_rcp_f32', 'v_log_f32', 'v_rsq_f32', 'v_sqrt_f32')
def valu(op, d, *src, need=()):
    r, w = _rw([d], src)
    k = 'trans' if op in TRANS else 'valu'
    if op.startswith('v_fmac') : r += regs(d)
    if op == 'v_cndmask_b32' and len(src) == 2: r.append('vcc'); src = src + ('vcc',)
    return I(f"{op} {d}, " + ", ".join(fmt(s) for s in src), k, r, w, need=need, cost=2 if k == 'trans' else 1)
def vcmp(op, a, b):
    r, w = _rw(['vcc'], [a, b])
    return I(f"{op} vcc, {fmt(a)}, {fmt(b)}", 'valu', r, w)
def perm(op, a, b):
    return I(f"{op} {a}, {b}", 'perm', regs(a) + regs(b), regs(a) + regs(b))
def salu(op, d, *src):
    r, w = _rw([d], src)
    if op in ('s_cselect_b32', 's_cselect_b64', 's_addc_u32', 's_subb_u32'): r.append('scc')
    if op not in ('s_mov_b32', 's_mov_b64', 's_cselect_b32', 's_cselect_b64', 's_mul_i32', 's_movk_i32', 's_mul_hi_u32'): w.append('scc')
    return I(f"{op} {d}, " + ", ".join(fmt(s) for s in src), 'salu', r, w)
def scmp(op, a, b):
    r, _ = _rw([], [a, b])
    return I(f"{op} {fmt(a)}, {fmt(b)}", 'salu', r, ['scc'])
def mfma(d, a, b, c, need=()):
    r, w = _rw([d], [a, b, c])
    i = I(f"v_mfma_f32_16x16x32_bf16 {d}, {a}, {b}, {fmt(c)}", 'mfma', r, w, need=need)
    i.tag = (set(regs(a) + regs(b)), set(regs(c)))
    return i
def dsread(op, d, addr, off, tag):
    o = f" offset:{off}" if off else ""
    return I(f"{op} {d}, {addr}{o}", 'ds', regs(addr), regs(d), tag=tag)
def dswrite(op, addr, data, off, tag):
    o = f" offset:{off}" if off else ""
    return I(f"{op} {addr}, {data}{o}", 'ds', regs(addr) + regs(data), [], tag=tag)
def dma(voff, srd, soff, off, tag, flags=' nt'):
    o = f" offset:{off}" if off else ""
    return I(f"buffer_load_dwordx4 {voff}, {srd}, {fmt(soff)} offen{o}{flags} lds", 'dma',
             regs(voff) + regs(srd) + regs(soff) + ['m0'], [], tag=tag)
def bstore(data, voff, srd, soff, off, tag, flags='', op='buffer_store_dwordx4'):
    o = f" offset:{off}" if off else ""
    return I(f"{op} {data}, {voff}, {srd}, {fmt(soff)} offen{o}{flags}", 'vstore',
             regs(data) + regs(voff) + regs(srd) + regs(soff), [], tag=tag)
def bload(d, voff, srd, soff, off, tag, flags='', op='buffer_load_dwordx4'):
    o = f" offset:{off}" if off else ""
    return I(f"{op} {d}, {voff}, {srd}, {fmt(soff)} offen{o}{flags}", 'vload',
             regs(voff) + regs(srd) + regs(soff), regs(d), tag=tag)
def barrier(need=()): return I("s_barrier", 'barrier', need=need)
def waitfor(need): return I("", 'null', need=need)
def raw(t, k='salu', r=(), w=()): return I(t, k, r, w)
def mark(name): return I(name, 'mark')
def nop(n): return I(f"s_nop {n}", 'nop', cost=n + 1)

VM_KINDS = ('dma', 'vstore', 'vload')

def insert_waits(prog):
    out = []
    lg = []; vm = []
    seen = set()
    from collections import Counter
    total = Counter(i.tag for i in prog if i.k == 'ds' or i.k in VM_KINDS); issued = Counter()
    for ins in prog:
        if ins.need:
            for t in ins.need: assert issued[t] == total[t], f"tag {t}: {issued[t]} of {total[t]} issued at {ins.t}"
            nl = nv = None
            for t in ins.need:
                assert t in seen, f"need of never-issued tag {t} at {ins.t}"
                idx = [i for i, x in enumerate(lg) if x == t]
                if idx:
                    n = len(lg) - 1 - idx[-1]
                    nl = n if nl is None else min(nl, n)
                idx = [i for i, x in enumerate(vm) if x == t]
                if idx:
                    n = len(vm) - 1 - idx[-1]
                    nv = n if nv is None else min(nv, n)
            parts = []
            if nv is not None:
                nv = min(nv, 63); parts.append(f"vmcnt({nv})"); vm = vm[len(vm) - nv:] if nv else []
            if nl is not None:
                nl = min(nl, 15); parts.append(f"lgkmcnt({nl})"); lg = lg[len(lg) - nl:] if nl else []
            if parts: out.append(I("s_waitcnt " + " ".join(parts), 'wait'))
        if ins.k == 'null': continue
        if ins.k == 'ds' or ins.k in VM_KINDS: issued[ins.tag] += 1
        if ins.k == 'ds':
            lg.append(ins.tag); seen.add(ins.tag)
            assert len(lg) <= 15 or True
        elif ins.k in VM_KINDS:
            vm.append(ins.tag); seen.add(ins.tag)
            assert len(vm) <= 63, "vmcnt overflow"
        out.append(ins)
    return out

def states(ins):
    if ins.k in ('mark', 'label', 'split', 'stub'): return 0
    if ins.k == 'nop': return ins.cost
    return 1

def fix_hazards(prog, verbose=False):
    out = []
    LOOK = 24
    nins = 0
    for ins in prog:
        req = 0
        if ins.k not in ('mark', 'label', 'nop', 'wait', 'barrier', 'split', 'stub'):
            dist = 0
            for p in reversed(out[-LOOK:]):
                need = 0
                isvalu = ins.k in ('valu', 'trans', 'perm')
                pvalu = p.k in ('valu', 'trans', 'perm')
                if pvalu:
                    ov = p.w & ins.r
                    vov = {x for x in ov if x[0] in 'va' and x != 'vcc'}
                    sov = {x for x in ov if x[0] == 's' or x == 'vcc'}
                    if ins.k == 'mfma' and vov: need = max(need, 2)
                    if ins.k == 'perm' and vov: need = max(need, 2)
                    if p.k == 'trans' and isvalu and ins.k != 'trans' and vov: need = max(need, 1)
                    if p.k == 'trans' and ins.k == 'trans' and vov: need = max(need, 1)
                    if isvalu and sov: need = max(need, 2)
                    if ins.k in VM_KINDS and sov: need = max(need, 5)
                    if 'readfirstlane' in ins.t and vov: need = max(need, 1)
                    if ins.k == 'salu' and sov: need = max(need, 1 if 'vcc' in sov else 4)
                if p.k == 'mfma':
                    D = p.w
                    if ins.k == 'mfma':
                        ab, c = ins.tag
                        if D & ab: need = max(need, 8)
                        if D & c and c != D: need = max(need, 6)
                        if D & ins.w and c != D and not (D & c): need = max(need, 6)
                    elif isvalu or ins.k in ('ds',) + VM_KINDS:
                        if D & (ins.r | ins.w): need = max(need, 8)
                        if isvalu and (p.tag[1] & ins.w): need = max(need, 3)
                if p.k == 'salu' and 'm0' in p.w and ins.k == 'dma': need = max(need, 1)
                if p.k == 'vstore' and (isvalu or ins.k in ('ds', 'vload', 'mfma')):
                    data = set(regs(p.t.split()[1].rstrip(',')))
                    if data & ins.w: need = max(need, 2)
                if p.k == 'ds' and p.t.startswith('ds_write') and isvalu:
                    data = set(regs(p.t.split()[2].rstrip(',')))
                    if data & ins.w: need = max(need, 2)
                if need > dist: req = max(req, need - dist)
                dist += states(p)
        if req:
            out.append(nop(req - 1)); nins += 1
            if verbose: print("  nop", req, "before", ins.t)
        out.append(ins)
    return out, nins

def compress(prog, cnt_reg, uid='L'):
    blocks = []; cur = []
    for ins in prog:
        if ins.k == 'mark':
            blocks.append(cur); cur = []
        else: cur.append(ins)
    blocks.append(cur)
    texts = ["\n".join(i.t for i in b) for b in blocks]
    lines = []; i = 0; nl = 0; stub = []
    lab = [0]
    def emit_block(b):
        lab[0] += 1
        for ins in b:
            t = ins.t.replace('{L}', f'{uid}{lab[0]}')
            if ins.k == 'stub': stub.append(t)
            else: lines.append(t)
    n = len(blocks)
    while i < n:
        best = (1, 1)
        for per in range(1, 9):
            reps = 1
            while i + (reps + 1) * per <= n and texts[i + reps * per:i + (reps + 1) * per] == texts[i:i + per]:
                reps += 1
            if reps >= 2 and reps * per > best[0] * best[1] and any(texts[i:i + per]): best = (per, reps)
        per, reps = best
        if reps >= 2:
            nl += 1
            lines.append(f"s_mov_b32 {cnt_reg}, {reps}")
            lines.append(f".p2align 3")
            lines.append(f"{uid}loop{nl}:")
            for b in blocks[i:i + per]: emit_block(b)
            lines.append(f"s_sub_u32 {cnt_reg}, {cnt_reg}, 1")
            lines.append(f"s_cbranch_scc0 {uid}dummy") if False else None
            lines.append(f"s_cmp_lg_u32 {cnt_reg}, 0")
            lines.append(f"s_cbranch_scc1 {uid}loop{nl}")
            i += per * reps
        else:
            emit_block(blocks[i]); i += 1
    return [l for l in lines if l is not None], stub
```

```python
import sys, math, argparse, struct
sys.path.insert(0, 'gen')
from asmlib import *

KN = 'concat_heads__mha_block_cached__gqa_block_cached__near_ridge'
SLOT = 24576; NBUF = 4; LEAD = 3; XT = 12288
XA = 0x18000; XB_ = 0x20000; XTOG = XA ^ XB_
LDS_BYTES = XB_ + 2 * XT
EXW = 18432
PART_WG = 122880
STAMP_OFF = 256 * PART_WG
H = 192 * 1280

OPT = {'wq0': '', 'wq1': '', 'wo0': '', 'wo1': '', 'x0': '', 'x1': '', 'kv': ' nt', 'st': ' sc1', 'rot': 1,
       'cmask': 0xAAAAAAAA, 'half': 0, 'early': 1, 'sp0': -1, 'spd': 2, 'fuse': 1, 'wper': 3, 'ovl': 1, 'outst': ' sc1', 'sleep': 0, 'polls': 3000, 'rld': ' sc1', 'rst': 0, 'cyc': 0, 'cpf': 1, 'pipe': 1, 'dend': 36, 'rot2': 0, 'pat': '01', 'mac': 1, 'hold': 6, 'nost': 0, 'pf': 0, 'pfs': 4, 'pfd': 4, 'ntp': 0, 'st0': 1, 'pfx0': 0, 'pfx1': 0, 'pfw0': 0, 'pfw1': 0, 'xtag': 1, 'pollgap': 8, 'pre': 1, 'cper': 32, 'la': 0, 'lb': 0, 'ld': 2, 'pfat': 3, 'pfstep': 2, 'rotq0': 1, 'snake': 1, 'jpat': ' 0000111122222222', 'pipes': ' X0X1W0W1F0F1G0G1I1J1', 'edef': 1, 'vinit': 0}

sK, sV, sWQ, sWO, sX, sWS = 4, 8, 12, 16, 20, 24
s_w6144, s_k, s_v, s_wq, s_wo, s_x, s_xwr, s_tmp, s_cnt, s_c = range(28, 38)
s_wqb, s_wql, s_xb, s_xl, s_wob, s_wol, s_pt, s_ptb, s_ptl = range(38, 47)
s_ew, s_er0, s_er1, s_w, s_hq = range(47, 52)
s_ret = 52
s_tmp2 = 63
s_rq = 100; s_rx = 101
s_t0 = 54
s_stamp = 64
v_l16 = 0; v_k = 1; v_v = 5; v_p = 13; v_x = 17
v_m, v_l = 19, 22
v_t = 25
vP = 40; vS = 52; vXF = 76; v_dkv, v_dwq, v_dwx = 100, 103, 106; vO = 112
vACC = (76, 52)
aQN = 0; aRES = 0; aQ = 144; aF = 216; aE1 = 240; aE0 = 242

def Oreg(dt, qt): return vO + (dt * 3 + qt) * 4
SB = [0]
def Sbase(): return (vS, vXF)[SB[0]]
def Sreg(t, qt): return Sbase() + (t * 3 + qt) * 4

class Slot:
    def __init__(self, typ, **kw):
        self.typ = typ; self.__dict__.update(kw)
        self.pre = []; self.gaps = [[] for _ in range(36)]; self.mf = []; self.load = [0] * 36
    def put(self, gap, item):
        if isinstance(item, I): item = [item]
        self.gaps[gap].append(item); self.load[gap] += sum(i.cost for i in item)

def spread(slots_gaps, items, cap=2, even=False):
    items = [[x] if isinstance(x, I) else x for x in items]
    if not items: return
    level = cap
    while True:
        plan = []; k = 0
        free = [max(0, level - s.load[g]) for s, g in slots_gaps]
        tot_free = sum(free); tot_it = sum(sum(i.cost for i in it) for it in items)
        used = 0; seen_free = 0
        for n, (s, g) in enumerate(slots_gaps):
            ld = s.load[g]; seen_free += free[n]
            while k < len(items):
                c = sum(i.cost for i in items[k])
                if ld + c > level and not (ld == 0 and c > level): break
                if even and tot_free > tot_it and (used + c) * tot_free > seen_free * tot_it + tot_free: break
                plan.append((s, g, items[k])); ld += c; k += 1; used += c
        if k == len(items): break
        if even: even = False
        else: level += 1
    for s, g, it in plan: s.put(g, it)

def frag_reads(sl, j):
    d = aF + (j % 6) * 4
    tag = ('f', sl.idx, j)
    buf = sl.idx % NBUF
    hi = buf >> 1; bo = (buf & 1) * SLOT
    if sl.typ == 'K':
        t, ks = divmod(j, 6)
        return [dsread('ds_read_b128', A(d, 4), V(v_k + hi * 2 + (ks & 1)), bo + t * 6144 + (ks >> 1) * 128, tag)]
    if sl.typ in ('V', 'Q'):
        off = bo + (j >> 2) * 128; a = V(v_v + hi * 4 + (j & 3))
        return [dsread('ds_read_b64_tr_b16', A(d, 2), a, off, tag), dsread('ds_read_b64_tr_b16', A(d + 2, 2), a, off + 6144, tag)]
    if sl.typ == 'P':
        u, nt = divmod(j, 2); a = V(v_p + hi * 2 + nt); off = bo + u * 4096
        return [dsread('ds_read_b64_tr_b16', A(d, 2), a, off, tag), dsread('ds_read_b64_tr_b16', A(d + 2, 2), a, off + 2048, tag)]

def x_reads(sl):
    return [dsread('ds_read_b128', V(vXF + (sl.j % 2) * 12 + qt * 4, 4), V(v_x + (sl.j & 1)),
                   ((sl.j >> 1) & 1) * XT + qt * 2048, ('x', sl.idx)) for qt in range(3)]

def wrapadd(reg, inc, lim, base):
    return [salu('s_add_u32', S(reg), S(reg), inc & 0xffffffff),
            [scmp('s_cmp_eq_u32', S(reg), S(lim)), salu('s_cselect_b32', S(reg), S(base), S(reg))]]
def bump(regs3, d): return [salu('s_add_u32', S(r), S(r), d & 0xffffffff) for r in regs3]

v_pw = 111
def prefill_loads(sl):
    srd, so = (sK, s_k) if sl.typ == 'K' else (sV, s_v)
    tag = ('pfl', sl.idx)
    it = [salu('s_add_u32', S(s_tmp2), S(so), 3072)]
    for j in range(6):
        it.append(bload(A(sl.pfreg + 4 * j, 4), V(v_dkv + j % 3), S(srd, 4), S(so if j < 3 else s_tmp2), 1024 * (j % 3), tag, OPT['kv']))
    it.append(salu('s_add_u32', S(so), S(so), 12288))
    return it
def prefill_writes(sl):
    buf = sl.idx % NBUF
    it = []
    a = v_pw
    if buf >= 2:
        a = v_t + 14; it.append(valu('v_add_u32', V(a), 2 * SLOT, V(v_pw)))
    for j in range(6):
        w = dswrite('ds_write_b128', V(a), A(sl.pfreg + 4 * j, 4), (buf & 1) * SLOT + 1024 * j, ('d', sl.idx))
        if j == 0: w.need = [('pfl', sl.idx)]
        it.append(w)
    return it
def dma_items(sl):
    if getattr(sl, 'pfreg', None) is not None: return prefill_writes(sl)
    tag = ('d', sl.idx)
    if sl.typ == 'K': srd, so, vo, dl = sK, s_k, v_dkv, 3072; upd = [salu('s_add_u32', S(s_k), S(s_k), 12288)]
    elif sl.typ == 'V': srd, so, vo, dl = sV, s_v, v_dkv, 3072; upd = [salu('s_add_u32', S(s_v), S(s_v), 12288)]
    elif sl.typ == 'Q':
        srd, so, vo, dl = sWQ, s_wq, v_dwq, 16 * 12288
        upd = wrapadd(s_wq, 32 * 12288, s_wql, s_wqb) if sl.j % 2 else [salu('s_add_u32', S(s_wq), S(s_wq), 32 * 12288)]
        if sl.j == 19: upd += bump((s_wq, s_wqb, s_wql), 384)
        if sl.j == 19 and sl.rnd == 0 and not OPT['rotq0']: upd.append(salu('s_add_u32', S(s_wq), S(s_wq), S(s_rq)))
    elif sl.typ == 'P':
        srd, so, vo, dl = sWO, s_wo, v_dwx, 24 * 1280
        incs = [2 * H, 128 - 2 * H] if sl.nh == 2 else [2 * H, -H, 2 * H, 128 - 3 * H]
        if sl.hh < sl.nh - 1: upd = [salu('s_add_u32', S(s_wo), S(s_wo), incs[sl.hh] & 0xffffffff)]
        else:
            upd = wrapadd(s_wo, incs[sl.hh], s_wol, s_wob)
            if sl.ch == 9 and sl.rnd == 0: upd += bump((s_wo, s_wob, s_wol), H)
    fl = OPT['kv'] if sl.typ in 'KV' else OPT[('wq' if sl.typ == 'Q' else 'wo') + str(sl.rnd)]
    if sl.typ == 'Q' and sl.j < 2 * OPT['ntp']: fl = ' nt'
    if sl.typ == 'P' and sl.ch < OPT['ntp']: fl = ' nt'
    srd = S(srd, 4); lb = (sl.idx % NBUF) * SLOT
    it = [salu('s_add_u32', 'm0', S(s_w6144), lb), salu('s_add_u32', S(s_tmp), S(so), dl)]
    it += [dma(V(vo + k), srd, S(so), 1024 * k, tag, fl) for k in range(3)]
    it += [salu('s_add_u32', 'm0', 'm0', 3072)] + upd[:1]
    it += [dma(V(vo + k), srd, S(s_tmp), 1024 * k, tag, fl) for k in range(3)]
    it += upd[1:]
    return it

def x_items(sl):
    fl = OPT['x' + str(sl.rnd)]
    it = []
    for h in range(2):
        xt = ('xd', sl.xq, h if OPT['xtag'] else 1)
        it.append(salu('s_add_u32', 'm0', S(s_xwr), h * XT))
        if h == 1: it.append(salu('s_xor_b32', S(s_xwr), S(s_xwr), XTOG))
        it += [dma(V(v_dwx + k), S(sX, 4), S(s_x), 1024 * k, xt, fl) for k in range(3)]
        it += wrapadd(s_x, 128, s_xl, s_xb)
    if sl.j == 16 and sl.rnd == 0 and not OPT['rotq0']: it.append(salu('s_add_u32', S(s_x), S(s_x), S(s_rx)))
    return it

def build_mfmas(sl):
    mf = []
    wp = OPT['wper']
    for j in range(12):
        a = A(aF + (j % 6) * 4, 4)
        need = []
        if j % wp == 0: need = [('f', sl.idx, j + k) for k in range(wp)]
        if j == 0 and sl.typ == 'Q': need.append(('x', sl.idx))
        for qi in range(3):
            qt = 2 - qi if (OPT['snake'] and j % 2) else qi
            if sl.typ == 'K':
                t, ks = divmod(j, 6); SB[0] = (sl.i & 1) if sl.pipe else 0
                d = V(Sreg(t, qt), 4); b = A(aQ + (ks * 3 + qt) * 4, 4); c = 0 if ks == 0 else d
            elif sl.typ == 'V':
                d = V(Oreg(j, qt), 4); b = V(vP + qt * 4, 4); c = 0 if sl.first else d
            elif sl.typ == 'Q':
                d = A(aQN + (j * 3 + qt) * 4, 4) if sl.accA else V(Oreg(j, qt), 4)
                b = V(vXF + (sl.j % 2) * 12 + qt * 4, 4); c = 0 if sl.j == 0 else d
            elif sl.typ == 'P':
                u, nt = divmod(j, 2); hh = sl.hh; ch = sl.ch
                d = V(vACC[ch % 2] + (nt * 3 + qt) * 4, 4)
                if sl.nh == 4 and hh < 2: b = A(aQN + hh * 72 + (u * 3 + qt) * 4, 4)
                else: b = V(vO + (hh % 2) * 72 + (u * 3 + qt) * 4, 4)
                c = 0 if (hh == 0 and u == 0 and (sl.rnd == 0 or sl.nh == 4)) else d
            mf.append(mfma(d, a, b, c, need=need if qi == 0 else ()))
    sl.mf = mf

def xrow(v, tmp, op):
    return [valu('v_mov_b32', V(tmp), V(v)), perm('v_permlane32_swap_b32', V(v), V(tmp)), valu(op, V(v), V(v), V(tmp)),
            valu('v_mov_b32', V(tmp), V(v)), perm('v_permlane16_swap_b32', V(v), V(tmp)), valu(op, V(v), V(v), V(tmp))]

def interleave(*lists):
    out = []
    for k in range(max(len(l) for l in lists)):
        for l in lists:
            if k < len(l): out.append(l[k])
    return out

def max8(x, vals):
    return [valu('v_max3_f32', V(x), V(vals[0]), V(vals[1]), V(vals[2])), valu('v_max3_f32', V(x), V(x), V(vals[3]), V(vals[4])),
            valu('v_max3_f32', V(x), V(x), V(vals[5]), V(vals[6])), valu('v_max_f32', V(x), V(x), V(vals[7]))]

def softmax_init():
    ch = []
    for qt in range(3):
        x = v_m + qt
        c = max8(x, [Sreg(t, qt) + r for t in range(2) for r in range(4)]) + xrow(x, v_t + qt, 'v_max_f32')
        c += [valu('v_mul_f32', V(x), S(s_c), V(x)), valu('v_mov_b32', V(v_l + qt), 0)]
        ch.append(c)
    return interleave(*ch)

def sm_fma(t):
    return [valu('v_fma_f32', V(Sreg(t, qt) + r), V(Sreg(t, qt) + r), S(s_c), '-' + V(v_m + qt)) for qt in range(3) for r in range(4)]
def sm_max(t):
    vals = [Sbase() + t * 12 + i for i in range(12)]
    x = v_t + 3
    if t == 0:
        o = [valu('v_max3_f32', V(x), V(vals[0]), V(vals[1]), V(vals[2]))]
        for i in range(3, 11, 2): o.append(valu('v_max3_f32', V(x), V(x), V(vals[i]), V(vals[i + 1])))
        o.append(valu('v_max_f32', V(x), V(x), V(vals[11])))
        return o
    return [valu('v_max3_f32', V(x), V(x), V(vals[i]), V(vals[i + 1])) for i in range(0, 12, 2)]
def sm_fmamax(t):
    f = sm_fma(t); m = sm_max(t)
    o = f[:4]; k = 0
    for i in range(4, 12, 2): o += f[i:i + 2] + [m[k]]; k += 1
    return o + m[k:]
def sm_check():
    return [[vcmp('v_cmp_lt_f32', 0x41000000, V(v_t + 3)),
             raw('s_cbranch_vccnz {L}_r', 'branch', ['vcc']), raw('{L}_b:', 'label'),
             raw('{L}_r:\ns_call_b64 s[%d:%d], L_rare_%d\ns_branch {L}_b' % (s_ret, s_ret + 1, SB[0]), 'stub')]]
def sm_exp():
    o = []
    order = [(t, r) for t in range(2) for r in range(4)]
    for k, (t, r) in enumerate(order):
        for qt in range(3): o.append(valu('v_exp_f32', V(Sreg(t, qt) + r), V(Sreg(t, qt) + r)))
        if k >= 1:
            pt, pr = order[k - 1]
            for qt in range(3): o.append(valu('v_add_f32', V(v_l + qt), V(v_l + qt), V(Sreg(pt, qt) + pr)))
            if pr % 2 == 1:
                for qt in range(3):
                    o.append(valu('v_cvt_pk_bf16_f32', V(vP + qt * 4 + pt * 2 + pr // 2), V(Sreg(pt, qt) + pr - 1), V(Sreg(pt, qt) + pr)))
    for qt in range(3): o.append(valu('v_cvt_pk_bf16_f32', V(vP + qt * 4 + 3), V(Sreg(1, qt) + 2), V(Sreg(1, qt) + 3)))
    tail = [valu('v_add_f32', V(v_l + qt), V(v_l + qt), V(Sreg(1, qt) + 3)) for qt in range(3)]
    return o, tail

def rare_path(name, sb):
    SB[0] = sb
    ch = []
    for qt in range(3):
        vals = [Sreg(t, qt) + r for t in range(2) for r in range(4)]
        x = v_t + 4 + qt; f = v_t + 7 + qt
        c = max8(x, vals) + xrow(x, v_t + qt, 'v_max_f32')
        c += [valu('v_max_f32', V(x), 0, V(x)), valu('v_add_f32', V(v_m + qt), V(v_m + qt), V(x)),
              valu('v_sub_f32', V(f), 0, V(x)), valu('v_exp_f32', V(f), V(f))]
        c += [valu('v_sub_f32', V(s), V(s), V(x)) for s in vals]
        c += [valu('v_mul_f32', V(v_l + qt), V(v_l + qt), V(f))]
        c += [valu('v_mul_f32', V(Oreg(dt, qt) + r), V(Oreg(dt, qt) + r), V(f)) for dt in range(12) for r in range(4)]
        ch.append(c)
    p, _ = fix_hazards([nop(7)] + interleave(*ch) + [nop(3)])
    return [name + ":"] + [i.t for i in p] + [f"s_setpc_b64 s[{s_ret}:{s_ret+1}]"]

def q_convert_u(u, dest):
    T = [vS + (u % 2) * 12 + 4 * qt for qt in range(3)]
    out = []
    for qt in range(3):
        for h in range(2):
            for k in range(2):
                s0 = Oreg(2 * u + h, qt) + 2 * k
                out.append(valu('v_cvt_pk_bf16_f32', V(T[qt] + h * 2 + k), V(s0), V(s0 + 1)))
    for op in ('v_permlane32_swap_b32', 'v_permlane16_swap_b32'):
        for qt in range(3):
            for k in range(2): out.append(perm(op, V(T[qt] + k), V(T[qt] + 2 + k)))
    for qt in range(3):
        for k in range(4): out.append(valu('v_accvgpr_write_b32', A(dest + (u * 3 + qt) * 4 + k), V(T[qt] + k)))
    return out

def q_convert_a(u):
    T = [vS + 12 + 4 * qt for qt in range(3)]
    rd = []; out = []
    for qt in range(3):
        for h in range(2):
            for k in range(2):
                s0 = vXF + (qt * 4 + h * 2 + k) * 2; a0 = aQN + ((2 * u + h) * 3 + qt) * 4 + 2 * k
                rd += [valu('v_accvgpr_read_b32', V(s0), A(a0)), valu('v_accvgpr_read_b32', V(s0 + 1), A(a0 + 1))]
                out.append(valu('v_cvt_pk_bf16_f32', V(T[qt] + h * 2 + k), V(s0), V(s0 + 1)))
    for op in ('v_permlane32_swap_b32', 'v_permlane16_swap_b32'):
        for qt in range(3):
            for k in range(2): out.append(perm(op, V(T[qt] + k), V(T[qt] + 2 + k)))
    for qt in range(3):
        for k in range(4): out.append(valu('v_accvgpr_write_b32', A(aQ + (u * 3 + qt) * 4 + k), V(T[qt] + k)))
    return rd + out

RL = 30
def e_head():
    out = interleave(*[xrow(v_l + qt, v_t + qt, 'v_add_f32') + [valu('v_rcp_f32', V(RL + 2 * qt), V(v_l + qt)),
                       valu('v_mov_b32', V(RL + 1 + 2 * qt), V(RL + 2 * qt))] for qt in range(3)])
    out += [valu('v_add_u32', V(36), S(s_ew), V(v_l16)), valu('v_add_u32', V(37), S(s_er0), V(v_l16)),
            valu('v_add_u32', V(38), S(s_er1), V(v_l16))]
    return out
def e_pack(u, eid, packed):
    T = vS + (u % 2) * 12
    o = []
    for qt in range(3):
        for h in range(2):
            s = Oreg(2 * u + h, qt)
            if packed:
                o += [valu('v_pk_mul_f32', V(s + 2 * k, 2), V(s + 2 * k, 2), V(RL + 2 * qt, 2)) for k in range(2)]
            else:
                o += [valu('v_mul_f32', V(s + k), V(s + k), V(RL + 2 * qt)) for k in range(4)]
    for qt in range(3):
        for h in range(2):
            s = Oreg(2 * u + h, qt)
            for k in range(2):
                o.append(valu('v_cvt_pk_bf16_f32', V(T + qt * 4 + h * 2 + k), V(s + 2 * k), V(s + 2 * k + 1)))
        o.append(dswrite('ds_write_b128', V(36), V(T + qt * 4, 4), (u * 3 + qt) * 1024, ('ew', eid)))
    return o
def e_reads(eid, toA):
    out = []
    for hh in range(2):
        for f in range(18):
            dst = A(aQN + hh * 72 + f * 4, 4) if toA else V(vO + hh * 72 + f * 4, 4)
            out.append(dsread('ds_read_b128', dst, V(37 + hh), f * 1024, ('er', eid, hh, f)))
    return out

def flush_held(ch):
    o = [bstore(A(aQ + ch * 12 + qt * 4, 4), V(v_l16), S(sWS, 4), S(s_ew), qt * 1024, ('st', ch), OPT['st']) for qt in range(3)]
    return o + wrapadd(s_ew, 12288, s_ptl, s_ptb)
def chunk_end(ch, store, held=False):
    acc = vACC[ch % 2]
    if held:
        o = chunk_end(ch, False)
        o = o[:12] + [valu('v_accvgpr_write_b32', A(aQ + ch * 12 + i), V(vP + i)) for i in range(12)]
        if ch == 0: o.append(salu('s_mov_b32', S(s_ew), S(s_pt)))
        return o + wrapadd(s_pt, 12288, s_ptl, s_ptb)
    o = []
    for qt in range(3):
        for nt in range(2):
            for k in range(2):
                s = acc + (nt * 3 + qt) * 4 + 2 * k
                o.append(valu('v_cvt_pk_bf16_f32', V(vP + qt * 4 + nt * 2 + k), V(s), V(s + 1)))
        if store:
            o.append(bstore(V(vP + qt * 4, 4), V(v_l16), S(sWS, 4), S(s_pt), qt * 1024, ('st', ch), OPT['st']))
    if not store: o += [valu('v_accvgpr_write_b32', A(aRES + ch * 12 + i), V(vP + i)) for i in range(12)]
    else: o += wrapadd(s_pt, 12288, s_ptl, s_ptb)
    return o

def chunk_init_valu(ch):
    acc = vACC[ch % 2]
    o = []
    for qt in range(3):
        for nt in range(2):
            for k in range(2):
                d = acc + (nt * 3 + qt) * 4 + 2 * k
                o.append(valu('v_accvgpr_read_b32', V(d + 1), A(aRES + ch * 12 + qt * 4 + nt * 2 + k)))
                o.append(valu('v_lshlrev_b32', V(d), 16, V(d + 1)))
                o.append(valu('v_and_b32', V(d + 1), 0xffff0000, V(d + 1)))
    return o
def chunk_init(ch):
    acc = vACC[ch % 2]
    return [mfma(V(acc + (nt * 3 + qt) * 4, 4), A(aE1 if nt else aE0, 4), A(aRES + ch * 12 + qt * 4, 4), 0)
            for nt in range(2) for qt in range(3)]

def stamp(n): return [raw(f"{'s_memtime' if OPT['cyc'] == 1 else 's_memrealtime'} s[{s_stamp+2*n}:{s_stamp+2*n+1}]", 'smem')]

def prologue():
    P = []; a = P.append
    T = s_t0
    a(salu('s_and_b32', S(T), 's2', 7)); a(salu('s_lshr_b32', S(T + 1), 's2', 3))
    a(salu('s_lshr_b32', S(T + 2), S(T), 2))
    a(salu('s_mul_i32', S(T + 2), S(T + 2), 40))
    a(salu('s_add_u32', S(T + 4), 's0', S(T + 2))); a(salu('s_addc_u32', S(T + 5), 's1', 0))
    a(raw(f"s_load_dwordx8 s[68:75], s[{T+4}:{T+5}], 0", 'smem'))
    a(raw(f"s_load_dwordx2 s[76:77], s[{T+4}:{T+5}], 32", 'smem'))
    a(raw("s_load_dwordx2 s[78:79], s[0:1], 96", 'smem'))
    a(salu('s_and_b32', S(T), S(T), 3)); a(salu('s_lshl_b32', S(T), S(T), 1))
    a(salu('s_and_b32', S(T + 3), S(T + 1), 1)); a(salu('s_or_b32', S(s_hq), S(T), S(T + 3)))
    a(salu('s_lshr_b32', S(T + 1), S(T + 1), 1))
    a(valu('v_lshrrev_b32', V(v_t), 6, 'v0'))
    a(nop(0))
    a(raw(f"v_readfirstlane_b32 s{s_w}, v{v_t}", 'valu', [f'v{v_t}'], [f's{s_w}']))
    lane, n16, g, tmp, tmp2, row, sw = range(v_t, v_t + 7)
    a(valu('v_and_b32', V(lane), 63, 'v0'))
    a(valu('v_lshlrev_b32', V(v_l16), 4, V(lane)))
    W = s_w; Pp = T + 7; QH = T + 8; HQ = s_hq; B = T + 1; ROT = T + 2
    def swz(dst, r): a(valu('v_and_b32', V(dst), 6, V(r)))
    a(valu('v_lshrrev_b32', V(row), 3, V(lane)))
    swz(sw, row)
    a(valu('v_and_b32', V(tmp), 7, V(lane))); a(valu('v_xor_b32', V(tmp), V(tmp), V(sw)))
    a(valu('v_lshlrev_b32', V(tmp), 4, V(tmp)))
    a(valu('v_mul_u32_u24', V(row), 1280, V(row)))
    a(valu('v_add_u32', V(v_dwx), V(tmp), V(row)))
    a(valu('v_add_u32', V(v_dwx + 1), 8 * 1280 - 1024, V(v_dwx)))
    a(valu('v_add_u32', V(v_dwx + 2), 2 * (8 * 1280 - 1024), V(v_dwx)))
    a(salu('s_mov_b32', S(s_tmp), 0xAAAAAAB))
    for j in range(3):
        a(valu('v_add_u32', V(tmp), 64 * j, V(lane)))
        a(valu('v_mul_hi_u32', V(row), V(tmp), S(s_tmp)))
        swz(sw, row)
        a(valu('v_lshlrev_b32', V(sw), 4, V(sw)))
        a(valu('v_xor_b32', V(v_dkv + j), V(v_l16), V(sw)))
        a(valu('v_mul_u32_u24', V(tmp2), 24, V(row))); a(valu('v_sub_u32', V(tmp), V(tmp), V(tmp2)))
        a(valu('v_lshlrev_b32', V(tmp), 4, V(tmp))); a(valu('v_xor_b32', V(tmp), V(tmp), V(sw)))
        a(valu('v_lshrrev_b32', V(tmp2), 2, V(row))); a(valu('v_lshl_add_u32', V(row), V(tmp2), 2, V(row)))
        a(valu('v_mul_u32_u24', V(row), 12288, V(row)))
        a(valu('v_add_u32', V(tmp), V(tmp), V(row)))
        a(valu('v_subrev_u32', V(v_dwq + j), 1024 * j, V(tmp)))
    a(salu('s_lshr_b32', S(Pp), S(W), 1)); a(salu('s_and_b32', S(QH), S(W), 1))
    a(salu('s_mul_i32', S(s_w6144), S(W), 6144))
    a(salu('s_lshl_b32', S(T + 3), S(HQ), 2)); a(salu('s_lshl_b32', S(T + 9), S(Pp), 1))
    a(salu('s_add_u32', S(T + 9), S(T + 9), S(T + 3)))
    a(salu('s_mul_i32', S(ROT), S(B), 5 * OPT['rot'])); a(salu('s_lshr_b32', S(ROT), S(ROT), 3))
    if OPT['rot2']:
        a(salu('s_and_b32', S(s_tmp), S(HQ), 1)); a(salu('s_mul_i32', S(s_tmp), S(s_tmp), 5))
        a(salu('s_add_u32', S(ROT), S(ROT), S(s_tmp)))
        a(scmp('s_cmp_ge_u32', S(ROT), 10)); a(salu('s_cselect_b32', S(s_tmp), 10, 0)); a(salu('s_sub_u32', S(ROT), S(ROT), S(s_tmp)))
    a(salu('s_mul_i32', S(s_wqb), S(T + 9), 384)); a(salu('s_mul_i32', S(s_tmp), S(QH), 4 * 12288))
    a(salu('s_add_u32', S(s_wqb), S(s_wqb), S(s_tmp)))
    a(salu('s_add_u32', S(s_wql), S(s_wqb), 640 * 12288))
    a(salu('s_mul_i32', S(s_rq), S(ROT), 64 * 12288))
    if OPT['rotq0']: a(salu('s_add_u32', S(s_wq), S(s_wqb), S(s_rq)))
    else: a(salu('s_mov_b32', S(s_wq), S(s_wqb)))
    a(salu('s_mul_i32', S(s_xb), S(B), 96)); a(salu('s_mul_i32', S(s_tmp), S(W), 24))
    a(salu('s_add_u32', S(s_xb), S(s_xb), S(s_tmp))); a(salu('s_mul_i32', S(s_xb), S(s_xb), 1280))
    a(salu('s_add_u32', S(s_xl), S(s_xb), 1280))
    a(salu('s_lshl_b32', S(T + 6), S(ROT), 7)); a(salu('s_mov_b32', S(s_rx), S(T + 6)))
    if OPT['rotq0']: a(salu('s_add_u32', S(s_x), S(s_xb), S(T + 6)))
    else: a(salu('s_mov_b32', S(s_x), S(s_xb)))
    a(salu('s_mul_i32', S(s_tmp), S(W), 3072)); a(salu('s_add_u32', S(s_xwr), S(s_tmp), XA))
    a(raw("s_waitcnt lgkmcnt(0)", 'wait'))
    for srd, p, n in ((sX, 68, 1966080), (sWQ, 74, 7864320)):
        a(salu('s_mov_b32', S(srd), S(p))); a(salu('s_mov_b32', S(srd + 1), S(p + 1)))
        a(salu('s_mov_b32', S(srd + 2), n)); a(salu('s_mov_b32', S(srd + 3), 0x20000))
    P2 = []; a = P2.append
    if OPT['cpf'] == 1:
        a(salu('s_lshr_b32', S(T), 's2', 3)); a(salu('s_lshl_b32', S(T), S(T), 2)); a(salu('s_add_u32', S(T), S(T), S(W)))
        a(salu('s_lshl_b32', S(T), S(T), 4))
        a(valu('v_and_b32', V(tmp), 15, V(lane))); a(valu('v_add_u32', V(tmp), S(T), V(tmp)))
        a(valu('v_lshlrev_b32', V(tmp), 7, V(tmp)))
        a(raw(f"v_min_u32 v{tmp}, L_code_end-L_go-4, v{tmp}", 'valu', [f'v{tmp}'], [f'v{tmp}']))
        a(I(f"global_load_dword v{v_t+10}, v{tmp}, s[{s_ret}:{s_ret+1}]", 'vload', [f'v{tmp}', f's{s_ret}', f's{s_ret+1}'], [f'v{v_t+10}'], tag=('cpf',)))
    for srd, p, n in ((sK, 70, 100663296), (sV, 72, 100663296), (sWO, 76, 7864320), (sWS, 78, 438042624)):
        a(salu('s_mov_b32', S(srd), S(p))); a(salu('s_mov_b32', S(srd + 1), S(p + 1)))
        a(salu('s_mov_b32', S(srd + 2), n)); a(salu('s_mov_b32', S(srd + 3), 0x20000))
    a(valu('v_and_b32', V(n16), 15, V(lane))); a(valu('v_lshrrev_b32', V(g), 4, V(lane)))
    a(salu('s_bfe_u32', S(T), 's2', 0x10002)); a(salu('s_lshl_b32', S(T), S(T), 4)); a(salu('s_add_u32', S(T), S(T), S(B)))
    a(salu('s_lshl_b32', S(T), S(T), 7)); a(salu('s_add_u32', S(T), S(T), FLAG_OFF))
    a(valu('v_and_b32', V(v_fa), 7, V(lane))); a(valu('v_lshl_add_u32', V(v_fa), V(v_fa), 2, S(T)))
    a(bload(V(v_fl), V(v_fa), S(sWS, 4), 0, 0, ('fl',), ' sc1', op='buffer_load_dword'))
    a(salu('s_lshl_b32', S(s_k), S(B), 5)); a(salu('s_add_u32', S(s_k), S(s_k), S(T + 9)))
    a(salu('s_mul_i32', S(s_k), S(s_k), 196608))
    a(salu('s_mul_i32', S(s_cnt), S(QH), 6144)); a(salu('s_add_u32', S(s_k), S(s_k), S(s_cnt)))
    a(salu('s_mov_b32', S(s_v), S(s_k)))
    a(salu('s_mul_i32', S(s_wob), S(T + 3), 192)); a(salu('s_mul_i32', S(s_wol), S(W), 48))
    a(salu('s_add_u32', S(s_wob), S(s_wob), S(s_wol))); a(salu('s_mul_i32', S(s_wob), S(s_wob), 1280))
    a(salu('s_add_u32', S(s_wol), S(s_wob), 1280))
    a(salu('s_add_u32', S(s_wo), S(s_wob), S(T + 6)))
    a(salu('s_mul_i32', S(s_ptb), 's2', PART_WG)); a(salu('s_mul_i32', S(T), S(W), 3072))
    a(salu('s_add_u32', S(s_ptb), S(s_ptb), S(T))); a(salu('s_add_u32', S(s_ptl), S(s_ptb), PART_WG))
    a(salu('s_mul_i32', S(T), S(ROT), 12288)); a(salu('s_add_u32', S(s_pt), S(s_ptb), S(T)))
    c = (192 ** -0.5) * math.log2(math.e)
    a(salu('s_mov_b32', S(s_c), struct.unpack('<I', struct.pack('<f', c))[0]))
    a(salu('s_mul_i32', S(T), S(Pp), 12288))
    swz(sw, n16)
    a(valu('v_xor_b32', V(tmp), V(g), V(sw))); a(valu('v_lshlrev_b32', V(tmp), 4, V(tmp)))
    a(valu('v_mul_u32_u24', V(tmp2), 384, V(n16))); a(valu('v_add3_u32', V(v_k), V(tmp), V(tmp2), S(T)))
    a(valu('v_xor_b32', V(v_k + 1), 64, V(v_k)))
    a(valu('v_add_u32', V(v_k + 2), 2 * SLOT, V(v_k))); a(valu('v_add_u32', V(v_k + 3), 2 * SLOT, V(v_k + 1)))
    a(salu('s_add_u32', S(s_cnt), S(s_cnt), XA))
    a(valu('v_lshlrev_b32', V(tmp2), 7, V(n16))); a(valu('v_add3_u32', V(v_x), V(tmp), V(tmp2), S(s_cnt)))
    a(valu('v_xor_b32', V(v_x + 1), 64, V(v_x)))
    a(valu('v_lshrrev_b32', V(row), 2, V(lane)))
    swz(sw, row)
    a(valu('v_bfe_u32', V(tmp), V(lane), 1, 1))
    a(valu('v_xor_b32', V(tmp), V(tmp), V(sw))); a(valu('v_lshlrev_b32', V(tmp), 4, V(tmp)))
    a(valu('v_and_b32', V(tmp2), 1, V(lane))); a(valu('v_lshl_add_u32', V(tmp), V(tmp2), 3, V(tmp)))
    a(valu('v_mul_u32_u24', V(tmp2), 384, V(row))); a(valu('v_add3_u32', V(v_v), V(tmp), V(tmp2), S(T)))
    for j in (1, 2, 3): a(valu('v_xor_b32', V(v_v + j), j << 5, V(v_v)))
    for j in range(4): a(valu('v_add_u32', V(v_v + 4 + j), 2 * SLOT, V(v_v + j)))
    a(valu('v_lshl_add_u32', V(v_p), V(row), 7, V(tmp)))
    a(salu('s_lshl_b32', S(T), S(Pp), 6))
    a(valu('v_xor_b32', V(v_p), S(T), V(v_p))); a(valu('v_xor_b32', V(v_p + 1), 32, V(v_p)))
    for j in range(2): a(valu('v_add_u32', V(v_p + 2 + j), 2 * SLOT, V(v_p + j)))
    a(valu('v_lshrrev_b32', V(tmp), 2, V(n16)))
    a(vcmp('v_cmp_eq_u32', V(tmp), V(g)))
    a(valu('v_and_b32', V(tmp2), 1, V(n16))); a(valu('v_lshlrev_b32', V(tmp2), 4, V(tmp2)))
    a(salu('s_mov_b32', S(T), 0x3F80))
    a(valu('v_lshlrev_b32', V(tmp2), V(tmp2), S(T)))
    a(valu('v_cndmask_b32', V(tmp2), 0, V(tmp2)))
    a(valu('v_and_b32', V(tmp), 2, V(n16)))
    a(vcmp('v_cmp_eq_u32', 0, V(tmp)))
    a(valu('v_cndmask_b32', V(row), 0, V(tmp2)))
    a(valu('v_sub_u32', V(sw), V(tmp2), V(row)))
    for r in (240, 241, 244, 245): a(valu('v_accvgpr_write_b32', A(r), 0))
    a(valu('v_accvgpr_write_b32', A(242), V(row))); a(valu('v_accvgpr_write_b32', A(243), V(sw)))
    if OPT['pf']:
        a(salu('s_lshr_b32', S(T), 's2', 3)); a(salu('s_lshl_b32', S(T), S(T), 2))
        a(salu('s_and_b32', S(s_cnt), 's2', 3)); a(salu('s_add_u32', S(T), S(T), S(s_cnt)))
        a(salu('s_lshl_b32', S(T), S(T), 2)); a(salu('s_add_u32', S(T), S(T), S(W)))
        a(salu('s_mul_i32', S(s_cnt), S(T), 120))
        a(valu('v_add_u32', V(38), S(s_cnt), V(lane))); a(valu('v_lshlrev_b32', V(38), 7, V(38)))
        a(valu('v_add_u32', V(39), 8192, V(38)))
        a(salu('s_mul_i32', S(s_cnt), S(T), 60))
        a(valu('v_add_u32', V(tmp), S(s_cnt), V(lane)))
        a(salu('s_mov_b32', S(s_cnt), 0x5555556))
        a(valu('v_mul_hi_u32', V(row), V(tmp), S(s_cnt)))
        a(valu('v_mul_u32_u24', V(tmp2), 48, V(row))); a(valu('v_sub_u32', V(tmp), V(tmp), V(tmp2)))
        a(valu('v_mul_u32_u24', V(tmp2), 86, V(tmp))); a(valu('v_lshrrev_b32', V(tmp2), 8, V(tmp2)))
        a(valu('v_mul_u32_u24', V(row), 12288, V(row)))
        a(valu('v_lshl_add_u32', V(row), V(tmp), 7, V(row)))
        a(valu('v_mul_u32_u24', V(tmp2), 384, V(tmp2)))
        a(valu('v_add_u32', V(row), V(row), V(tmp2))); a(valu('v_add_u32', V(37), 384, V(row)))
    a(valu('v_add_u32', V(v_pw), S(s_w6144), V(v_l16)))
    a(salu('s_mul_i32', S(s_ew), S(W), EXW)); a(salu('s_add_u32', S(s_ew), S(s_ew), XA))
    a(scmp('s_cmp_eq_u32', S(W), 3)); a(salu('s_cselect_b32', S(s_ew), 3 * SLOT, S(s_ew)))
    a(salu('s_mul_i32', S(s_er0), S(QH), EXW)); a(salu('s_add_u32', S(s_er0), S(s_er0), XA))
    a(salu('s_mov_b32', S(s_er1), XA + 2 * EXW)); a(scmp('s_cmp_eq_u32', S(QH), 1)); a(salu('s_cselect_b32', S(s_er1), 3 * SLOT, S(s_er1)))
    return P, [x for x in P2 if x is not None]

def make_seq(kind):
    seq = []
    def Q(r, accA=False): return [Slot('Q', j=j, rnd=r, accA=accA) for j in range(20)]
    def Aa(r):
        if not (OPT['pipe'] and f'{kind[0]}{r}' in OPT['pipes']):
            return [Slot(t, i=i, rnd=r, first=(i == 0), pipe=False) for i in range(16) for t in 'KV']
        o = [('K', 0)]
        for i in range(15): o += [('K', i + 1), ('V', i)]
        o.append(('V', 15))
        return [Slot(t, i=i, rnd=r, first=(i == 0), pipe=True) for t, i in o]
    def Pp(r): return [Slot('P', j=j, rnd=r, nh=2, ch=j // 2, hh=j % 2) for j in range(20)]
    def P4(): return [Slot('P', j=j, rnd=1, nh=4, ch=j // 4, hh=j % 4) for j in range(40)]
    if kind == 'X': seq = Q(0) + Aa(0) + Pp(0) + Q(1) + Aa(1) + Pp(1)
    elif kind == 'W': seq = Q(0) + Q(1) + Aa(0) + Aa(1) + P4()
    elif kind == 'Y': seq = Q(0) + Q(1) + Aa(0) + Pp(0) + Aa(1) + Pp(1)
    elif kind == 'Z': seq = Q(0) + Aa(0) + Q(1) + Aa(1) + P4()
    elif kind in 'IJ':
        q1 = Q(1, True); seq = Q(0); k = 0
        for i in range(16):
            nq = int(OPT['jpat'].strip()[i])
            seq += [Slot('K', i=i, rnd=0, first=(i == 0), pipe=False)] + q1[k:k + nq] + [Slot('V', i=i, rnd=0, first=(i == 0), pipe=False)]
            k += nq
        assert k == 20
        seq += (Aa(1) + P4()) if kind == 'I' else (Pp(0) + Aa(1) + Pp(1))
    elif kind[0] in 'FG':
        k = int(kind[1:]); assert k % 2 == 0 and 2 <= k <= 14
        a0 = Aa(0)
        seq = Q(0) + a0[:2 * k] + Q(1, True) + a0[2 * k:]
        seq += (Aa(1) + P4()) if kind[0] == 'F' else (Pp(0) + Aa(1) + Pp(1))
    for n, s in enumerate(seq): s.idx = n
    q = -1
    for s in seq:
        if s.typ == 'Q':
            if s.j % 4 == 0: q += 1
            s.xq = q
    return seq

def flat(items):
    o = []
    for it in items: o += flat(it) if isinstance(it, list) else [it]
    return o

def build_main(kind, stamps, pro2):
    seq = make_seq(kind)
    N = len(seq)
    for s in seq: build_mfmas(s)
    pfplan = {}
    def plan_pf(first, count, regs, at):
        for k in range(count):
            seq[first + k].pfreg = regs[k]
            pfplan.setdefault(at + k * OPT['pfstep'], []).append(seq[first + k])
    if kind == 'J': plan_pf(20, OPT['pfx0'], [24 * k for k in range(6)], OPT['pfat'])
    if kind == 'W' and OPT['pfw1']: plan_pf(40, OPT['pfw1'], [72, 96, 120], OPT['pfat'])
    if kind == 'X':
        plan_pf(20, OPT['pfx0'], [24 * k for k in range(6)], OPT['pfat'])
        plan_pf(92, OPT['pfx1'], [144, 168, 192, 120], 54 + OPT['pfat'])
    if kind == 'W': plan_pf(40, OPT['pfw0'], [72, 96, 120], 20 + OPT['pfat'])
    head = flat(x_items(seq[0])[:6]) + flat(dma_items(seq[0]))
    head += pro2
    head.append(I('', 'split'))
    head += flat(dma_items(seq[1])) + flat(x_items(seq[0])[6:]) + flat(dma_items(seq[2]))
    head.append(barrier(need=[('d', 0), ('xd', 0, 0 if OPT['xtag'] else 1)]))
    head += x_reads(seq[0])
    for j in range(5): head += frag_reads(seq[0], j)
    nstamp = 0
    fine = stamps and OPT['sp0'] >= 0
    if stamps: head = ([] if OPT['st0'] else stamp(0)) + [raw("s_memtime s[96:97]", 'smem')] + head + stamp(1); nstamp = 2
    post = []
    if fine:
        stamps = False
        for k in range(5 if OPT['cyc'] == 2 else 11):
            if OPT['sp0'] + k * OPT['spd'] < N:
                if OPT['cyc'] == 2:
                    seq[OPT['sp0'] + k * OPT['spd']].put(0, [raw(f"s_memrealtime s[{s_stamp+2*nstamp}:{s_stamp+2*nstamp+1}]", 'smem'),
                                                             raw(f"s_memtime s[{s_stamp+2*nstamp+2}:{s_stamp+2*nstamp+3}]", 'smem')]); nstamp += 2
                else:
                    seq[OPT['sp0'] + k * OPT['spd']].put(0, stamp(nstamp)); nstamp += 1
    if OPT['pf']:
        for k, (vr, srd) in enumerate(((37, sWQ), (38, sWO), (39, sWO))):
            seq[OPT['pfs'] + k * OPT['pfd']].put(21, bload(V(111), V(vr), S(srd, 4), 0, 0, ('pf', k), '', op='buffer_load_dword'))
    wp = OPT['wper']
    for n, s in enumerate(seq):
        nx = seq[n + 1] if n + 1 < N else None
        pv = seq[n - 1] if n else None
        for j in range(wp, 9, wp): s.load[3 * j - 1] += 1
        s.load[35] += 1
        for j in range(5, 12):
            for k, r in enumerate(frag_reads(s, j)): s.put(3 * (j - 5) + k, r)
        if nx is not None:
            need = [('f', s.idx, 11), ('d', nx.idx)] + ([('xd', nx.xq, (nx.j % 4) // 2 if OPT['xtag'] else 1)] if nx.typ == 'Q' and nx.j % 2 == 0 else [])
            s.put(26, barrier(need=need)); s.load[26] += 1
            if nx.typ == 'Q' and nx.j % 4 == 0 and nx.idx > 0:
                s.put(24, valu('v_xor_b32', V(v_x), XTOG, V(v_x))); s.put(25, valu('v_xor_b32', V(v_x + 1), XTOG, V(v_x + 1)))
            rr = [frag_reads(nx, j) for j in range(5)]
            xr = x_reads(nx) if nx.typ == 'Q' else []
            if s.typ == 'K' and s.pipe and xr: nx.pre += xr; xr = []
            spread([(s, g) for g in range(27, 32)], flat(rr[0] + xr[:1] + rr[1] + xr[1:] + rr[2]))
            spread([(s, g) for g in range(30, 34)], rr[3])
            spread([(s, g) for g in range(32, 36)], rr[4])
        def lead_of(t): return LEAD - OPT['ld'] if (kind == 'W' and OPT['la'] <= t < OPT['lb']) else LEAD
        its = []
        for t in range(n + 1, min(N, n + LEAD + 1)):
            if t >= LEAD and t - lead_of(t) == n: its = its + dma_items(seq[t])
        if n + 4 < N and seq[n + 4].typ == 'Q' and seq[n + 4].j % 4 == 0: its = its + x_items(seq[n + 4])[:6]
        if n + 3 < N and n >= 1 and seq[n + 3].typ == 'Q' and seq[n + 3].j % 4 == 0: its = its + x_items(seq[n + 3])[6:]
        for p in pfplan.get(n, []): its = its + prefill_loads(p)
        s.dma = its
        s.early = bool(s.typ == 'V' and OPT['early'] and its and not s.pipe and pv.typ == 'K')
    for n, s in enumerate(seq):
        nx = seq[n + 1] if n + 1 < N else None
        pv = seq[n - 1] if n else None
        if OPT['edef'] and pv is not None and pv.typ == 'V' and pv.i == 15:
            spread([(s, g) for g in range(27, 36)], s.dma[:4]); nx.dma = s.dma[4:] + nx.dma
        elif not s.early: spread([(s, g) for g in range(0, OPT['dend'])], s.dma, even=True)
        if s.typ == 'K' and stamps and s.i == 8 and not (kind[0] in 'FG' and s.rnd == 0): s.pre = stamp(nstamp) + s.pre; nstamp += 1
        if s.typ in 'KV' and s.pipe:
            if s.typ == 'K' and s.i == 0:
                SB[0] = 0
                nx.pre += softmax_init() + sm_fma(0) + sm_fma(1)
            elif s.typ == 'K':
                SB[0] = (s.i - 1) & 1
                ex, tail = sm_exp()
                spread([(s, g) for g in range(0, 35)], ex + tail)
            elif s.i < 15:
                SB[0] = (s.i + 1) & 1
                spread([(s, g) for g in range(3, 36)], sm_fmamax(0) + sm_fmamax(1), even=True)
                nx.pre += sm_check()
                if s.i == 14:
                    ex, tail = sm_exp()
                    nx.pre += ex
                    spread([(nx, g) for g in range(0, 6)], tail)
        elif s.typ == 'K':
            SB[0] = 0
            ex, tail = sm_exp()
            if s.first: rest = softmax_init() + sm_fma(0) + sm_fma(1) + ex
            else:
                spread([(s, g) for g in range(20, 36)], sm_fmamax(0))
                rest = sm_fmamax(1) + sm_check() + ex
            if nx.typ == 'Q':
                ws = []; k2 = n + 1
                while seq[k2].typ == 'Q': ws.append(seq[k2]); k2 += 1
                for w_ in ws:
                    spread([(w_, g) for g in range(0, OPT['dend'])], w_.dma, even=True); w_.dma = []
                spread([(w_, g) for w_ in ws for g in range(36)][3:-2], rest + tail)
                continue
            if nx.early:
                d = list(nx.dma); o = d[:2]; d = d[2:]
                step = max(1, len(rest) // (len(d) + 1))
                for k2, it in enumerate(rest):
                    o.append(it)
                    if k2 % step == step - 1 and d: o.append(d.pop(0))
                rest = o + d
            nx.pre += rest
            spread([(nx, g) for g in range(0, 6)], tail)
        if s.typ == 'Q' and s.accA and stamps and s.j in (0, 19) and kind not in 'IJ':
            if s.j == 0: s.pre += stamp(nstamp)
            else: nx.pre = stamp(nstamp) + nx.pre
            nstamp += 1
        if s.typ == 'Q' and s.j == 19 and not s.accA:
            dest = aQN if (kind in 'WY' and s.rnd == 1) else aQ
            cv = [q_convert_u(u, dest) for u in range(6)]
            k0 = 0
            if OPT['ovl']:
                spread([(s, g) for g in range(9, 20)], cv[0]); spread([(s, g) for g in range(20, 36)], cv[1]); k0 = 2
            nx.pre = flat(cv[k0:]) + nx.pre
            if stamps: nx.pre = nx.pre + stamp(nstamp); nstamp += 1
        if s.typ == 'V' and s.i == 15:
            pre = []
            if stamps: pre += stamp(nstamp); nstamp += 1
            toA = (kind[0] in 'WZFI' and s.rnd == 0)
            if kind in 'WY' and s.rnd == 0: pre += [valu('v_accvgpr_mov_b32', A(aQ + k), A(aQN + k)) for k in range(72)]
            k0 = 0
            if OPT['ovl']:
                spread([(s, g) for g in range(6, 14)], e_head())
                spread([(s, g) for g in range(14, 36)], [i for i in e_pack(0, s.rnd, False) if i.k != 'ds'], cap=2)
                pre += [i for i in e_pack(0, s.rnd, False) if i.k == 'ds']
                k0 = 1
            else: pre += e_head()
            if kind[0] in 'FGIJ' and s.rnd == 0:
                for u in range(6): pre += q_convert_a(u)
            for u in range(k0, 6): pre += e_pack(u, s.rnd, True)
            pre.append(barrier(need=[('ew', s.rnd)]))
            er = e_reads(s.rnd, toA)
            if OPT['edef']:
                nfirst = 0 if toA else 6
                pre += er[:nfirst]
                spread([(nx, g) for g in range(0, 24)], er[nfirst:])
                for it in nx.gaps[26]:
                    if it[0].k == 'barrier': it[0].need.append(('er', s.rnd, 1, 17))
                if not toA:
                    for k2 in range(2):
                        ps = seq[n + 1 + (k2 if nx.nh == 2 else 2 + k2)]
                        for u in range(6): ps.mf[6 * u].need = list(ps.mf[6 * u].need) + [('er', s.rnd, k2, 3 * u + 2)]
            else:
                pre += er
                pre.append(barrier(need=[('er', s.rnd, 1, 17)]))
            if stamps: pre += stamp(nstamp); nstamp += 1
            nx.pre = pre + nx.pre
        if s.typ == 'P':
            if s.hh == 0 and s.rnd == 1 and s.nh == 2 and (s.ch < 2 or not OPT['vinit']): s.pre += chunk_init(s.ch)
            if s.hh == s.nh - 1:
                hold = OPT['hold'] if s.nh == 4 else 0
                ce = chunk_end(s.ch, s.rnd == 1, s.ch < hold)
                if s.nh == 4 and OPT['nost']: ce = [i for i in ce if not (isinstance(i, I) and i.k == 'vstore')]
                if s.ch >= hold > 0:
                    per = -(-hold // (10 - hold)); k0 = (s.ch - hold) * per
                    for c2 in range(k0, min(hold, k0 + per)): ce = ce + flush_held(c2)
                if s.ch == 9:
                    if stamps: ce = ce + stamp(nstamp); nstamp += 1
                    if nx is None: post += ce
                    else: nx.pre = ce + nx.pre
                else:
                    if s.rnd == 1 and s.nh == 2 and OPT['vinit'] and s.ch < 8:
                        ini = chunk_init_valu(s.ch + 2)
                        ce = ce[:15] + interleave(ce[15:], ini[:3]) + ini[3:]
                    spread([(seq[n + 1 + k], g) for k in range(s.nh) for g in range(36)][3:-3], ce, even=True)
    if OPT['fuse']:
        seq[-1].put(OPT['pollgap'], bload(V(v_poll), V(v_fa), S(sWS, 4), 0, 0, ('poll',), ' sc1', op='buffer_load_dword'))
        seq[-1].put(30, raw("s_load_dwordx4 s[60:63], s[0:1], 80", 'smem'))
        post.append(waitfor([('poll',)]))
    prog = list(head)
    for s in seq:
        prog.append(mark('m'))
        prog += flat(s.pre)
        for k in range(36):
            prog.append(s.mf[k]); prog += flat(s.gaps[k])
    prog.append(mark('m'))
    prog += flat(post)
    return prog, nstamp

def stamp_out(nstamp):
    o = ["s_waitcnt vmcnt(0) lgkmcnt(0)"]
    o.append(f"s_memrealtime s[{s_stamp+2*nstamp}:{s_stamp+2*nstamp+1}]")
    o.append(f"s_memtime s[98:99]")
    o.append("s_waitcnt lgkmcnt(0)")
    o.append(f"s_lshl_b32 s{s_tmp}, s2, 8")
    o.append(f"s_lshl_b32 s{s_cnt}, s{s_w}, 6")
    o.append(f"s_add_u32 s{s_tmp}, s{s_tmp}, s{s_cnt}")
    o.append(f"s_add_u32 s{s_tmp}, s{s_tmp}, {STAMP_OFF}")
    o.append("v_mov_b32 v1, 0")
    for n in range(nstamp + 1):
        o.append(f"v_mov_b32 v2, s{s_stamp+2*n}")
        o.append(f"buffer_store_dword v2, v1, s[{sWS}:{sWS+3}], s{s_tmp} offen offset:{4*n}")
    o.append(f"s_sub_u32 s{s_cnt}, s98, s96")
    o.append(f"v_mov_b32 v2, s{s_cnt}")
    o.append(f"buffer_store_dword v2, v1, s[{sWS}:{sWS+3}], s{s_tmp} offen offset:60")
    o.append(f"v_mov_b32 v2, {nstamp+1}")
    o.append(f"buffer_store_dword v2, v1, s[{sWS}:{sWS+3}], s{s_tmp} offen offset:56")
    return o

FLAG_OFF = STAMP_OFF + 65536
v_fl = 109; v_fa = 110
def red_loads(a, bases, hq, ldfl, vb):
    off = (((hq & 1) << 3) | (hq >> 1)) * PART_WG
    for k, bs in enumerate(bases):
        r = vb + (k * 8 + hq) * 4
        a(f"s_add_u32 s{s_t0+1}, s{bs}, {off}")
        a(f"buffer_load_dwordx4 v[{r}:{r+3}], v{v_l16}, s[{sWS}:{sWS+3}], s{s_t0+1} offen{ldfl}")
def red_outaddr(a, f, dst, br, b):
    t = s_t0
    a(f"s_mul_hi_u32 s{t}, s{f}, 0x15555556")
    a(f"s_mul_i32 s{t+1}, s{t}, 12"); a(f"s_sub_u32 s{t+1}, s{f}, s{t+1}")
    a(f"s_mul_hi_u32 s{t+2}, s{t+1}, 0x55555556")
    a(f"s_mul_i32 s{t+3}, s{t+2}, 3"); a(f"s_sub_u32 s{t+3}, s{t+1}, s{t+3}")
    a(f"s_and_b32 s{dst}, s{t+2}, 1"); a(f"s_mul_i32 s{dst}, s{dst}, 48"); a(f"s_lshl_b32 s{t+3}, s{t+3}, 4")
    a(f"s_add_u32 s{dst}, s{dst}, s{t+3}")
    a(f"s_mul_i32 s{t+3}, s{b}, 96"); a(f"s_add_u32 s{dst}, s{dst}, s{t+3}")
    a(f"s_mul_i32 s{dst}, s{dst}, 2560")
    a(f"s_mul_i32 s{t+3}, s{br}, 1280"); a(f"s_add_u32 s{dst}, s{dst}, s{t+3}")
    a(f"s_lshl_b32 s{t+3}, s{t}, 7"); a(f"s_add_u32 s{dst}, s{dst}, s{t+3}")
    a(f"s_lshr_b32 s{t+3}, s{t+2}, 1"); a(f"s_lshl_b32 s{t+3}, s{t+3}, 6"); a(f"s_add_u32 s{dst}, s{dst}, s{t+3}")
def red_sum(a, nf, outs, vb):
    for k in range(nf):
        ac = 64 + 8 * (k % 2)
        for hq in range(8):
            for q in range(4):
                r = vb + (k * 8 + hq) * 4 + q
                if hq == 0:
                    a(f"v_lshlrev_b32 v{ac+q}, 16, v{r}"); a(f"v_and_b32 v{ac+4+q}, 0xffff0000, v{r}")
                else:
                    a(f"v_lshlrev_b32 v4, 16, v{r}"); a(f"v_and_b32 v{r}, 0xffff0000, v{r}")
                    a(f"v_add_f32 v{ac+q}, v{ac+q}, v4"); a(f"v_add_f32 v{ac+4+q}, v{ac+4+q}, v{r}")
        o = 48 + 4 * k
        for q in range(4): a(f"v_cvt_pk_bf16_f32 v{o+q}, v{ac+q}, v{ac+4+q}")
        a("s_nop 1")
        a(f"v_permlane32_swap_b32 v{o}, v{o+2}"); a(f"v_permlane32_swap_b32 v{o+1}, v{o+3}")
        a("s_nop 1")
        a(f"v_permlane16_swap_b32 v{o}, v{o+2}"); a(f"v_permlane16_swap_b32 v{o+1}, v{o+3}")
        a("s_nop 1")
        a(f"buffer_store_dwordx4 v[{o}:{o+3}], v2, s[{sK}:{sK+3}], s{outs[k]} offen{OPT['outst']}")

v_poll = 39
def fused_reduce(stamps=False):
    L = []; a = L.append
    def st(n):
        if stamps: a(f"s_memrealtime s[{s_stamp+2*n}:{s_stamp+2*n+1}]")
    sD = sV
    br, b, pb, done, last, it, new, slc, vw, extra, pend, stage = 28, 29, 30, 31, 32, 33, 34, 35, 36, 37, 46, 47
    fs = [38, 39, 40, 41]; bases = [42, 43, 44, 45]; outs = [12, 13, 14, 15]
    a("L_red:")
    a(f"v_cmp_ne_u32 vcc, v{v_poll}, v{v_fl}")
    a(f"s_bfe_u32 s{br}, s2, 0x10002"); a(f"s_lshr_b32 s{b}, s2, 4")
    a(f"s_lshl_b32 s{pb}, s{b}, 4"); a(f"s_lshl_b32 s{it}, s{br}, 2"); a(f"s_add_u32 s{pb}, s{pb}, s{it}")
    a(f"s_mul_i32 s{pb}, s{pb}, {PART_WG}")
    a(f"s_mov_b32 s{slc}, s{s_hq}"); a(f"s_mov_b32 s{vw}, s{s_w}"); a(f"s_mov_b32 s{last}, 0"); a(f"s_mov_b32 s{extra}, 0")
    a(f"s_lshl_b32 s{stage}, 1, s{s_hq}")
    a(f"s_andn2_b32 s{new}, vcc_lo, s{stage}"); a(f"s_and_b32 s48, s{new}, 0xff")
    a(f"s_mov_b32 s{new}, 0")
    for _ in range(OPT['pre']):
        a(f"s_sub_u32 s49, 0, s48"); a("s_and_b32 s49, s49, s48")
        a(f"s_or_b32 s{new}, s{new}, s49"); a("s_xor_b32 s48, s48, s49")
    a("L_red_setup:")
    a(f"s_mul_i32 s{it}, s{slc}, 15")
    for k in range(4):
        a(f"s_add_u32 s{fs[k]}, s{vw}, {4*k}")
        if k == 3: a(f"s_min_u32 s{fs[k]}, s{fs[k]}, 14")
        a(f"s_add_u32 s{fs[k]}, s{fs[k]}, s{it}")
        a(f"s_lshl_b32 s{bases[k]}, s{fs[k]}, 10"); a(f"s_add_u32 s{bases[k]}, s{bases[k]}, s{pb}")
    a(f"s_mov_b32 s{done}, 0"); a(f"s_mov_b32 s{it}, 0"); a(f"s_mov_b32 s{pend}, 0")
    a("L_red_issue:")
    for hq in range(8):
        a(f"s_bitcmp1_b32 s{new}, {hq}"); a(f"s_cbranch_scc0 L_red_s{hq}")
        red_loads(a, bases, hq, OPT['rld'], 112)
        a(f"L_red_s{hq}:")
    a(f"s_or_b32 s{s_t0}, s{stage}, s{it}"); a("s_cbranch_scc1 L_red_nset")
    a(f"v_lshrrev_b32 v3, 4, v{v_l16}")
    a("v_and_b32 v2, 15, v3"); a("v_mul_u32_u24 v2, 2560, v2")
    a("v_lshrrev_b32 v3, 4, v3"); a("v_lshl_add_u32 v2, v3, 4, v2")
    for k in range(4): red_outaddr(a, fs[k], outs[k], br, b)
    for r in range(64, 96): a(f"v_mov_b32 v{r}, 0")
    a(f"s_mov_b32 s{it}, 1")
    a("L_red_nset:")
    a(f"s_or_b32 s{done}, s{done}, s{new}"); a(f"s_or_b32 s{pend}, s{pend}, s{new}")
    a(f"s_cmp_eq_u32 s{stage}, 0"); a("s_cbranch_scc1 L_red_norm")
    a(f"s_lshl_b32 s{s_t0}, s{br}, 4"); a(f"s_add_u32 s{s_t0}, s{s_t0}, s{b}"); a(f"s_lshl_b32 s{s_t0}, s{s_t0}, 2")
    a(f"v_mov_b32 v6, s{s_t0}")
    a("s_waitcnt lgkmcnt(0)")
    a(f"s_mov_b32 s{sK}, s60"); a(f"s_mov_b32 s{sK+1}, s61"); a(f"s_mov_b32 s{sK+2}, 3932160"); a(f"s_mov_b32 s{sK+3}, 0x20000")
    a(f"s_mov_b32 s{sD}, s62"); a(f"s_mov_b32 s{sD+1}, s63"); a(f"s_mov_b32 s{sD+2}, 256"); a(f"s_mov_b32 s{sD+3}, 0x20000")
    a(f"s_bcnt1_i32_b32 s{s_t0}, s{new}")
    for k in range(OPT['pre'], 0, -1):
        a(f"s_cmp_lt_u32 s{s_t0}, {k}"); a(f"s_cbranch_scc1 L_red_w{k-1}")
        a(f"s_waitcnt vmcnt({4*k})"); a("s_branch L_red_bar")
        a(f"L_red_w{k-1}:")
    a("s_waitcnt vmcnt(0)")
    a("L_red_bar:")
    a("s_barrier")
    st(8)
    a(f"s_or_b32 s{new}, s{stage}, s48"); a(f"s_mov_b32 s49, s{stage}"); a(f"s_mov_b32 s{stage}, 0")
    a(f"s_cmp_lg_u32 s{s_w}, 0"); a("s_cbranch_scc1 L_red_issue")
    a(f"s_mov_b32 exec_lo, s49"); a("s_mov_b32 exec_hi, 0")
    a(f"v_add_u32 v8, 1, v{v_fl}")
    a(f"buffer_store_dword v8, v{v_fa}, s[{sWS}:{sWS+3}], 0 offen sc1")
    a("v_mov_b32 v7, 1")
    a(f"buffer_atomic_add v7, v6, s[{sD}:{sD+3}], 0 offen sc0")
    a("s_mov_b64 exec, -1")
    a("s_branch L_red_issue")
    a("L_red_norm:")
    a(f"s_cmp_eq_u32 s{done}, 0xff"); a("s_cbranch_scc1 L_red_wait")
    a("L_red_poll:")
    a(f"buffer_load_dword v{v_poll}, v{v_fa}, s[{sWS}:{sWS+3}], 0 offen sc1")
    a(f"s_add_u32 s{it}, s{it}, 1")
    a("L_red_wait:")
    st(10)
    a("s_waitcnt vmcnt(0)")
    st(11)
    for hq in range(8):
        a(f"s_bitcmp1_b32 s{pend}, {hq}"); a(f"s_cbranch_scc0 L_red_a{hq}")
        for k in range(4):
            r = 112 + (k * 8 + hq) * 4; ac = 64 + 8 * k
            a(f"v_mfma_f32_16x16x32_bf16 v[{ac}:{ac+3}], a[{aE0}:{aE0+3}], v[{r}:{r+3}], v[{ac}:{ac+3}]")
            a(f"v_mfma_f32_16x16x32_bf16 v[{ac+4}:{ac+7}], a[{aE1}:{aE1+3}], v[{r}:{r+3}], v[{ac+4}:{ac+7}]")
        a(f"L_red_a{hq}:")
    a(f"s_mov_b32 s{pend}, 0")
    a(f"s_cmp_eq_u32 s{done}, 0xff"); a("s_cbranch_scc1 L_red_sum")
    a(f"v_cmp_ne_u32 vcc, v{v_poll}, v{v_fl}")
    a("s_nop 4")
    a(f"s_andn2_b32 s{new}, vcc_lo, s{done}"); a(f"s_and_b32 s{new}, s{new}, 0xff")
    a("s_cbranch_scc1 L_red_issue")
    if OPT['sleep']: a(f"s_sleep {OPT['sleep']}")
    a(f"s_and_b32 s{s_t0}, s{it}, {OPT['cper'] - 1}"); a("s_cbranch_scc1 L_red_poll")
    a("s_mov_b64 exec, 1")
    a(f"s_cmp_lt_u32 s{it}, {OPT['polls']}"); a("s_cbranch_scc1 L_red_cnt")
    a(f"s_lshl_b32 s{new}, 1, s{s_hq}")
    a(f"v_mov_b32 v8, s{new}")
    a(f"buffer_atomic_or v8, v6, s[{sD}:{sD+3}], 0 offen offset:128 sc0")
    a("s_waitcnt vmcnt(0)")
    a("L_red_cnt:")
    a("v_mov_b32 v8, 0")
    a(f"buffer_atomic_add v8, v6, s[{sD}:{sD+3}], 0 offen sc0")
    a("s_waitcnt vmcnt(0)")
    a(f"v_readfirstlane_b32 s{s_t0}, v8")
    a("s_mov_b64 exec, -1")
    a(f"s_andn2_b32 s{new}, 0xff, s{done}")
    a("s_nop 2")
    a(f"s_cmp_eq_u32 s{s_t0}, 8"); a("s_cbranch_scc1 L_red_issue")
    a(f"s_cmp_lt_u32 s{it}, {OPT['polls']}"); a("s_cbranch_scc1 L_red_poll")
    a("s_branch L_red_next")
    a("L_red_sum:")
    a(f"s_or_b32 s{s_t0}, s{s_w}, s{last}"); a("s_cbranch_scc1 L_red_sum2")
    a("s_mov_b64 exec, 1")
    a("v_mov_b32 v9, 0")
    a(f"buffer_atomic_or v9, v6, s[{sD}:{sD+3}], 0 offen offset:128 sc0")
    a("s_mov_b64 exec, -1")
    a("L_red_sum2:")
    a("s_nop 7")
    for k in range(4):
        for q in range(4): a(f"v_cvt_pk_bf16_f32 v{48+4*k+q}, v{64+8*k+2*q}, v{65+8*k+2*q}")
    for op in ("v_permlane32_swap_b32", "v_permlane16_swap_b32"):
        for k in range(4):
            o = 48 + 4 * k
            a(f"{op} v{o}, v{o+2}"); a(f"{op} v{o+1}, v{o+3}")
    a("s_nop 1")
    for k in range(4):
        a(f"buffer_store_dwordx4 v[{48+4*k}:{51+4*k}], v2, s[{sK}:{sK+3}], s{outs[k]} offen{OPT['outst']}")
    a("L_red_next:")
    a(f"s_cmp_lg_u32 s{s_w}, 0"); a("s_cbranch_scc1 L_red_done")
    a(f"s_cmp_lg_u32 s{last}, 0"); a("s_cbranch_scc1 L_red_more")
    a("s_waitcnt vmcnt(0)")
    a(f"v_readlane_b32 s{last}, v7, s{s_hq}")
    a(f"v_readlane_b32 s{extra}, v9, 0")
    a("s_nop 3")
    a(f"s_cmp_eq_u32 s{last}, 7"); a("s_cbranch_scc0 L_red_done")
    a(f"s_mov_b32 s{vw}, 3")
    a("L_red_more:")
    a(f"s_add_u32 s{vw}, s{vw}, 1"); a(f"s_and_b32 s{vw}, s{vw}, 3"); a("s_cbranch_scc1 L_red_go")
    a(f"s_cmp_eq_u32 s{extra}, 0"); a("s_cbranch_scc1 L_red_done")
    a(f"s_ff1_i32_b32 s{slc}, s{extra}"); a(f"s_bitset0_b32 s{extra}, s{slc}")
    a("L_red_go:")
    a(f"s_mov_b32 s{new}, 0xff")
    a("s_nop 7")
    a("s_branch L_red_setup")
    a("L_red_done:")
    return L

def reduce_kernel():
    L = []; a = L.append
    a("s_cmp_ge_u32 s2, 960"); a("s_cbranch_scc1 R_end")
    a("s_load_dwordx2 s[12:13], s[0:1], 96"); a("s_load_dwordx2 s[14:15], s[0:1], 80")
    a("v_lshrrev_b32 v1, 6, v0"); a("s_nop 0"); a("v_readfirstlane_b32 s3, v1")
    a("v_and_b32 v3, 63, v0")
    a("s_nop 2")
    a("s_lshl_b32 s16, s2, 2"); a("s_add_u32 s16, s16, s3")
    a("s_mul_hi_u32 s17, s16, 0x2222223")
    a("s_mul_i32 s18, s17, 120"); a("s_sub_u32 s34, s16, s18")
    a("s_lshr_b32 s28, s17, 4"); a("s_and_b32 s29, s17, 15")
    a("s_lshl_b32 s30, s29, 4"); a("s_lshl_b32 s22, s28, 2"); a("s_add_u32 s30, s30, s22")
    a(f"s_mul_i32 s30, s30, {PART_WG}")
    a(f"v_lshlrev_b32 v{v_l16}, 4, v3")
    a("v_and_b32 v2, 15, v3"); a("v_mul_u32_u24 v2, 2560, v2")
    a("v_lshrrev_b32 v3, 4, v3"); a("v_lshl_add_u32 v2, v3, 4, v2")
    a("s_waitcnt lgkmcnt(0)")
    a(f"s_mov_b32 s{sWS}, s12"); a(f"s_mov_b32 s{sWS+1}, s13"); a(f"s_mov_b32 s{sWS+2}, 438042624"); a(f"s_mov_b32 s{sWS+3}, 0x20000")
    a(f"s_mov_b32 s{sK}, s14"); a(f"s_mov_b32 s{sK+1}, s15"); a(f"s_mov_b32 s{sK+2}, 3932160"); a(f"s_mov_b32 s{sK+3}, 0x20000")
    a("s_lshl_b32 s42, s34, 10"); a("s_add_u32 s42, s42, s30")
    for hq in range(8): red_loads(a, [42], hq, "", 8)
    red_outaddr(a, 34, 12, 28, 29)
    a("s_waitcnt vmcnt(0)")
    red_sum(a, 1, [12], 8)
    a("R_end:")
    a("s_endpgm")
    return L

DESC = """.section .rodata,"a"
.p2align 6
.amdhsa_kernel {name}
  .amdhsa_next_free_vgpr {nv}
  .amdhsa_next_free_sgpr {ns}
  .amdhsa_accum_offset {acc}
  .amdhsa_group_segment_fixed_size 0
  .amdhsa_kernarg_size 104
  .amdhsa_user_sgpr_count 2
  .amdhsa_user_sgpr_kernarg_segment_ptr 1
  .amdhsa_system_sgpr_workgroup_id_x 1
.end_amdhsa_kernel
"""
def far_jump(lbl, uid):
    return [f"s_getpc_b64 s[{s_ret}:{s_ret+1}]", f"{uid}:", f"s_add_u32 s{s_ret}, s{s_ret}, {lbl}-{uid}",
            f"s_addc_u32 s{s_ret+1}, s{s_ret+1}, 0", f"s_setpc_b64 s[{s_ret}:{s_ret+1}]"]

def main():
    ap = argparse.ArgumentParser()
    ap.add_argument('-o', default=f'cdna_kernels/{KN}.s')
    ap.add_argument('--kind', default='J+W')
    ap.add_argument('--stamps', action='store_true')
    ap.add_argument('-v', action='store_true')
    ap.add_argument('--drop', default='')
    ap.add_argument('--opt', default='')
    a = ap.parse_args()
    for kv in filter(None, a.opt.split(',')):
        k, v = kv.split('=')
        fl = '' if v == 'df' else ' ' + v.replace('+', ' ')
        if k == 'w':
            for kk in ('wq0', 'wq1', 'wo0', 'wo1', 'x0', 'x1'): OPT[kk] = fl
        elif isinstance(OPT[k], int): OPT[k] = int(v, 0)
        else: OPT[k] = fl
    if not OPT['fuse'] and OPT['st'] == ' sc1': OPT['st'] = ''
    p1, p2 = prologue()
    p1, _ = fix_hazards(p1)
    kinds = a.kind.split('+')
    lines = []; nn = 0
    if len(kinds) > 1:
        pat = OPT['pat'].strip()
        pat = (pat * 32)[:32]
        lo = sum(int(c) << (2 * i) for i, c in enumerate(pat[:16])); hi = sum(int(c) << (2 * i) for i, c in enumerate(pat[16:]))
        lines += [f"; classes {pat}", f"s_mov_b32 s{s_ret}, {hex(lo)}", f"s_mov_b32 s{s_ret+1}, {hex(hi)}", f"s_lshr_b32 s{s_cnt}, s2, 3", f"s_lshl_b32 s{s_cnt}, s{s_cnt}, 1",
                  f"s_lshr_b64 s[{s_ret}:{s_ret+1}], s[{s_ret}:{s_ret+1}], s{s_cnt}", f"s_and_b32 s{s_cnt}, s{s_ret}, 3"]
        for ci in range(1, len(kinds)):
            lines += [f"s_cmp_eq_u32 s{s_cnt}, {ci}", f"s_cbranch_scc0 L_nc{ci}"] + far_jump(f'L_cls{ci}', f'L_pc{ci}') + [f"L_nc{ci}:"]
    for ci, kind in enumerate(kinds):
        body, nstamp = build_main(kind, a.stamps, p2)
        body = insert_waits(body)
        if a.drop:
            dr = a.drop.split(',')
            body = [i for i in body if i.k not in dr]
        body, n1 = fix_hazards(body, a.v); nn += n1
        k = [i for i, x in enumerate(body) if x.k == 'split'][0]
        if ci == 0: common = [x.t for x in body[:k]]
        else: assert common == [x.t for x in body[:k]]
        body = body[k + 1:]
        l1, s1 = compress(body, S(s_cnt), uid=f'C{ci}_')
        s1 = [x.replace('L_rare', f'L_rare{ci}') for x in s1]
        lines += [f"L_cls{ci}:"]
        lines += l1
        if a.stamps: lines += [f"s_mov_b32 s3, {12 if OPT['rst'] else nstamp}"]
        NS = 12
        if a.stamps: lines += [f"s_memrealtime s[{s_stamp+2*NS}:{s_stamp+2*NS+1}]"]
        if OPT['fuse']: lines += [x.replace('L_red', f'L_r{ci}') for x in fused_reduce(a.stamps and OPT['rst'])]
        if a.stamps:
            so = stamp_out(NS + 1)
            so = [x.replace(f"v_mov_b32 v2, {NS+2}", "v_mov_b32 v2, s3") for x in so]
            lines += ["s_mov_b64 exec, -1"] + so
        lines += ["s_endpgm"]
        lines += s1 + rare_path(f'L_rare{ci}_0', 0) + rare_path(f'L_rare{ci}_1', 1)
    hdr = open(f'cdna_kernels/{KN}.s.ref').read().split('\n')
    hdr = [l for l in hdr if l.startswith(';') and '@launch' not in l and 'Override launch' not in l and 'grid=ceil' not in l]
    if OPT['fuse']: out = hdr + [f"; @launch grid=(256,1,1) block=(256,1,1) lds={LDS_BYTES}"]
    else: out = hdr + [f"; @launch kernel={KN}_kernel grid=(256,1,1) block=(256,1,1) lds={LDS_BYTES}",
                       "; @launch kernel=reduce_kernel grid=(960,1,1) block=(256,1,1) lds=0"]
    doc = [
        "; Generated by a script (hand-designed schedule). One workgroup per CU handles (branch, batch, 4 heads) in two rounds of",
        "; two heads: wave = (head of the pair, half of the 96 query rows). Every operand tile (K, V, wq, wo: 24 KiB 'slots') streams",
        "; through a 4-deep LDS ring by LDS-DMA with XOR-swizzled source addresses; 16x16x32 bf16 MFMAs compute Q^T, S^T, O^T, out^T.",
        "; Online softmax: running max with a run-time check (rescale when a score exceeds it by more than 2^8).",
        "; Two workgroup classes order their phases differently so that K/V streaming and projection work overlap across the chip.",
        "; The 8 workgroups of one (branch, batch) publish bf16 partials in d_ws and reduce one slice each (flags in d_ws,",
        "; arrival counter and hand-over mask in d_debug; a bounded wait hands the slice to the last arriver).",
    ]
    nhdr = len(out) + len(doc)
    out += doc + ['.amdgcn_target "amdgcn-amd-amdhsa--gfx950"', '.text',
            f'.globl {KN}_kernel', '.p2align 8', f'.type {KN}_kernel,@function', f'{KN}_kernel:']
    out += ["s_cmp_lt_u32 s2, 256", "s_cbranch_scc1 L_go", "s_endpgm", "L_go:"]
    if a.stamps and OPT['st0']: out += [f"s_memrealtime s[{s_stamp}:{s_stamp+1}]"]
    if OPT['cpf'] == 2:
        out += [f"s_getpc_b64 s[{s_ret}:{s_ret+1}]", "L_cp:", f"s_lshr_b32 s{s_tmp}, s2, 3", f"s_lshl_b32 s{s_tmp}, s{s_tmp}, 13",
                "v_lshrrev_b32 v1, 2, v0", "v_lshlrev_b32 v1, 7, v1", f"v_add_u32 v1, s{s_tmp}, v1", "v_min_u32 v1, L_code_end-L_cp-4, v1",
                f"global_load_dword v{v_t+10}, v1, s[{s_ret}:{s_ret+1}]"]
    if OPT['half']: out += [f"s_and_b32 s3, s2, {OPT['half']}", "s_cbranch_scc0 L_go2", "s_endpgm", "L_go2:"]
    if OPT['cpf'] == 1: out += [f"s_getpc_b64 s[{s_ret}:{s_ret+1}]", "L_cp0:", f"s_sub_u32 s{s_ret}, s{s_ret}, L_cp0-L_go", f"s_subb_u32 s{s_ret+1}, s{s_ret+1}, 0"]
    out += [i.t for i in p1] + common + lines + ["L_code_end:"]
    if not OPT['fuse']:
        out += ['.globl reduce_kernel', '.p2align 8', '.type reduce_kernel,@function', 'reduce_kernel:'] + reduce_kernel()
    out.append(DESC.format(name=KN + '_kernel', nv=512, ns=102, acc=256))
    if not OPT['fuse']: out.append(DESC.format(name='reduce_kernel', nv=88, ns=72, acc=88))
    txt = "\n".join(out) + "\n"
    if OPT['mac']:
        txt = txt.replace("v_mfma_f32_16x16x32_bf16 ", "M ").replace("ds_read_b64_tr_b16 ", "T ").replace("v_cvt_pk_bf16_f32 ", "C ")
        txt = txt.replace("v_accvgpr_write_b32 ", "AW ").replace("buffer_load_dwordx4 ", "L ").replace(", ", ",")
        mac = [".macro M a:vararg", "v_mfma_f32_16x16x32_bf16 \\a", ".endm", ".macro T a:vararg", "ds_read_b64_tr_b16 \\a", ".endm",
               ".macro C a:vararg", "v_cvt_pk_bf16_f32 \\a", ".endm", ".macro AW a:vararg", "v_accvgpr_write_b32 \\a", ".endm",
               ".macro L a:vararg", "buffer_load_dwordx4 \\a", ".endm"]
        txt = txt.replace(".text\n", ".text\n" + "\n".join(mac) + "\n", 1)
        head = "\n".join(out[:nhdr + 1])
        txt = head + txt[txt.index("\n.text\n"):] if OPT['fuse'] else txt
    open(a.o, 'w').write(txt)
    print(f"wrote {a.o}: {len(out)} lines, {nn} hazard nops")

if __name__ == '__main__':
    main()
```

```python
import sys, math, argparse, struct
sys.path.insert(0, 'gen')
from asmlib import *

KN = 'concat_heads__mha_block_cached__gqa_block_cached__near_ridge'
SLOT = 24576; NBUF = 4; LEAD = 3; XT = 12288
XA = 0x18000; XB_ = 0x20000; XTOG = XA ^ XB_
LDS_BYTES = XB_ + 2 * XT
EXW = 18432
PART_WG = 122880
STAMP_OFF = 256 * PART_WG
H = 192 * 1280

OPT = {'wq0': '', 'wq1': '', 'wo0': '', 'wo1': '', 'x0': '', 'x1': '', 'kv': ' nt', 'st': ' sc1', 'rot': 1,
       'cmask': 0xAAAAAAAA, 'half': 0, 'early': 1, 'sp0': -1, 'spd': 2, 'fuse': 1, 'wper': 3, 'ovl': 1, 'outst': ' sc1', 'sleep': 0, 'polls': 3000, 'rld': ' sc1', 'rst': 0, 'cyc': 0, 'cpf': 1, 'pipe': 1, 'dend': 36, 'kvend': 36, 'rot2': 0, 'pat': '01', 'mac': 1, 'hold': 6, 'nost': 0, 'pf': 0, 'pfs': 4, 'pfd': 4, 'ntp': 0, 'st0': 1, 'pfx0': 0, 'pfx1': 0, 'pfw0': 0, 'pfw1': 0, 'xtag': 1, 'pollgap': 8, 'pre': 1, 'cper': 32, 'la': 0, 'lb': 0, 'ld': 2, 'pfat': 3, 'pfstep': 2, 'rotq0': 1, 'snake': 1, 'jpat': ' 0000111122222222', 'pipes': ' X0X1W0W1F0F1G0G1I1J1', 'edef': 1, 'vinit': 0}

sK, sV, sWQ, sWO, sX, sWS = 4, 8, 12, 16, 20, 24
s_w6144, s_k, s_v, s_wq, s_wo, s_x, s_xwr, s_tmp, s_cnt, s_c = range(28, 38)
s_wqb, s_wql, s_xb, s_xl, s_wob, s_wol, s_pt, s_ptb, s_ptl = range(38, 47)
s_ew, s_er0, s_er1, s_w, s_hq = range(47, 52)
s_ret = 52
s_tmp2 = 63
s_rq = 100; s_rx = 101
s_t0 = 54
s_stamp = 64
v_l16 = 0; v_k = 1; v_v = 5; v_p = 13; v_x = 17
v_m, v_l = 19, 22
v_t = 25
vP = 40; vS = 52; vXF = 76; v_dkv, v_dwq, v_dwx = 100, 103, 106; vO = 112
vACC = (76, 52)
aQN = 0; aRES = 0; aQ = 144; aF = 216; aE1 = 240; aE0 = 242

def Oreg(dt, qt): return vO + (dt * 3 + qt) * 4
SB = [0]
def Sbase(): return (vS, vXF)[SB[0]]
def Sreg(t, qt): return Sbase() + (t * 3 + qt) * 4

class Slot:
    def __init__(self, typ, **kw):
        self.typ = typ; self.__dict__.update(kw)
        self.pre = []; self.gaps = [[] for _ in range(36)]; self.mf = []; self.load = [0] * 36
    def put(self, gap, item):
        if isinstance(item, I): item = [item]
        self.gaps[gap].append(item); self.load[gap] += sum(i.cost for i in item)

def spread(slots_gaps, items, cap=2, even=False):
    items = [[x] if isinstance(x, I) else x for x in items]
    if not items: return
    level = cap
    while True:
        plan = []; k = 0
        free = [max(0, level - s.load[g]) for s, g in slots_gaps]
        tot_free = sum(free); tot_it = sum(sum(i.cost for i in it) for it in items)
        used = 0; seen_free = 0
        for n, (s, g) in enumerate(slots_gaps):
            ld = s.load[g]; seen_free += free[n]
            while k < len(items):
                c = sum(i.cost for i in items[k])
                if ld + c > level and not (ld == 0 and c > level): break
                if even and tot_free > tot_it and (used + c) * tot_free > seen_free * tot_it + tot_free: break
                plan.append((s, g, items[k])); ld += c; k += 1; used += c
        if k == len(items): break
        if even: even = False
        else: level += 1
    for s, g, it in plan: s.put(g, it)

def frag_reads(sl, j):
    d = aF + (j % 6) * 4
    tag = ('f', sl.idx, j)
    buf = sl.idx % NBUF
    hi = buf >> 1; bo = (buf & 1) * SLOT
    if sl.typ == 'K':
        t, ks = divmod(j, 6)
        return [dsread('ds_read_b128', A(d, 4), V(v_k + hi * 2 + (ks & 1)), bo + t * 6144 + (ks >> 1) * 128, tag)]
    if sl.typ in ('V', 'Q'):
        off = bo + (j >> 2) * 128; a = V(v_v + hi * 4 + (j & 3))
        return [dsread('ds_read_b64_tr_b16', A(d, 2), a, off, tag), dsread('ds_read_b64_tr_b16', A(d + 2, 2), a, off + 6144, tag)]
    if sl.typ == 'P':
        u, nt = divmod(j, 2); a = V(v_p + hi * 2 + nt); off = bo + u * 4096
        return [dsread('ds_read_b64_tr_b16', A(d, 2), a, off, tag), dsread('ds_read_b64_tr_b16', A(d + 2, 2), a, off + 2048, tag)]

def x_reads(sl):
    return [dsread('ds_read_b128', V(vXF + (sl.j % 2) * 12 + qt * 4, 4), V(v_x + (sl.j & 1)),
                   ((sl.j >> 1) & 1) * XT + qt * 2048, ('x', sl.idx)) for qt in range(3)]

def wrapadd(reg, inc, lim, base):
    return [salu('s_add_u32', S(reg), S(reg), inc & 0xffffffff),
            [scmp('s_cmp_eq_u32', S(reg), S(lim)), salu('s_cselect_b32', S(reg), S(base), S(reg))]]
def bump(regs3, d): return [salu('s_add_u32', S(r), S(r), d & 0xffffffff) for r in regs3]

v_pw = 111
def prefill_loads(sl):
    srd, so = (sK, s_k) if sl.typ == 'K' else (sV, s_v)
    tag = ('pfl', sl.idx)
    it = [salu('s_add_u32', S(s_tmp2), S(so), 3072)]
    for j in range(6):
        it.append(bload(A(sl.pfreg + 4 * j, 4), V(v_dkv + j % 3), S(srd, 4), S(so if j < 3 else s_tmp2), 1024 * (j % 3), tag, OPT['kv']))
    it.append(salu('s_add_u32', S(so), S(so), 12288))
    return it
def prefill_writes(sl):
    buf = sl.idx % NBUF
    it = []
    a = v_pw
    if buf >= 2:
        a = v_t + 14; it.append(valu('v_add_u32', V(a), 2 * SLOT, V(v_pw)))
    for j in range(6):
        w = dswrite('ds_write_b128', V(a), A(sl.pfreg + 4 * j, 4), (buf & 1) * SLOT + 1024 * j, ('d', sl.idx))
        if j == 0: w.need = [('pfl', sl.idx)]
        it.append(w)
    return it
def dma_items(sl):
    if getattr(sl, 'pfreg', None) is not None: return prefill_writes(sl)
    tag = ('d', sl.idx)
    if sl.typ == 'K': srd, so, vo, dl = sK, s_k, v_dkv, 3072; upd = [salu('s_add_u32', S(s_k), S(s_k), 12288)]
    elif sl.typ == 'V': srd, so, vo, dl = sV, s_v, v_dkv, 3072; upd = [salu('s_add_u32', S(s_v), S(s_v), 12288)]
    elif sl.typ == 'Q':
        srd, so, vo, dl = sWQ, s_wq, v_dwq, 16 * 12288
        upd = wrapadd(s_wq, 32 * 12288, s_wql, s_wqb) if sl.j % 2 else [salu('s_add_u32', S(s_wq), S(s_wq), 32 * 12288)]
        if sl.j == 19: upd += bump((s_wq, s_wqb, s_wql), 384)
        if sl.j == 19 and sl.rnd == 0 and not OPT['rotq0']: upd.append(salu('s_add_u32', S(s_wq), S(s_wq), S(s_rq)))
    elif sl.typ == 'P':
        srd, so, vo, dl = sWO, s_wo, v_dwx, 24 * 1280
        incs = [2 * H, 128 - 2 * H] if sl.nh == 2 else [2 * H, -H, 2 * H, 128 - 3 * H]
        if sl.hh < sl.nh - 1: upd = [salu('s_add_u32', S(s_wo), S(s_wo), incs[sl.hh] & 0xffffffff)]
        else:
            upd = wrapadd(s_wo, incs[sl.hh], s_wol, s_wob)
            if sl.ch == 9 and sl.rnd == 0: upd += bump((s_wo, s_wob, s_wol), H)
    fl = OPT['kv'] if sl.typ in 'KV' else OPT[('wq' if sl.typ == 'Q' else 'wo') + str(sl.rnd)]
    if sl.typ == 'Q' and sl.j < 2 * OPT['ntp']: fl = ' nt'
    if sl.typ == 'P' and sl.ch < OPT['ntp']: fl = ' nt'
    srd = S(srd, 4); lb = (sl.idx % NBUF) * SLOT
    it = [salu('s_add_u32', 'm0', S(s_w6144), lb), salu('s_add_u32', S(s_tmp), S(so), dl)]
    it += [dma(V(vo + k), srd, S(so), 1024 * k, tag, fl) for k in range(3)]
    it += [salu('s_add_u32', 'm0', 'm0', 3072)] + upd[:1]
    it += [dma(V(vo + k), srd, S(s_tmp), 1024 * k, tag, fl) for k in range(3)]
    it += upd[1:]
    return it

def x_items(sl):
    fl = OPT['x' + str(sl.rnd)]
    it = []
    for h in range(2):
        xt = ('xd', sl.xq, h if OPT['xtag'] else 1)
        it.append(salu('s_add_u32', 'm0', S(s_xwr), h * XT))
        if h == 1: it.append(salu('s_xor_b32', S(s_xwr), S(s_xwr), XTOG))
        it += [dma(V(v_dwx + k), S(sX, 4), S(s_x), 1024 * k, xt, fl) for k in range(3)]
        it += wrapadd(s_x, 128, s_xl, s_xb)
    if sl.j == 16 and sl.rnd == 0 and not OPT['rotq0']: it.append(salu('s_add_u32', S(s_x), S(s_x), S(s_rx)))
    return it

def build_mfmas(sl):
    mf = []
    wp = OPT['wper']
    for j in range(12):
        a = A(aF + (j % 6) * 4, 4)
        need = []
        if j % wp == 0: need = [('f', sl.idx, j + k) for k in range(wp)]
        if j == 0 and sl.typ == 'Q': need.append(('x', sl.idx))
        for qi in range(3):
            qt = 2 - qi if (OPT['snake'] and j % 2) else qi
            if sl.typ == 'K':
                t, ks = divmod(j, 6); SB[0] = (sl.i & 1) if sl.pipe else 0
                d = V(Sreg(t, qt), 4); b = A(aQ + (ks * 3 + qt) * 4, 4); c = 0 if ks == 0 else d
            elif sl.typ == 'V':
                d = V(Oreg(j, qt), 4); b = V(vP + qt * 4, 4); c = 0 if sl.first else d
            elif sl.typ == 'Q':
                d = A(aQN + (j * 3 + qt) * 4, 4) if sl.accA else V(Oreg(j, qt), 4)
                b = V(vXF + (sl.j % 2) * 12 + qt * 4, 4); c = 0 if sl.j == 0 else d
            elif sl.typ == 'P':
                u, nt = divmod(j, 2); hh = sl.hh; ch = sl.ch
                d = V(vACC[ch % 2] + (nt * 3 + qt) * 4, 4)
                if sl.nh == 4 and hh < 2: b = A(aQN + hh * 72 + (u * 3 + qt) * 4, 4)
                else: b = V(vO + (hh % 2) * 72 + (u * 3 + qt) * 4, 4)
                c = 0 if (hh == 0 and u == 0 and (sl.rnd == 0 or sl.nh == 4)) else d
            mf.append(mfma(d, a, b, c, need=need if qi == 0 else ()))
    sl.mf = mf

def xrow(v, tmp, op):
    return [valu('v_mov_b32', V(tmp), V(v)), perm('v_permlane32_swap_b32', V(v), V(tmp)), valu(op, V(v), V(v), V(tmp)),
            valu('v_mov_b32', V(tmp), V(v)), perm('v_permlane16_swap_b32', V(v), V(tmp)), valu(op, V(v), V(v), V(tmp))]

def interleave(*lists):
    out = []
    for k in range(max(len(l) for l in lists)):
        for l in lists:
            if k < len(l): out.append(l[k])
    return out

def max8(x, vals):
    return [valu('v_max3_f32', V(x), V(vals[0]), V(vals[1]), V(vals[2])), valu('v_max3_f32', V(x), V(x), V(vals[3]), V(vals[4])),
            valu('v_max3_f32', V(x), V(x), V(vals[5]), V(vals[6])), valu('v_max_f32', V(x), V(x), V(vals[7]))]

def softmax_init():
    ch = []
    for qt in range(3):
        x = v_m + qt
        c = max8(x, [Sreg(t, qt) + r for t in range(2) for r in range(4)]) + xrow(x, v_t + qt, 'v_max_f32')
        c += [valu('v_mul_f32', V(x), S(s_c), V(x)), valu('v_mov_b32', V(v_l + qt), 0)]
        ch.append(c)
    return interleave(*ch)

def sm_fma(t):
    return [valu('v_fma_f32', V(Sreg(t, qt) + r), V(Sreg(t, qt) + r), S(s_c), '-' + V(v_m + qt)) for qt in range(3) for r in range(4)]
def sm_max(t):
    vals = [Sbase() + t * 12 + i for i in range(12)]
    x = v_t + 3
    if t == 0:
        o = [valu('v_max3_f32', V(x), V(vals[0]), V(vals[1]), V(vals[2]))]
        for i in range(3, 11, 2): o.append(valu('v_max3_f32', V(x), V(x), V(vals[i]), V(vals[i + 1])))
        o.append(valu('v_max_f32', V(x), V(x), V(vals[11])))
        return o
    return [valu('v_max3_f32', V(x), V(x), V(vals[i]), V(vals[i + 1])) for i in range(0, 12, 2)]
def sm_fmamax(t):
    f = sm_fma(t); m = sm_max(t)
    o = f[:4]; k = 0
    for i in range(4, 12, 2): o += f[i:i + 2] + [m[k]]; k += 1
    return o + m[k:]
def sm_check():
    return [[vcmp('v_cmp_lt_f32', 0x41000000, V(v_t + 3)),
             raw('s_cbranch_vccnz {L}_r', 'branch', ['vcc']), raw('{L}_b:', 'label'),
             raw('{L}_r:\ns_call_b64 s[%d:%d], L_rare_%d\ns_branch {L}_b' % (s_ret, s_ret + 1, SB[0]), 'stub')]]
def sm_exp():
    o = []
    order = [(t, r) for t in range(2) for r in range(4)]
    for k, (t, r) in enumerate(order):
        for qt in range(3): o.append(valu('v_exp_f32', V(Sreg(t, qt) + r), V(Sreg(t, qt) + r)))
        if k >= 1:
            pt, pr = order[k - 1]
            for qt in range(3): o.append(valu('v_add_f32', V(v_l + qt), V(v_l + qt), V(Sreg(pt, qt) + pr)))
            if pr % 2 == 1:
                for qt in range(3):
                    o.append(valu('v_cvt_pk_bf16_f32', V(vP + qt * 4 + pt * 2 + pr // 2), V(Sreg(pt, qt) + pr - 1), V(Sreg(pt, qt) + pr)))
    for qt in range(3): o.append(valu('v_cvt_pk_bf16_f32', V(vP + qt * 4 + 3), V(Sreg(1, qt) + 2), V(Sreg(1, qt) + 3)))
    tail = [valu('v_add_f32', V(v_l + qt), V(v_l + qt), V(Sreg(1, qt) + 3)) for qt in range(3)]
    return o, tail

def rare_path(name, sb):
    SB[0] = sb
    ch = []
    for qt in range(3):
        vals = [Sreg(t, qt) + r for t in range(2) for r in range(4)]
        x = v_t + 4 + qt; f = v_t + 7 + qt
        c = max8(x, vals) + xrow(x, v_t + qt, 'v_max_f32')
        c += [valu('v_max_f32', V(x), 0, V(x)), valu('v_add_f32', V(v_m + qt), V(v_m + qt), V(x)),
              valu('v_sub_f32', V(f), 0, V(x)), valu('v_exp_f32', V(f), V(f))]
        c += [valu('v_sub_f32', V(s), V(s), V(x)) for s in vals]
        c += [valu('v_mul_f32', V(v_l + qt), V(v_l + qt), V(f))]
        c += [valu('v_mul_f32', V(Oreg(dt, qt) + r), V(Oreg(dt, qt) + r), V(f)) for dt in range(12) for r in range(4)]
        ch.append(c)
    p, _ = fix_hazards([nop(7)] + interleave(*ch) + [nop(3)])
    return [name + ":"] + [i.t for i in p] + [f"s_setpc_b64 s[{s_ret}:{s_ret+1}]"]

def q_convert_u(u, dest):
    T = [vS + (u % 2) * 12 + 4 * qt for qt in range(3)]
    out = []
    for qt in range(3):
        for h in range(2):
            for k in range(2):
                s0 = Oreg(2 * u + h, qt) + 2 * k
                out.append(valu('v_cvt_pk_bf16_f32', V(T[qt] + h * 2 + k), V(s0), V(s0 + 1)))
    for op in ('v_permlane32_swap_b32', 'v_permlane16_swap_b32'):
        for qt in range(3):
            for k in range(2): out.append(perm(op, V(T[qt] + k), V(T[qt] + 2 + k)))
    for qt in range(3):
        for k in range(4): out.append(valu('v_accvgpr_write_b32', A(dest + (u * 3 + qt) * 4 + k), V(T[qt] + k)))
    return out

def q_convert_a(u):
    T = [vS + 12 + 4 * qt for qt in range(3)]
    rd = []; out = []
    for qt in range(3):
        for h in range(2):
            for k in range(2):
                s0 = vXF + (qt * 4 + h * 2 + k) * 2; a0 = aQN + ((2 * u + h) * 3 + qt) * 4 + 2 * k
                rd += [valu('v_accvgpr_read_b32', V(s0), A(a0)), valu('v_accvgpr_read_b32', V(s0 + 1), A(a0 + 1))]
                out.append(valu('v_cvt_pk_bf16_f32', V(T[qt] + h * 2 + k), V(s0), V(s0 + 1)))
    for op in ('v_permlane32_swap_b32', 'v_permlane16_swap_b32'):
        for qt in range(3):
            for k in range(2): out.append(perm(op, V(T[qt] + k), V(T[qt] + 2 + k)))
    for qt in range(3):
        for k in range(4): out.append(valu('v_accvgpr_write_b32', A(aQ + (u * 3 + qt) * 4 + k), V(T[qt] + k)))
    return rd + out

RL = 30
def e_head():
    out = interleave(*[xrow(v_l + qt, v_t + qt, 'v_add_f32') + [valu('v_rcp_f32', V(RL + 2 * qt), V(v_l + qt)),
                       valu('v_mov_b32', V(RL + 1 + 2 * qt), V(RL + 2 * qt))] for qt in range(3)])
    out += [valu('v_add_u32', V(36), S(s_ew), V(v_l16)), valu('v_add_u32', V(37), S(s_er0), V(v_l16)),
            valu('v_add_u32', V(38), S(s_er1), V(v_l16))]
    return out
def e_pack(u, eid, packed):
    T = vS + (u % 2) * 12
    o = []
    for qt in range(3):
        for h in range(2):
            s = Oreg(2 * u + h, qt)
            if packed:
                o += [valu('v_pk_mul_f32', V(s + 2 * k, 2), V(s + 2 * k, 2), V(RL + 2 * qt, 2)) for k in range(2)]
            else:
                o += [valu('v_mul_f32', V(s + k), V(s + k), V(RL + 2 * qt)) for k in range(4)]
    for qt in range(3):
        for h in range(2):
            s = Oreg(2 * u + h, qt)
            for k in range(2):
                o.append(valu('v_cvt_pk_bf16_f32', V(T + qt * 4 + h * 2 + k), V(s + 2 * k), V(s + 2 * k + 1)))
        o.append(dswrite('ds_write_b128', V(36), V(T + qt * 4, 4), (u * 3 + qt) * 1024, ('ew', eid)))
    return o
def e_reads(eid, toA):
    out = []
    for hh in range(2):
        for f in range(18):
            dst = A(aQN + hh * 72 + f * 4, 4) if toA else V(vO + hh * 72 + f * 4, 4)
            out.append(dsread('ds_read_b128', dst, V(37 + hh), f * 1024, ('er', eid, hh, f)))
    return out

def flush_held(ch):
    o = [bstore(A(aQ + ch * 12 + qt * 4, 4), V(v_l16), S(sWS, 4), S(s_ew), qt * 1024, ('st', ch), OPT['st']) for qt in range(3)]
    return o + wrapadd(s_ew, 12288, s_ptl, s_ptb)
def chunk_end(ch, store, held=False):
    acc = vACC[ch % 2]
    if held:
        o = chunk_end(ch, False)
        o = o[:12] + [valu('v_accvgpr_write_b32', A(aQ + ch * 12 + i), V(vP + i)) for i in range(12)]
        if ch == 0: o.append(salu('s_mov_b32', S(s_ew), S(s_pt)))
        return o + wrapadd(s_pt, 12288, s_ptl, s_ptb)
    o = []
    for qt in range(3):
        for nt in range(2):
            for k in range(2):
                s = acc + (nt * 3 + qt) * 4 + 2 * k
                o.append(valu('v_cvt_pk_bf16_f32', V(vP + qt * 4 + nt * 2 + k), V(s), V(s + 1)))
        if store:
            o.append(bstore(V(vP + qt * 4, 4), V(v_l16), S(sWS, 4), S(s_pt), qt * 1024, ('st', ch), OPT['st']))
    if not store: o += [valu('v_accvgpr_write_b32', A(aRES + ch * 12 + i), V(vP + i)) for i in range(12)]
    else: o += wrapadd(s_pt, 12288, s_ptl, s_ptb)
    return o

def chunk_init_valu(ch):
    acc = vACC[ch % 2]
    o = []
    for qt in range(3):
        for nt in range(2):
            for k in range(2):
                d = acc + (nt * 3 + qt) * 4 + 2 * k
                o.append(valu('v_accvgpr_read_b32', V(d + 1), A(aRES + ch * 12 + qt * 4 + nt * 2 + k)))
                o.append(valu('v_lshlrev_b32', V(d), 16, V(d + 1)))
                o.append(valu('v_and_b32', V(d + 1), 0xffff0000, V(d + 1)))
    return o
def chunk_init(ch):
    acc = vACC[ch % 2]
    return [mfma(V(acc + (nt * 3 + qt) * 4, 4), A(aE1 if nt else aE0, 4), A(aRES + ch * 12 + qt * 4, 4), 0)
            for nt in range(2) for qt in range(3)]

def stamp(n): return [raw(f"{'s_memtime' if OPT['cyc'] == 1 else 's_memrealtime'} s[{s_stamp+2*n}:{s_stamp+2*n+1}]", 'smem')]

def prologue():
    P = []; a = P.append
    T = s_t0
    a(salu('s_and_b32', S(T), 's2', 7)); a(salu('s_lshr_b32', S(T + 1), 's2', 3))
    a(salu('s_lshr_b32', S(T + 2), S(T), 2))
    a(salu('s_mul_i32', S(T + 2), S(T + 2), 40))
    a(salu('s_add_u32', S(T + 4), 's0', S(T + 2))); a(salu('s_addc_u32', S(T + 5), 's1', 0))
    a(raw(f"s_load_dwordx8 s[68:75], s[{T+4}:{T+5}], 0", 'smem'))
    a(raw(f"s_load_dwordx2 s[76:77], s[{T+4}:{T+5}], 32", 'smem'))
    a(raw("s_load_dwordx2 s[78:79], s[0:1], 96", 'smem'))
    a(salu('s_and_b32', S(T), S(T), 3)); a(salu('s_lshl_b32', S(T), S(T), 1))
    a(salu('s_and_b32', S(T + 3), S(T + 1), 1)); a(salu('s_or_b32', S(s_hq), S(T), S(T + 3)))
    a(salu('s_lshr_b32', S(T + 1), S(T + 1), 1))
    a(valu('v_lshrrev_b32', V(v_t), 6, 'v0'))
    a(nop(0))
    a(raw(f"v_readfirstlane_b32 s{s_w}, v{v_t}", 'valu', [f'v{v_t}'], [f's{s_w}']))
    lane, n16, g, tmp, tmp2, row, sw = range(v_t, v_t + 7)
    a(valu('v_and_b32', V(lane), 63, 'v0'))
    a(valu('v_lshlrev_b32', V(v_l16), 4, V(lane)))
    W = s_w; Pp = T + 7; QH = T + 8; HQ = s_hq; B = T + 1; ROT = T + 2
    def swz(dst, r): a(valu('v_and_b32', V(dst), 6, V(r)))
    a(valu('v_lshrrev_b32', V(row), 3, V(lane)))
    swz(sw, row)
    a(valu('v_and_b32', V(tmp), 7, V(lane))); a(valu('v_xor_b32', V(tmp), V(tmp), V(sw)))
    a(valu('v_lshlrev_b32', V(tmp), 4, V(tmp)))
    a(valu('v_mul_u32_u24', V(row), 1280, V(row)))
    a(valu('v_add_u32', V(v_dwx), V(tmp), V(row)))
    a(valu('v_add_u32', V(v_dwx + 1), 8 * 1280 - 1024, V(v_dwx)))
    a(valu('v_add_u32', V(v_dwx + 2), 2 * (8 * 1280 - 1024), V(v_dwx)))
    a(salu('s_mov_b32', S(s_tmp), 0xAAAAAAB))
    for j in range(3):
        a(valu('v_add_u32', V(tmp), 64 * j, V(lane)))
        a(valu('v_mul_hi_u32', V(row), V(tmp), S(s_tmp)))
        swz(sw, row)
        a(valu('v_lshlrev_b32', V(sw), 4, V(sw)))
        a(valu('v_xor_b32', V(v_dkv + j), V(v_l16), V(sw)))
        a(valu('v_mul_u32_u24', V(tmp2), 24, V(row))); a(valu('v_sub_u32', V(tmp), V(tmp), V(tmp2)))
        a(valu('v_lshlrev_b32', V(tmp), 4, V(tmp))); a(valu('v_xor_b32', V(tmp), V(tmp), V(sw)))
        a(valu('v_lshrrev_b32', V(tmp2), 2, V(row))); a(valu('v_lshl_add_u32', V(row), V(tmp2), 2, V(row)))
        a(valu('v_mul_u32_u24', V(row), 12288, V(row)))
        a(valu('v_add_u32', V(tmp), V(tmp), V(row)))
        a(valu('v_subrev_u32', V(v_dwq + j), 1024 * j, V(tmp)))
    a(salu('s_lshr_b32', S(Pp), S(W), 1)); a(salu('s_and_b32', S(QH), S(W), 1))
    a(salu('s_mul_i32', S(s_w6144), S(W), 6144))
    a(salu('s_lshl_b32', S(T + 3), S(HQ), 2)); a(salu('s_lshl_b32', S(T + 9), S(Pp), 1))
    a(salu('s_add_u32', S(T + 9), S(T + 9), S(T + 3)))
    a(salu('s_mul_i32', S(ROT), S(B), 5 * OPT['rot'])); a(salu('s_lshr_b32', S(ROT), S(ROT), 3))
    if OPT['rot2']:
        a(salu('s_and_b32', S(s_tmp), S(HQ), 1)); a(salu('s_mul_i32', S(s_tmp), S(s_tmp), 5))
        a(salu('s_add_u32', S(ROT), S(ROT), S(s_tmp)))
        a(scmp('s_cmp_ge_u32', S(ROT), 10)); a(salu('s_cselect_b32', S(s_tmp), 10, 0)); a(salu('s_sub_u32', S(ROT), S(ROT), S(s_tmp)))
    a(salu('s_mul_i32', S(s_wqb), S(T + 9), 384)); a(salu('s_mul_i32', S(s_tmp), S(QH), 4 * 12288))
    a(salu('s_add_u32', S(s_wqb), S(s_wqb), S(s_tmp)))
    a(salu('s_add_u32', S(s_wql), S(s_wqb), 640 * 12288))
    a(salu('s_mul_i32', S(s_rq), S(ROT), 64 * 12288))
    if OPT['rotq0']: a(salu('s_add_u32', S(s_wq), S(s_wqb), S(s_rq)))
    else: a(salu('s_mov_b32', S(s_wq), S(s_wqb)))
    a(salu('s_mul_i32', S(s_xb), S(B), 96)); a(salu('s_mul_i32', S(s_tmp), S(W), 24))
    a(salu('s_add_u32', S(s_xb), S(s_xb), S(s_tmp))); a(salu('s_mul_i32', S(s_xb), S(s_xb), 1280))
    a(salu('s_add_u32', S(s_xl), S(s_xb), 1280))
    a(salu('s_lshl_b32', S(T + 6), S(ROT), 7)); a(salu('s_mov_b32', S(s_rx), S(T + 6)))
    if OPT['rotq0']: a(salu('s_add_u32', S(s_x), S(s_xb), S(T + 6)))
    else: a(salu('s_mov_b32', S(s_x), S(s_xb)))
    a(salu('s_mul_i32', S(s_tmp), S(W), 3072)); a(salu('s_add_u32', S(s_xwr), S(s_tmp), XA))
    a(raw("s_waitcnt lgkmcnt(0)", 'wait'))
    for srd, p, n in ((sX, 68, 1966080), (sWQ, 74, 7864320)):
        a(salu('s_mov_b32', S(srd), S(p))); a(salu('s_mov_b32', S(srd + 1), S(p + 1)))
        a(salu('s_mov_b32', S(srd + 2), n)); a(salu('s_mov_b32', S(srd + 3), 0x20000))
    P2 = []; a = P2.append
    if OPT['cpf'] == 1:
        a(salu('s_lshr_b32', S(T), 's2', 3)); a(salu('s_lshl_b32', S(T), S(T), 2)); a(salu('s_add_u32', S(T), S(T), S(W)))
        a(salu('s_lshl_b32', S(T), S(T), 4))
        a(valu('v_and_b32', V(tmp), 15, V(lane))); a(valu('v_add_u32', V(tmp), S(T), V(tmp)))
        a(valu('v_lshlrev_b32', V(tmp), 7, V(tmp)))
        a(raw(f"v_min_u32 v{tmp}, L_code_end-L_go-4, v{tmp}", 'valu', [f'v{tmp}'], [f'v{tmp}']))
        a(I(f"global_load_dword v{v_t+10}, v{tmp}, s[{s_ret}:{s_ret+1}]", 'vload', [f'v{tmp}', f's{s_ret}', f's{s_ret+1}'], [f'v{v_t+10}'], tag=('cpf',)))
    for srd, p, n in ((sK, 70, 100663296), (sV, 72, 100663296), (sWO, 76, 7864320), (sWS, 78, 438042624)):
        a(salu('s_mov_b32', S(srd), S(p))); a(salu('s_mov_b32', S(srd + 1), S(p + 1)))
        a(salu('s_mov_b32', S(srd + 2), n)); a(salu('s_mov_b32', S(srd + 3), 0x20000))
    a(valu('v_and_b32', V(n16), 15, V(lane))); a(valu('v_lshrrev_b32', V(g), 4, V(lane)))
    a(salu('s_bfe_u32', S(T), 's2', 0x10002)); a(salu('s_lshl_b32', S(T), S(T), 4)); a(salu('s_add_u32', S(T), S(T), S(B)))
    a(salu('s_lshl_b32', S(T), S(T), 7)); a(salu('s_add_u32', S(T), S(T), FLAG_OFF))
    a(valu('v_and_b32', V(v_fa), 7, V(lane))); a(valu('v_lshl_add_u32', V(v_fa), V(v_fa), 2, S(T)))
    a(bload(V(v_fl), V(v_fa), S(sWS, 4), 0, 0, ('fl',), ' sc1', op='buffer_load_dword'))
    a(salu('s_lshl_b32', S(s_k), S(B), 5)); a(salu('s_add_u32', S(s_k), S(s_k), S(T + 9)))
    a(salu('s_mul_i32', S(s_k), S(s_k), 196608))
    a(salu('s_mul_i32', S(s_cnt), S(QH), 6144)); a(salu('s_add_u32', S(s_k), S(s_k), S(s_cnt)))
    a(salu('s_mov_b32', S(s_v), S(s_k)))
    a(salu('s_mul_i32', S(s_wob), S(T + 3), 192)); a(salu('s_mul_i32', S(s_wol), S(W), 48))
    a(salu('s_add_u32', S(s_wob), S(s_wob), S(s_wol))); a(salu('s_mul_i32', S(s_wob), S(s_wob), 1280))
    a(salu('s_add_u32', S(s_wol), S(s_wob), 1280))
    a(salu('s_add_u32', S(s_wo), S(s_wob), S(T + 6)))
    a(salu('s_mul_i32', S(s_ptb), 's2', PART_WG)); a(salu('s_mul_i32', S(T), S(W), 3072))
    a(salu('s_add_u32', S(s_ptb), S(s_ptb), S(T))); a(salu('s_add_u32', S(s_ptl), S(s_ptb), PART_WG))
    a(salu('s_mul_i32', S(T), S(ROT), 12288)); a(salu('s_add_u32', S(s_pt), S(s_ptb), S(T)))
    c = (192 ** -0.5) * math.log2(math.e)
    a(salu('s_mov_b32', S(s_c), struct.unpack('<I', struct.pack('<f', c))[0]))
    a(salu('s_mul_i32', S(T), S(Pp), 12288))
    swz(sw, n16)
    a(valu('v_xor_b32', V(tmp), V(g), V(sw))); a(valu('v_lshlrev_b32', V(tmp), 4, V(tmp)))
    a(valu('v_mul_u32_u24', V(tmp2), 384, V(n16))); a(valu('v_add3_u32', V(v_k), V(tmp), V(tmp2), S(T)))
    a(valu('v_xor_b32', V(v_k + 1), 64, V(v_k)))
    a(valu('v_add_u32', V(v_k + 2), 2 * SLOT, V(v_k))); a(valu('v_add_u32', V(v_k + 3), 2 * SLOT, V(v_k + 1)))
    a(salu('s_add_u32', S(s_cnt), S(s_cnt), XA))
    a(valu('v_lshlrev_b32', V(tmp2), 7, V(n16))); a(valu('v_add3_u32', V(v_x), V(tmp), V(tmp2), S(s_cnt)))
    a(valu('v_xor_b32', V(v_x + 1), 64, V(v_x)))
    a(valu('v_lshrrev_b32', V(row), 2, V(lane)))
    swz(sw, row)
    a(valu('v_bfe_u32', V(tmp), V(lane), 1, 1))
    a(valu('v_xor_b32', V(tmp), V(tmp), V(sw))); a(valu('v_lshlrev_b32', V(tmp), 4, V(tmp)))
    a(valu('v_and_b32', V(tmp2), 1, V(lane))); a(valu('v_lshl_add_u32', V(tmp), V(tmp2), 3, V(tmp)))
    a(valu('v_mul_u32_u24', V(tmp2), 384, V(row))); a(valu('v_add3_u32', V(v_v), V(tmp), V(tmp2), S(T)))
    for j in (1, 2, 3): a(valu('v_xor_b32', V(v_v + j), j << 5, V(v_v)))
    for j in range(4): a(valu('v_add_u32', V(v_v + 4 + j), 2 * SLOT, V(v_v + j)))
    a(valu('v_lshl_add_u32', V(v_p), V(row), 7, V(tmp)))
    a(salu('s_lshl_b32', S(T), S(Pp), 6))
    a(valu('v_xor_b32', V(v_p), S(T), V(v_p))); a(valu('v_xor_b32', V(v_p + 1), 32, V(v_p)))
    for j in range(2): a(valu('v_add_u32', V(v_p + 2 + j), 2 * SLOT, V(v_p + j)))
    a(valu('v_lshrrev_b32', V(tmp), 2, V(n16)))
    a(vcmp('v_cmp_eq_u32', V(tmp), V(g)))
    a(valu('v_and_b32', V(tmp2), 1, V(n16))); a(valu('v_lshlrev_b32', V(tmp2), 4, V(tmp2)))
    a(salu('s_mov_b32', S(T), 0x3F80))
    a(valu('v_lshlrev_b32', V(tmp2), V(tmp2), S(T)))
    a(valu('v_cndmask_b32', V(tmp2), 0, V(tmp2)))
    a(valu('v_and_b32', V(tmp), 2, V(n16)))
    a(vcmp('v_cmp_eq_u32', 0, V(tmp)))
    a(valu('v_cndmask_b32', V(row), 0, V(tmp2)))
    a(valu('v_sub_u32', V(sw), V(tmp2), V(row)))
    for r in (240, 241, 244, 245): a(valu('v_accvgpr_write_b32', A(r), 0))
    a(valu('v_accvgpr_write_b32', A(242), V(row))); a(valu('v_accvgpr_write_b32', A(243), V(sw)))
    if OPT['pf']:
        a(salu('s_lshr_b32', S(T), 's2', 3)); a(salu('s_lshl_b32', S(T), S(T), 2))
        a(salu('s_and_b32', S(s_cnt), 's2', 3)); a(salu('s_add_u32', S(T), S(T), S(s_cnt)))
        a(salu('s_lshl_b32', S(T), S(T), 2)); a(salu('s_add_u32', S(T), S(T), S(W)))
        a(salu('s_mul_i32', S(s_cnt), S(T), 120))
        a(valu('v_add_u32', V(38), S(s_cnt), V(lane))); a(valu('v_lshlrev_b32', V(38), 7, V(38)))
        a(valu('v_add_u32', V(39), 8192, V(38)))
        a(salu('s_mul_i32', S(s_cnt), S(T), 60))
        a(valu('v_add_u32', V(tmp), S(s_cnt), V(lane)))
        a(salu('s_mov_b32', S(s_cnt), 0x5555556))
        a(valu('v_mul_hi_u32', V(row), V(tmp), S(s_cnt)))
        a(valu('v_mul_u32_u24', V(tmp2), 48, V(row))); a(valu('v_sub_u32', V(tmp), V(tmp), V(tmp2)))
        a(valu('v_mul_u32_u24', V(tmp2), 86, V(tmp))); a(valu('v_lshrrev_b32', V(tmp2), 8, V(tmp2)))
        a(valu('v_mul_u32_u24', V(row), 12288, V(row)))
        a(valu('v_lshl_add_u32', V(row), V(tmp), 7, V(row)))
        a(valu('v_mul_u32_u24', V(tmp2), 384, V(tmp2)))
        a(valu('v_add_u32', V(row), V(row), V(tmp2))); a(valu('v_add_u32', V(37), 384, V(row)))
    a(valu('v_add_u32', V(v_pw), S(s_w6144), V(v_l16)))
    a(salu('s_mul_i32', S(s_ew), S(W), EXW)); a(salu('s_add_u32', S(s_ew), S(s_ew), XA))
    a(scmp('s_cmp_eq_u32', S(W), 3)); a(salu('s_cselect_b32', S(s_ew), 3 * SLOT, S(s_ew)))
    a(salu('s_mul_i32', S(s_er0), S(QH), EXW)); a(salu('s_add_u32', S(s_er0), S(s_er0), XA))
    a(salu('s_mov_b32', S(s_er1), XA + 2 * EXW)); a(scmp('s_cmp_eq_u32', S(QH), 1)); a(salu('s_cselect_b32', S(s_er1), 3 * SLOT, S(s_er1)))
    return P, [x for x in P2 if x is not None]

def make_seq(kind):
    seq = []
    def Q(r, accA=False): return [Slot('Q', j=j, rnd=r, accA=accA) for j in range(20)]
    def Aa(r):
        if not (OPT['pipe'] and f'{kind[0]}{r}' in OPT['pipes']):
            return [Slot(t, i=i, rnd=r, first=(i == 0), pipe=False) for i in range(16) for t in 'KV']
        o = [('K', 0)]
        for i in range(15): o += [('K', i + 1), ('V', i)]
        o.append(('V', 15))
        return [Slot(t, i=i, rnd=r, first=(i == 0), pipe=True) for t, i in o]
    def Pp(r): return [Slot('P', j=j, rnd=r, nh=2, ch=j // 2, hh=j % 2) for j in range(20)]
    def P4(): return [Slot('P', j=j, rnd=1, nh=4, ch=j // 4, hh=j % 4) for j in range(40)]
    if kind == 'X': seq = Q(0) + Aa(0) + Pp(0) + Q(1) + Aa(1) + Pp(1)
    elif kind == 'W': seq = Q(0) + Q(1) + Aa(0) + Aa(1) + P4()
    elif kind == 'Y': seq = Q(0) + Q(1) + Aa(0) + Pp(0) + Aa(1) + Pp(1)
    elif kind == 'Z': seq = Q(0) + Aa(0) + Q(1) + Aa(1) + P4()
    elif kind in 'IJ':
        q1 = Q(1, True); seq = Q(0); k = 0
        for i in range(16):
            nq = int(OPT['jpat'].strip()[i])
            seq += [Slot('K', i=i, rnd=0, first=(i == 0), pipe=False)] + q1[k:k + nq] + [Slot('V', i=i, rnd=0, first=(i == 0), pipe=False)]
            k += nq
        assert k == 20
        seq += (Aa(1) + P4()) if kind == 'I' else (Pp(0) + Aa(1) + Pp(1))
    elif kind[0] in 'FG':
        k = int(kind[1:]); assert k % 2 == 0 and 2 <= k <= 14
        a0 = Aa(0)
        seq = Q(0) + a0[:2 * k] + Q(1, True) + a0[2 * k:]
        seq += (Aa(1) + P4()) if kind[0] == 'F' else (Pp(0) + Aa(1) + Pp(1))
    for n, s in enumerate(seq): s.idx = n
    q = -1
    for s in seq:
        if s.typ == 'Q':
            if s.j % 4 == 0: q += 1
            s.xq = q
    return seq

def flat(items):
    o = []
    for it in items: o += flat(it) if isinstance(it, list) else [it]
    return o

def build_main(kind, stamps, pro2):
    seq = make_seq(kind)
    N = len(seq)
    for s in seq: build_mfmas(s)
    pfplan = {}
    def plan_pf(first, count, regs, at):
        for k in range(count):
            seq[first + k].pfreg = regs[k]
            pfplan.setdefault(at + k * OPT['pfstep'], []).append(seq[first + k])
    if kind == 'J': plan_pf(20, OPT['pfx0'], [24 * k for k in range(6)], OPT['pfat'])
    if kind == 'W' and OPT['pfw1']: plan_pf(40, OPT['pfw1'], [72, 96, 120], OPT['pfat'])
    if kind == 'X':
        plan_pf(20, OPT['pfx0'], [24 * k for k in range(6)], OPT['pfat'])
        plan_pf(92, OPT['pfx1'], [144, 168, 192, 120], 54 + OPT['pfat'])
    if kind == 'W': plan_pf(40, OPT['pfw0'], [72, 96, 120], 20 + OPT['pfat'])
    head = flat(x_items(seq[0])[:6]) + flat(dma_items(seq[0]))
    head += pro2
    head.append(I('', 'split'))
    head += flat(dma_items(seq[1])) + flat(x_items(seq[0])[6:]) + flat(dma_items(seq[2]))
    head.append(barrier(need=[('d', 0), ('xd', 0, 0 if OPT['xtag'] else 1)]))
    head += x_reads(seq[0])
    for j in range(5): head += frag_reads(seq[0], j)
    nstamp = 0
    fine = stamps and OPT['sp0'] >= 0
    if stamps: head = ([] if OPT['st0'] else stamp(0)) + [raw("s_memtime s[96:97]", 'smem')] + head + stamp(1); nstamp = 2
    post = []
    if fine:
        stamps = False
        for k in range(5 if OPT['cyc'] == 2 else 11):
            if OPT['sp0'] + k * OPT['spd'] < N:
                if OPT['cyc'] == 2:
                    seq[OPT['sp0'] + k * OPT['spd']].put(0, [raw(f"s_memrealtime s[{s_stamp+2*nstamp}:{s_stamp+2*nstamp+1}]", 'smem'),
                                                             raw(f"s_memtime s[{s_stamp+2*nstamp+2}:{s_stamp+2*nstamp+3}]", 'smem')]); nstamp += 2
                else:
                    seq[OPT['sp0'] + k * OPT['spd']].put(0, stamp(nstamp)); nstamp += 1
    if OPT['pf']:
        for k, (vr, srd) in enumerate(((37, sWQ), (38, sWO), (39, sWO))):
            seq[OPT['pfs'] + k * OPT['pfd']].put(21, bload(V(111), V(vr), S(srd, 4), 0, 0, ('pf', k), '', op='buffer_load_dword'))
    wp = OPT['wper']
    for n, s in enumerate(seq):
        nx = seq[n + 1] if n + 1 < N else None
        pv = seq[n - 1] if n else None
        for j in range(wp, 9, wp): s.load[3 * j - 1] += 1
        s.load[35] += 1
        for j in range(5, 12):
            for k, r in enumerate(frag_reads(s, j)): s.put(3 * (j - 5) + k, r)
        if nx is not None:
            need = [('f', s.idx, 11), ('d', nx.idx)] + ([('xd', nx.xq, (nx.j % 4) // 2 if OPT['xtag'] else 1)] if nx.typ == 'Q' and nx.j % 2 == 0 else [])
            s.put(26, barrier(need=need)); s.load[26] += 1
            if nx.typ == 'Q' and nx.j % 4 == 0 and nx.idx > 0:
                s.put(24, valu('v_xor_b32', V(v_x), XTOG, V(v_x))); s.put(25, valu('v_xor_b32', V(v_x + 1), XTOG, V(v_x + 1)))
            rr = [frag_reads(nx, j) for j in range(5)]
            xr = x_reads(nx) if nx.typ == 'Q' else []
            if s.typ == 'K' and s.pipe and xr: nx.pre += xr; xr = []
            spread([(s, g) for g in range(27, 32)], flat(rr[0] + xr[:1] + rr[1] + xr[1:] + rr[2]))
            spread([(s, g) for g in range(30, 34)], rr[3])
            spread([(s, g) for g in range(32, 36)], rr[4])
        def lead_of(t): return LEAD - OPT['ld'] if (kind == 'W' and OPT['la'] <= t < OPT['lb']) else LEAD
        its = []
        for t in range(n + 1, min(N, n + LEAD + 1)):
            if t >= LEAD and t - lead_of(t) == n: its = its + dma_items(seq[t])
        if n + 4 < N and seq[n + 4].typ == 'Q' and seq[n + 4].j % 4 == 0: its = its + x_items(seq[n + 4])[:6]
        if n + 3 < N and n >= 1 and seq[n + 3].typ == 'Q' and seq[n + 3].j % 4 == 0: its = its + x_items(seq[n + 3])[6:]
        for p in pfplan.get(n, []): its = its + prefill_loads(p)
        s.dma = its
        s.early = bool(s.typ == 'V' and OPT['early'] and its and not s.pipe and pv.typ == 'K')
    for n, s in enumerate(seq):
        nx = seq[n + 1] if n + 1 < N else None
        pv = seq[n - 1] if n else None
        if OPT['edef'] and pv is not None and pv.typ == 'V' and pv.i == 15:
            spread([(s, g) for g in range(27, 36)], s.dma[:4]); nx.dma = s.dma[4:] + nx.dma
        elif not s.early:
            toH = n + LEAD < N and seq[n + LEAD].typ in 'KV'
            spread([(s, g) for g in range(0, OPT['kvend'] if toH else OPT['dend'])], s.dma, even=True)
        if s.typ == 'K' and stamps and s.i == 8 and not (kind[0] in 'FG' and s.rnd == 0): s.pre = stamp(nstamp) + s.pre; nstamp += 1
        if s.typ in 'KV' and s.pipe:
            if s.typ == 'K' and s.i == 0:
                SB[0] = 0
                nx.pre += softmax_init() + sm_fma(0) + sm_fma(1)
            elif s.typ == 'K':
                SB[0] = (s.i - 1) & 1
                ex, tail = sm_exp()
                spread([(s, g) for g in range(0, 35)], ex + tail)
            elif s.i < 15:
                SB[0] = (s.i + 1) & 1
                spread([(s, g) for g in range(3, 36)], sm_fmamax(0) + sm_fmamax(1), even=True)
                nx.pre += sm_check()
                if s.i == 14:
                    ex, tail = sm_exp()
                    nx.pre += ex
                    spread([(nx, g) for g in range(0, 6)], tail)
        elif s.typ == 'K':
            SB[0] = 0
            ex, tail = sm_exp()
            if s.first: rest = softmax_init() + sm_fma(0) + sm_fma(1) + ex
            else:
                spread([(s, g) for g in range(20, 36)], sm_fmamax(0))
                rest = sm_fmamax(1) + sm_check() + ex
            if nx.typ == 'Q':
                ws = []; k2 = n + 1
                while seq[k2].typ == 'Q': ws.append(seq[k2]); k2 += 1
                for w_ in ws:
                    spread([(w_, g) for g in range(0, OPT['kvend'] if seq[w_.idx + LEAD].typ in 'KV' else OPT['dend'])], w_.dma, even=True); w_.dma = []
                spread([(w_, g) for w_ in ws for g in range(36)][3:-2], rest + tail)
                continue
            if nx.early:
                d = list(nx.dma); o = d[:2]; d = d[2:]
                step = max(1, len(rest) // (len(d) + 1))
                for k2, it in enumerate(rest):
                    o.append(it)
                    if k2 % step == step - 1 and d: o.append(d.pop(0))
                rest = o + d
            nx.pre += rest
            spread([(nx, g) for g in range(0, 6)], tail)
        if s.typ == 'Q' and s.accA and stamps and s.j in (0, 19) and kind not in 'IJ':
            if s.j == 0: s.pre += stamp(nstamp)
            else: nx.pre = stamp(nstamp) + nx.pre
            nstamp += 1
        if s.typ == 'Q' and s.j == 19 and not s.accA:
            dest = aQN if (kind in 'WY' and s.rnd == 1) else aQ
            cv = [q_convert_u(u, dest) for u in range(6)]
            k0 = 0
            if OPT['ovl']:
                spread([(s, g) for g in range(9, 20)], cv[0]); spread([(s, g) for g in range(20, 36)], cv[1]); k0 = 2
            nx.pre = flat(cv[k0:]) + nx.pre
            if stamps: nx.pre = nx.pre + stamp(nstamp); nstamp += 1
        if s.typ == 'V' and s.i == 15:
            pre = []
            if stamps: pre += stamp(nstamp); nstamp += 1
            toA = (kind[0] in 'WZFI' and s.rnd == 0)
            if kind in 'WY' and s.rnd == 0: pre += [valu('v_accvgpr_mov_b32', A(aQ + k), A(aQN + k)) for k in range(72)]
            k0 = 0
            if OPT['ovl']:
                spread([(s, g) for g in range(6, 14)], e_head())
                spread([(s, g) for g in range(14, 36)], [i for i in e_pack(0, s.rnd, False) if i.k != 'ds'], cap=2)
                pre += [i for i in e_pack(0, s.rnd, False) if i.k == 'ds']
                k0 = 1
            else: pre += e_head()
            if kind[0] in 'FGIJ' and s.rnd == 0:
                for u in range(6): pre += q_convert_a(u)
            for u in range(k0, 6): pre += e_pack(u, s.rnd, True)
            pre.append(barrier(need=[('ew', s.rnd)]))
            er = e_reads(s.rnd, toA)
            if OPT['edef']:
                nfirst = 0 if toA else 6
                pre += er[:nfirst]
                spread([(nx, g) for g in range(0, 24)], er[nfirst:])
                for it in nx.gaps[26]:
                    if it[0].k == 'barrier': it[0].need.append(('er', s.rnd, 1, 17))
                if not toA:
                    for k2 in range(2):
                        ps = seq[n + 1 + (k2 if nx.nh == 2 else 2 + k2)]
                        for u in range(6): ps.mf[6 * u].need = list(ps.mf[6 * u].need) + [('er', s.rnd, k2, 3 * u + 2)]
            else:
                pre += er
                pre.append(barrier(need=[('er', s.rnd, 1, 17)]))
            if stamps: pre += stamp(nstamp); nstamp += 1
            nx.pre = pre + nx.pre
        if s.typ == 'P':
            if s.hh == 0 and s.rnd == 1 and s.nh == 2 and (s.ch < 2 or not OPT['vinit']): s.pre += chunk_init(s.ch)
            if s.hh == s.nh - 1:
                hold = OPT['hold'] if s.nh == 4 else 0
                ce = chunk_end(s.ch, s.rnd == 1, s.ch < hold)
                if s.nh == 4 and OPT['nost']: ce = [i for i in ce if not (isinstance(i, I) and i.k == 'vstore')]
                if s.ch >= hold > 0:
                    per = -(-hold // (10 - hold)); k0 = (s.ch - hold) * per
                    for c2 in range(k0, min(hold, k0 + per)): ce = ce + flush_held(c2)
                if s.ch == 9:
                    if stamps: ce = ce + stamp(nstamp); nstamp += 1
                    if nx is None: post += ce
                    else: nx.pre = ce + nx.pre
                else:
                    if s.rnd == 1 and s.nh == 2 and OPT['vinit'] and s.ch < 8:
                        ini = chunk_init_valu(s.ch + 2)
                        ce = ce[:15] + interleave(ce[15:], ini[:3]) + ini[3:]
                    spread([(seq[n + 1 + k], g) for k in range(s.nh) for g in range(36)][3:-3], ce, even=True)
    if OPT['fuse']:
        seq[-1].put(OPT['pollgap'], bload(V(v_poll), V(v_fa), S(sWS, 4), 0, 0, ('poll',), ' sc1', op='buffer_load_dword'))
        seq[-1].put(30, raw("s_load_dwordx4 s[60:63], s[0:1], 80", 'smem'))
        post.append(waitfor([('poll',)]))
    prog = list(head)
    for s in seq:
        prog.append(mark('m'))
        prog += flat(s.pre)
        for k in range(36):
            prog.append(s.mf[k]); prog += flat(s.gaps[k])
    prog.append(mark('m'))
    prog += flat(post)
    return prog, nstamp

def stamp_out(nstamp):
    o = ["s_waitcnt vmcnt(0) lgkmcnt(0)"]
    o.append(f"s_memrealtime s[{s_stamp+2*nstamp}:{s_stamp+2*nstamp+1}]")
    o.append(f"s_memtime s[98:99]")
    o.append("s_waitcnt lgkmcnt(0)")
    o.append(f"s_lshl_b32 s{s_tmp}, s2, 8")
    o.append(f"s_lshl_b32 s{s_cnt}, s{s_w}, 6")
    o.append(f"s_add_u32 s{s_tmp}, s{s_tmp}, s{s_cnt}")
    o.append(f"s_add_u32 s{s_tmp}, s{s_tmp}, {STAMP_OFF}")
    o.append("v_mov_b32 v1, 0")
    for n in range(nstamp + 1):
        o.append(f"v_mov_b32 v2, s{s_stamp+2*n}")
        o.append(f"buffer_store_dword v2, v1, s[{sWS}:{sWS+3}], s{s_tmp} offen offset:{4*n}")
    o.append(f"s_sub_u32 s{s_cnt}, s98, s96")
    o.append(f"v_mov_b32 v2, s{s_cnt}")
    o.append(f"buffer_store_dword v2, v1, s[{sWS}:{sWS+3}], s{s_tmp} offen offset:60")
    o.append(f"v_mov_b32 v2, {nstamp+1}")
    o.append(f"buffer_store_dword v2, v1, s[{sWS}:{sWS+3}], s{s_tmp} offen offset:56")
    return o

FLAG_OFF = STAMP_OFF + 65536
v_fl = 109; v_fa = 110
def red_loads(a, bases, hq, ldfl, vb):
    off = (((hq & 1) << 3) | (hq >> 1)) * PART_WG
    for k, bs in enumerate(bases):
        r = vb + (k * 8 + hq) * 4
        a(f"s_add_u32 s{s_t0+1}, s{bs}, {off}")
        a(f"buffer_load_dwordx4 v[{r}:{r+3}], v{v_l16}, s[{sWS}:{sWS+3}], s{s_t0+1} offen{ldfl}")
def red_outaddr(a, f, dst, br, b):
    t = s_t0
    a(f"s_mul_hi_u32 s{t}, s{f}, 0x15555556")
    a(f"s_mul_i32 s{t+1}, s{t}, 12"); a(f"s_sub_u32 s{t+1}, s{f}, s{t+1}")
    a(f"s_mul_hi_u32 s{t+2}, s{t+1}, 0x55555556")
    a(f"s_mul_i32 s{t+3}, s{t+2}, 3"); a(f"s_sub_u32 s{t+3}, s{t+1}, s{t+3}")
    a(f"s_and_b32 s{dst}, s{t+2}, 1"); a(f"s_mul_i32 s{dst}, s{dst}, 48"); a(f"s_lshl_b32 s{t+3}, s{t+3}, 4")
    a(f"s_add_u32 s{dst}, s{dst}, s{t+3}")
    a(f"s_mul_i32 s{t+3}, s{b}, 96"); a(f"s_add_u32 s{dst}, s{dst}, s{t+3}")
    a(f"s_mul_i32 s{dst}, s{dst}, 2560")
    a(f"s_mul_i32 s{t+3}, s{br}, 1280"); a(f"s_add_u32 s{dst}, s{dst}, s{t+3}")
    a(f"s_lshl_b32 s{t+3}, s{t}, 7"); a(f"s_add_u32 s{dst}, s{dst}, s{t+3}")
    a(f"s_lshr_b32 s{t+3}, s{t+2}, 1"); a(f"s_lshl_b32 s{t+3}, s{t+3}, 6"); a(f"s_add_u32 s{dst}, s{dst}, s{t+3}")
def red_sum(a, nf, outs, vb):
    for k in range(nf):
        ac = 64 + 8 * (k % 2)
        for hq in range(8):
            for q in range(4):
                r = vb + (k * 8 + hq) * 4 + q
                if hq == 0:
                    a(f"v_lshlrev_b32 v{ac+q}, 16, v{r}"); a(f"v_and_b32 v{ac+4+q}, 0xffff0000, v{r}")
                else:
                    a(f"v_lshlrev_b32 v4, 16, v{r}"); a(f"v_and_b32 v{r}, 0xffff0000, v{r}")
                    a(f"v_add_f32 v{ac+q}, v{ac+q}, v4"); a(f"v_add_f32 v{ac+4+q}, v{ac+4+q}, v{r}")
        o = 48 + 4 * k
        for q in range(4): a(f"v_cvt_pk_bf16_f32 v{o+q}, v{ac+q}, v{ac+4+q}")
        a("s_nop 1")
        a(f"v_permlane32_swap_b32 v{o}, v{o+2}"); a(f"v_permlane32_swap_b32 v{o+1}, v{o+3}")
        a("s_nop 1")
        a(f"v_permlane16_swap_b32 v{o}, v{o+2}"); a(f"v_permlane16_swap_b32 v{o+1}, v{o+3}")
        a("s_nop 1")
        a(f"buffer_store_dwordx4 v[{o}:{o+3}], v2, s[{sK}:{sK+3}], s{outs[k]} offen{OPT['outst']}")

v_poll = 39
def fused_reduce(stamps=False):
    L = []; a = L.append
    def st(n):
        if stamps: a(f"s_memrealtime s[{s_stamp+2*n}:{s_stamp+2*n+1}]")
    sD = sV
    br, b, pb, done, last, it, new, slc, vw, extra, pend, stage = 28, 29, 30, 31, 32, 33, 34, 35, 36, 37, 46, 47
    fs = [38, 39, 40, 41]; bases = [42, 43, 44, 45]; outs = [12, 13, 14, 15]
    a("L_red:")
    a(f"v_cmp_ne_u32 vcc, v{v_poll}, v{v_fl}")
    a(f"s_bfe_u32 s{br}, s2, 0x10002"); a(f"s_lshr_b32 s{b}, s2, 4")
    a(f"s_lshl_b32 s{pb}, s{b}, 4"); a(f"s_lshl_b32 s{it}, s{br}, 2"); a(f"s_add_u32 s{pb}, s{pb}, s{it}")
    a(f"s_mul_i32 s{pb}, s{pb}, {PART_WG}")
    a(f"s_mov_b32 s{slc}, s{s_hq}"); a(f"s_mov_b32 s{vw}, s{s_w}"); a(f"s_mov_b32 s{last}, 0"); a(f"s_mov_b32 s{extra}, 0")
    a(f"s_lshl_b32 s{stage}, 1, s{s_hq}")
    a(f"s_andn2_b32 s{new}, vcc_lo, s{stage}"); a(f"s_and_b32 s48, s{new}, 0xff")
    a(f"s_mov_b32 s{new}, 0")
    for _ in range(OPT['pre']):
        a(f"s_sub_u32 s49, 0, s48"); a("s_and_b32 s49, s49, s48")
        a(f"s_or_b32 s{new}, s{new}, s49"); a("s_xor_b32 s48, s48, s49")
    a("L_red_setup:")
    a(f"s_mul_i32 s{it}, s{slc}, 15")
    for k in range(4):
        a(f"s_add_u32 s{fs[k]}, s{vw}, {4*k}")
        if k == 3: a(f"s_min_u32 s{fs[k]}, s{fs[k]}, 14")
        a(f"s_add_u32 s{fs[k]}, s{fs[k]}, s{it}")
        a(f"s_lshl_b32 s{bases[k]}, s{fs[k]}, 10"); a(f"s_add_u32 s{bases[k]}, s{bases[k]}, s{pb}")
    a(f"s_mov_b32 s{done}, 0"); a(f"s_mov_b32 s{it}, 0"); a(f"s_mov_b32 s{pend}, 0")
    a("L_red_issue:")
    for hq in range(8):
        a(f"s_bitcmp1_b32 s{new}, {hq}"); a(f"s_cbranch_scc0 L_red_s{hq}")
        red_loads(a, bases, hq, OPT['rld'], 112)
        a(f"L_red_s{hq}:")
    a(f"s_or_b32 s{s_t0}, s{stage}, s{it}"); a("s_cbranch_scc1 L_red_nset")
    a(f"v_lshrrev_b32 v3, 4, v{v_l16}")
    a("v_and_b32 v2, 15, v3"); a("v_mul_u32_u24 v2, 2560, v2")
    a("v_lshrrev_b32 v3, 4, v3"); a("v_lshl_add_u32 v2, v3, 4, v2")
    for k in range(4): red_outaddr(a, fs[k], outs[k], br, b)
    for r in range(64, 96): a(f"v_mov_b32 v{r}, 0")
    a(f"s_mov_b32 s{it}, 1")
    a("L_red_nset:")
    a(f"s_or_b32 s{done}, s{done}, s{new}"); a(f"s_or_b32 s{pend}, s{pend}, s{new}")
    a(f"s_cmp_eq_u32 s{stage}, 0"); a("s_cbranch_scc1 L_red_norm")
    a(f"s_lshl_b32 s{s_t0}, s{br}, 4"); a(f"s_add_u32 s{s_t0}, s{s_t0}, s{b}"); a(f"s_lshl_b32 s{s_t0}, s{s_t0}, 2")
    a(f"v_mov_b32 v6, s{s_t0}")
    a("s_waitcnt lgkmcnt(0)")
    a(f"s_mov_b32 s{sK}, s60"); a(f"s_mov_b32 s{sK+1}, s61"); a(f"s_mov_b32 s{sK+2}, 3932160"); a(f"s_mov_b32 s{sK+3}, 0x20000")
    a(f"s_mov_b32 s{sD}, s62"); a(f"s_mov_b32 s{sD+1}, s63"); a(f"s_mov_b32 s{sD+2}, 256"); a(f"s_mov_b32 s{sD+3}, 0x20000")
    a(f"s_bcnt1_i32_b32 s{s_t0}, s{new}")
    for k in range(OPT['pre'], 0, -1):
        a(f"s_cmp_lt_u32 s{s_t0}, {k}"); a(f"s_cbranch_scc1 L_red_w{k-1}")
        a(f"s_waitcnt vmcnt({4*k})"); a("s_branch L_red_bar")
        a(f"L_red_w{k-1}:")
    a("s_waitcnt vmcnt(0)")
    a("L_red_bar:")
    a("s_barrier")
    st(8)
    a(f"s_or_b32 s{new}, s{stage}, s48"); a(f"s_mov_b32 s49, s{stage}"); a(f"s_mov_b32 s{stage}, 0")
    a(f"s_cmp_lg_u32 s{s_w}, 0"); a("s_cbranch_scc1 L_red_issue")
    a(f"s_mov_b32 exec_lo, s49"); a("s_mov_b32 exec_hi, 0")
    a(f"v_add_u32 v8, 1, v{v_fl}")
    a(f"buffer_store_dword v8, v{v_fa}, s[{sWS}:{sWS+3}], 0 offen sc1")
    a("v_mov_b32 v7, 1")
    a(f"buffer_atomic_add v7, v6, s[{sD}:{sD+3}], 0 offen sc0")
    a("s_mov_b64 exec, -1")
    a("s_branch L_red_issue")
    a("L_red_norm:")
    a(f"s_cmp_eq_u32 s{done}, 0xff"); a("s_cbranch_scc1 L_red_wait")
    a("L_red_poll:")
    a(f"buffer_load_dword v{v_poll}, v{v_fa}, s[{sWS}:{sWS+3}], 0 offen sc1")
    a(f"s_add_u32 s{it}, s{it}, 1")
    a("L_red_wait:")
    st(10)
    a("s_waitcnt vmcnt(0)")
    st(11)
    for hq in range(8):
        a(f"s_bitcmp1_b32 s{pend}, {hq}"); a(f"s_cbranch_scc0 L_red_a{hq}")
        for k in range(4):
            r = 112 + (k * 8 + hq) * 4; ac = 64 + 8 * k
            a(f"v_mfma_f32_16x16x32_bf16 v[{ac}:{ac+3}], a[{aE0}:{aE0+3}], v[{r}:{r+3}], v[{ac}:{ac+3}]")
            a(f"v_mfma_f32_16x16x32_bf16 v[{ac+4}:{ac+7}], a[{aE1}:{aE1+3}], v[{r}:{r+3}], v[{ac+4}:{ac+7}]")
        a(f"L_red_a{hq}:")
    a(f"s_mov_b32 s{pend}, 0")
    a(f"s_cmp_eq_u32 s{done}, 0xff"); a("s_cbranch_scc1 L_red_sum")
    a(f"v_cmp_ne_u32 vcc, v{v_poll}, v{v_fl}")
    a("s_nop 4")
    a(f"s_andn2_b32 s{new}, vcc_lo, s{done}"); a(f"s_and_b32 s{new}, s{new}, 0xff")
    a("s_cbranch_scc1 L_red_issue")
    if OPT['sleep']: a(f"s_sleep {OPT['sleep']}")
    a(f"s_and_b32 s{s_t0}, s{it}, {OPT['cper'] - 1}"); a("s_cbranch_scc1 L_red_poll")
    a("s_mov_b64 exec, 1")
    a(f"s_cmp_lt_u32 s{it}, {OPT['polls']}"); a("s_cbranch_scc1 L_red_cnt")
    a(f"s_lshl_b32 s{new}, 1, s{s_hq}")
    a(f"v_mov_b32 v8, s{new}")
    a(f"buffer_atomic_or v8, v6, s[{sD}:{sD+3}], 0 offen offset:128 sc0")
    a("s_waitcnt vmcnt(0)")
    a("L_red_cnt:")
    a("v_mov_b32 v8, 0")
    a(f"buffer_atomic_add v8, v6, s[{sD}:{sD+3}], 0 offen sc0")
    a("s_waitcnt vmcnt(0)")
    a(f"v_readfirstlane_b32 s{s_t0}, v8")
    a("s_mov_b64 exec, -1")
    a(f"s_andn2_b32 s{new}, 0xff, s{done}")
    a("s_nop 2")
    a(f"s_cmp_eq_u32 s{s_t0}, 8"); a("s_cbranch_scc1 L_red_issue")
    a(f"s_cmp_lt_u32 s{it}, {OPT['polls']}"); a("s_cbranch_scc1 L_red_poll")
    a("s_branch L_red_next")
    a("L_red_sum:")
    a(f"s_or_b32 s{s_t0}, s{s_w}, s{last}"); a("s_cbranch_scc1 L_red_sum2")
    a("s_mov_b64 exec, 1")
    a("v_mov_b32 v9, 0")
    a(f"buffer_atomic_or v9, v6, s[{sD}:{sD+3}], 0 offen offset:128 sc0")
    a("s_mov_b64 exec, -1")
    a("L_red_sum2:")
    a("s_nop 7")
    for k in range(4):
        for q in range(4): a(f"v_cvt_pk_bf16_f32 v{48+4*k+q}, v{64+8*k+2*q}, v{65+8*k+2*q}")
    for op in ("v_permlane32_swap_b32", "v_permlane16_swap_b32"):
        for k in range(4):
            o = 48 + 4 * k
            a(f"{op} v{o}, v{o+2}"); a(f"{op} v{o+1}, v{o+3}")
    a("s_nop 1")
    for k in range(4):
        a(f"buffer_store_dwordx4 v[{48+4*k}:{51+4*k}], v2, s[{sK}:{sK+3}], s{outs[k]} offen{OPT['outst']}")
    a("L_red_next:")
    a(f"s_cmp_lg_u32 s{s_w}, 0"); a("s_cbranch_scc1 L_red_done")
    a(f"s_cmp_lg_u32 s{last}, 0"); a("s_cbranch_scc1 L_red_more")
    a("s_waitcnt vmcnt(0)")
    a(f"v_readlane_b32 s{last}, v7, s{s_hq}")
    a(f"v_readlane_b32 s{extra}, v9, 0")
    a("s_nop 3")
    a(f"s_cmp_eq_u32 s{last}, 7"); a("s_cbranch_scc0 L_red_done")
    a(f"s_mov_b32 s{vw}, 3")
    a("L_red_more:")
    a(f"s_add_u32 s{vw}, s{vw}, 1"); a(f"s_and_b32 s{vw}, s{vw}, 3"); a("s_cbranch_scc1 L_red_go")
    a(f"s_cmp_eq_u32 s{extra}, 0"); a("s_cbranch_scc1 L_red_done")
    a(f"s_ff1_i32_b32 s{slc}, s{extra}"); a(f"s_bitset0_b32 s{extra}, s{slc}")
    a("L_red_go:")
    a(f"s_mov_b32 s{new}, 0xff")
    a("s_nop 7")
    a("s_branch L_red_setup")
    a("L_red_done:")
    return L

def reduce_kernel():
    L = []; a = L.append
    a("s_cmp_ge_u32 s2, 960"); a("s_cbranch_scc1 R_end")
    a("s_load_dwordx2 s[12:13], s[0:1], 96"); a("s_load_dwordx2 s[14:15], s[0:1], 80")
    a("v_lshrrev_b32 v1, 6, v0"); a("s_nop 0"); a("v_readfirstlane_b32 s3, v1")
    a("v_and_b32 v3, 63, v0")
    a("s_nop 2")
    a("s_lshl_b32 s16, s2, 2"); a("s_add_u32 s16, s16, s3")
    a("s_mul_hi_u32 s17, s16, 0x2222223")
    a("s_mul_i32 s18, s17, 120"); a("s_sub_u32 s34, s16, s18")
    a("s_lshr_b32 s28, s17, 4"); a("s_and_b32 s29, s17, 15")
    a("s_lshl_b32 s30, s29, 4"); a("s_lshl_b32 s22, s28, 2"); a("s_add_u32 s30, s30, s22")
    a(f"s_mul_i32 s30, s30, {PART_WG}")
    a(f"v_lshlrev_b32 v{v_l16}, 4, v3")
    a("v_and_b32 v2, 15, v3"); a("v_mul_u32_u24 v2, 2560, v2")
    a("v_lshrrev_b32 v3, 4, v3"); a("v_lshl_add_u32 v2, v3, 4, v2")
    a("s_waitcnt lgkmcnt(0)")
    a(f"s_mov_b32 s{sWS}, s12"); a(f"s_mov_b32 s{sWS+1}, s13"); a(f"s_mov_b32 s{sWS+2}, 438042624"); a(f"s_mov_b32 s{sWS+3}, 0x20000")
    a(f"s_mov_b32 s{sK}, s14"); a(f"s_mov_b32 s{sK+1}, s15"); a(f"s_mov_b32 s{sK+2}, 3932160"); a(f"s_mov_b32 s{sK+3}, 0x20000")
    a("s_lshl_b32 s42, s34, 10"); a("s_add_u32 s42, s42, s30")
    for hq in range(8): red_loads(a, [42], hq, "", 8)
    red_outaddr(a, 34, 12, 28, 29)
    a("s_waitcnt vmcnt(0)")
    red_sum(a, 1, [12], 8)
    a("R_end:")
    a("s_endpgm")
    return L

DESC = """.section .rodata,"a"
.p2align 6
.amdhsa_kernel {name}
  .amdhsa_next_free_vgpr {nv}
  .amdhsa_next_free_sgpr {ns}
  .amdhsa_accum_offset {acc}
  .amdhsa_group_segment_fixed_size 0
  .amdhsa_kernarg_size 104
  .amdhsa_user_sgpr_count 2
  .amdhsa_user_sgpr_kernarg_segment_ptr 1
  .amdhsa_system_sgpr_workgroup_id_x 1
.end_amdhsa_kernel
"""
def far_jump(lbl, uid):
    return [f"s_getpc_b64 s[{s_ret}:{s_ret+1}]", f"{uid}:", f"s_add_u32 s{s_ret}, s{s_ret}, {lbl}-{uid}",
            f"s_addc_u32 s{s_ret+1}, s{s_ret+1}, 0", f"s_setpc_b64 s[{s_ret}:{s_ret+1}]"]

def main():
    ap = argparse.ArgumentParser()
    ap.add_argument('-o', default=f'cdna_kernels/{KN}.s')
    ap.add_argument('--kind', default='J+W')
    ap.add_argument('--stamps', action='store_true')
    ap.add_argument('-v', action='store_true')
    ap.add_argument('--drop', default='')
    ap.add_argument('--opt', default='')
    a = ap.parse_args()
    for kv in filter(None, a.opt.split(',')):
        k, v = kv.split('=')
        fl = '' if v == 'df' else ' ' + v.replace('+', ' ')
        if k == 'w':
            for kk in ('wq0', 'wq1', 'wo0', 'wo1', 'x0', 'x1'): OPT[kk] = fl
        elif isinstance(OPT[k], int): OPT[k] = int(v, 0)
        else: OPT[k] = fl
    if not OPT['fuse'] and OPT['st'] == ' sc1': OPT['st'] = ''
    p1, p2 = prologue()
    p1, _ = fix_hazards(p1)
    kinds = a.kind.split('+')
    lines = []; nn = 0
    if len(kinds) > 1:
        pat = OPT['pat'].strip()
        pat = (pat * 32)[:32]
        lo = sum(int(c) << (2 * i) for i, c in enumerate(pat[:16])); hi = sum(int(c) << (2 * i) for i, c in enumerate(pat[16:]))
        lines += [f"; classes {pat}", f"s_mov_b32 s{s_ret}, {hex(lo)}", f"s_mov_b32 s{s_ret+1}, {hex(hi)}", f"s_lshr_b32 s{s_cnt}, s2, 3", f"s_lshl_b32 s{s_cnt}, s{s_cnt}, 1",
                  f"s_lshr_b64 s[{s_ret}:{s_ret+1}], s[{s_ret}:{s_ret+1}], s{s_cnt}", f"s_and_b32 s{s_cnt}, s{s_ret}, 3"]
        for ci in range(1, len(kinds)):
            lines += [f"s_cmp_eq_u32 s{s_cnt}, {ci}", f"s_cbranch_scc0 L_nc{ci}"] + far_jump(f'L_cls{ci}', f'L_pc{ci}') + [f"L_nc{ci}:"]
    for ci, kind in enumerate(kinds):
        body, nstamp = build_main(kind, a.stamps, p2)
        body = insert_waits(body)
        if a.drop:
            dr = a.drop.split(',')
            body = [i for i in body if i.k not in dr]
        body, n1 = fix_hazards(body, a.v); nn += n1
        k = [i for i, x in enumerate(body) if x.k == 'split'][0]
        if ci == 0: common = [x.t for x in body[:k]]
        else: assert common == [x.t for x in body[:k]]
        body = body[k + 1:]
        l1, s1 = compress(body, S(s_cnt), uid=f'C{ci}_')
        s1 = [x.replace('L_rare', f'L_rare{ci}') for x in s1]
        lines += [f"L_cls{ci}:"]
        lines += l1
        if a.stamps: lines += [f"s_mov_b32 s3, {12 if OPT['rst'] else nstamp}"]
        NS = 12
        if a.stamps: lines += [f"s_memrealtime s[{s_stamp+2*NS}:{s_stamp+2*NS+1}]"]
        if OPT['fuse']: lines += [x.replace('L_red', f'L_r{ci}') for x in fused_reduce(a.stamps and OPT['rst'])]
        if a.stamps:
            so = stamp_out(NS + 1)
            so = [x.replace(f"v_mov_b32 v2, {NS+2}", "v_mov_b32 v2, s3") for x in so]
            lines += ["s_mov_b64 exec, -1"] + so
        lines += ["s_endpgm"]
        lines += s1 + rare_path(f'L_rare{ci}_0', 0) + rare_path(f'L_rare{ci}_1', 1)
    hdr = open(f'cdna_kernels/{KN}.s.ref').read().split('\n')
    hdr = [l for l in hdr if l.startswith(';') and '@launch' not in l and 'Override launch' not in l and 'grid=ceil' not in l]
    if OPT['fuse']: out = hdr + [f"; @launch grid=(256,1,1) block=(256,1,1) lds={LDS_BYTES}"]
    else: out = hdr + [f"; @launch kernel={KN}_kernel grid=(256,1,1) block=(256,1,1) lds={LDS_BYTES}",
                       "; @launch kernel=reduce_kernel grid=(960,1,1) block=(256,1,1) lds=0"]
    doc = [
        "; Generated by a script (hand-designed schedule). One workgroup per CU handles (branch, batch, 4 heads) in two rounds of",
        "; two heads: wave = (head of the pair, half of the 96 query rows). Every operand tile (K, V, wq, wo: 24 KiB 'slots') streams",
        "; through a 4-deep LDS ring by LDS-DMA with XOR-swizzled source addresses; 16x16x32 bf16 MFMAs compute Q^T, S^T, O^T, out^T.",
        "; Online softmax: running max with a run-time check (rescale when a score exceeds it by more than 2^8).",
        "; Two workgroup classes order their phases differently so that K/V streaming and projection work overlap across the chip.",
        "; The 8 workgroups of one (branch, batch) publish bf16 partials in d_ws and reduce one slice each (flags in d_ws,",
        "; arrival counter and hand-over mask in d_debug; a bounded wait hands the slice to the last arriver).",
    ]
    nhdr = len(out) + len(doc)
    out += doc + ['.amdgcn_target "amdgcn-amd-amdhsa--gfx950"', '.text',
            f'.globl {KN}_kernel', '.p2align 8', f'.type {KN}_kernel,@function', f'{KN}_kernel:']
    out += ["s_cmp_lt_u32 s2, 256", "s_cbranch_scc1 L_go", "s_endpgm", "L_go:"]
    if a.stamps and OPT['st0']: out += [f"s_memrealtime s[{s_stamp}:{s_stamp+1}]"]
    if OPT['cpf'] == 2:
        out += [f"s_getpc_b64 s[{s_ret}:{s_ret+1}]", "L_cp:", f"s_lshr_b32 s{s_tmp}, s2, 3", f"s_lshl_b32 s{s_tmp}, s{s_tmp}, 13",
                "v_lshrrev_b32 v1, 2, v0", "v_lshlrev_b32 v1, 7, v1", f"v_add_u32 v1, s{s_tmp}, v1", "v_min_u32 v1, L_code_end-L_cp-4, v1",
                f"global_load_dword v{v_t+10}, v1, s[{s_ret}:{s_ret+1}]"]
    if OPT['half']: out += [f"s_and_b32 s3, s2, {OPT['half']}", "s_cbranch_scc0 L_go2", "s_endpgm", "L_go2:"]
    if OPT['cpf'] == 1: out += [f"s_getpc_b64 s[{s_ret}:{s_ret+1}]", "L_cp0:", f"s_sub_u32 s{s_ret}, s{s_ret}, L_cp0-L_go", f"s_subb_u32 s{s_ret+1}, s{s_ret+1}, 0"]
    out += [i.t for i in p1] + common + lines + ["L_code_end:"]
    if not OPT['fuse']:
        out += ['.globl reduce_kernel', '.p2align 8', '.type reduce_kernel,@function', 'reduce_kernel:'] + reduce_kernel()
    out.append(DESC.format(name=KN + '_kernel', nv=512, ns=102, acc=256))
    if not OPT['fuse']: out.append(DESC.format(name='reduce_kernel', nv=88, ns=72, acc=88))
    txt = "\n".join(out) + "\n"
    if OPT['mac']:
        txt = txt.replace("v_mfma_f32_16x16x32_bf16 ", "M ").replace("ds_read_b64_tr_b16 ", "T ").replace("v_cvt_pk_bf16_f32 ", "C ")
        txt = txt.replace("v_accvgpr_write_b32 ", "AW ").replace("buffer_load_dwordx4 ", "L ").replace(", ", ",")
        mac = [".macro M a:vararg", "v_mfma_f32_16x16x32_bf16 \\a", ".endm", ".macro T a:vararg", "ds_read_b64_tr_b16 \\a", ".endm",
               ".macro C a:vararg", "v_cvt_pk_bf16_f32 \\a", ".endm", ".macro AW a:vararg", "v_accvgpr_write_b32 \\a", ".endm",
               ".macro L a:vararg", "buffer_load_dwordx4 \\a", ".endm"]
        txt = txt.replace(".text\n", ".text\n" + "\n".join(mac) + "\n", 1)
        head = "\n".join(out[:nhdr + 1])
        txt = head + txt[txt.index("\n.text\n"):] if OPT['fuse'] else txt
    open(a.o, 'w').write(txt)
    print(f"wrote {a.o}: {len(out)} lines, {nn} hazard nops")

if __name__ == '__main__':
    main()
```
